```python
import torch

def _softmax(x, axis=-1):
    return torch.softmax(x, dim=axis)

def _gelu(x):
    return torch.nn.functional.gelu(x, approximate='tanh')

def _silu(x):
    return torch.nn.functional.silu(x)

def _sigmoid(x):
    return torch.sigmoid(x)

def _layernorm(x, axis=-1, eps=1e-05):
    m = x.mean(dim=axis, keepdim=True)
    v = x.var(dim=axis, keepdim=True, unbiased=False)
    return (x - m) / torch.sqrt(v + eps)

def _scatter_add(tgt, idx, src, axis=0):
    return tgt.clone().index_add_(axis, idx, src)

def _segment_sum(src, seg, n):
    out = torch.zeros((n,) + src.shape[1:], dtype=src.dtype)
    return out.index_add_(0, seg, src)

def _pad(x, pw):
    flat = tuple((v for pair in reversed(pw) for v in pair))
    return torch.nn.functional.pad(x, flat)
kernel_name = 'standalone__autoregressive_conv_wavernn__speech'

def setup_inputs():

    _w = lambda a: (lambda t: t.to(torch.bfloat16) if t.is_floating_point() else t)(torch.as_tensor(a))
    B, T, D, K = (2, 16000, 512, 5)
    return {'x': _w((lambda *s: torch.randn(*s, dtype=torch.bfloat16) * 0.05)(B, T, D)), 'w': _w((lambda *s: torch.randn(*s, dtype=torch.bfloat16) * 0.05)(K, D, 2 * D))}

def reference(x, w):
    B, T, D = x.shape
    K = w.shape[0]
    dil = 2
    pad = (K - 1) * dil
    xp = _pad(x, ((0, 0), (pad, 0), (0, 0)))
    h = torch.einsum('btd,de->bte', xp[:, 0:T, :], w[0])
    for i in range(1, K):
        h = h + torch.einsum('btd,de->bte', xp[:, i * dil:i * dil + T, :], w[i])
    f, g = (h[..., :D].clone(), h[..., D:].clone())
    return torch.tanh(f) * _sigmoid(g)
```

```python
import sys, math

NAME = "standalone__autoregressive_conv_wavernn__speech"
HEADER = """; Kernarg layout for this problem (40 bytes, ptrs only, base s[0:1]):
"""

class Asm:
    def __init__(self):
        self.l = []
    def __call__(self, s):
        self.l.append("    " + s)
    def label(self, s):
        self.l.append(s + ":")
    def raw(self, s):
        self.l.append(s)
    def text(self):
        return "\n".join(self.l) + "\n"

def f32bits(v):
    import struct
    return struct.unpack("<I", struct.pack("<f", v))[0]

def gen_wprep(a):
    a.raw(".globl wprep_kernel")
    a.raw(".p2align 8")
    a.raw(".type wprep_kernel,@function")
    a.label("wprep_kernel")
    a("s_cmp_ge_u32 s2, 320")
    a("s_cbranch_scc1 WP_END")
    a("s_load_dwordx2 s[4:5], s[0:1], 8")
    a("s_load_dwordx2 s[6:7], s[0:1], 32")
    a("s_lshr_b32 s3, s2, 6")
    a("s_and_b32 s16, s2, 63")
    a("s_lshl_b32 s17, s2, 14")
    a("v_lshlrev_b32 v1, 4, v0")
    a("v_bfe_u32 v2, v0, 2, 4")
    a("s_mov_b32 s18, 327680")
    a("v_mul_lo_u32 v2, v2, s18")
    a("v_lshrrev_b32 v3, 6, v0")
    a("v_lshlrev_b32 v3, 11, v3")
    a("v_add_u32 v2, v2, v3")
    a("v_and_b32 v3, 3, v0")
    a("v_lshlrev_b32 v3, 6, v3")
    a("v_add_u32 v2, v2, v3")
    a("s_lshr_b32 s19, s16, 2")
    a("s_mul_i32 s19, s19, 5")
    a("s_add_u32 s19, s19, s3")
    a("s_lshl_b32 s19, s19, 12")
    a("s_and_b32 s20, s16, 3")
    a("s_lshl_b32 s20, s20, 8")
    a("s_add_u32 s19, s19, s20")
    a("s_mov_b32 s21, 0x05040100")
    a("s_mov_b32 s22, 0x07060302")
    a("s_waitcnt lgkmcnt(0)")
    a("s_mov_b32 s8, s4")
    a("s_and_b32 s9, s5, 0xffff")
    a("s_mov_b32 s10, 5242880")
    a("s_mov_b32 s11, 0x00020000")
    a("s_mov_b32 s12, s6")
    a("s_and_b32 s13, s7, 0xffff")
    a("s_mov_b32 s14, 5242880")
    a("s_mov_b32 s15, 0x00020000")
    for m in range(8):
        if m % 2 == 0 and m:
            a("s_add_u32 s17, s17, 4096")
        a(f"buffer_load_dwordx4 v[{8+4*m}:{11+4*m}], v1, s[8:11], s17 offen offset:{(m%2)*2048}")
    for n in range(4):
        a(f"s_waitcnt vmcnt({6-2*n})")
        for p in range(4):
            lo = 8 + 4 * (2 * n) + p
            hi = 8 + 4 * (2 * n + 1) + p
            a(f"v_perm_b32 v{40+4*(2*p)+n}, v{hi}, v{lo}, s21")
            a(f"v_perm_b32 v{40+4*(2*p+1)+n}, v{hi}, v{lo}, s22")
    for c in range(8):
        h, r = c >> 2, c & 3
        a(f"buffer_store_dwordx4 v[{40+4*c}:{43+4*c}], v2, s[12:15], s19 offen offset:{h*1024+r*16}")
    a("s_waitcnt vmcnt(0)")
    a.label("WP_END")
    a("s_endpgm")

BLK = 1056
CH = 17 * BLK
ZOFF = 2 * CH
LDS_BYTES = ZOFF + 256
WSLICE = 327680

S_X, S_W, S_O = 16, 20, 24
sWAVE, sET, sKC, sWOFF, sDSLOT, sDBASE, sRSLOT = 28, 29, 30, 31, 32, 33, 34
sXB = 36
sXB2 = 41
sNT, sDX, sWB = 46, 47, 35
sC1, sC2, sONE, sCL = 48, 50, 52, 54
sT0, sT1, sT2, sT3 = 56, 57, 58, 59
sSO = 60
vWOFF, vXOFF, vHOFF, vAM, vAH, vBM, vBH, vMK, vBH2, vMK2, vOUT, vOUT2 = 1, 2, 3, 4, 5, 6, 7, 8, 9, 10, 11, 12
vT = 14
vOQ = 24
NMISC = 32

def acc(eb, j):
    idx = j * 4 + eb
    if idx < 56:
        b = NMISC + idx * 4
        return ("v", b)
    return ("a", (idx - 56) * 4)
def rng(t, b, n=4):
    return f"{t}[{b}:{b+n-1}]"
def X(s):
    return rng("a", 32 + 4 * s)
def W(i, eb):
    return rng("a", 112 + 4 * (i * 4 + eb))

def rowbytes(a, vU, vD, vtmp):
    a(f"v_lshlrev_b32 v{vD}, 1, v{vU}")
    for thr, adj in ((8000, 15999), (16000, 1), (24000, 15999)):
        a(f"v_cmp_le_u32 vcc, {thr}, v{vU}")
        a(f"v_mov_b32 v{vtmp}, {adj}")
        a("s_nop 1")
        a(f"v_cndmask_b32 v{vtmp}, 0, v{vtmp}, vcc")
        a(f"v_sub_u32 v{vD}, v{vD}, v{vtmp}")
    a(f"v_lshlrev_b32 v{vD}, 10, v{vD}")

def tile_setup(a, sTT, sxb, vbh, vmk, vout):
    a(f"s_lshl_b32 s{sT0}, s{sTT}, 8")
    a("v_lshlrev_b32 v14, 4, v13")
    a(f"v_add_u32 v14, s{sT0}, v14")
    a("v_subrev_u32 v14, 16, v14")
    a("v_max_i32 v14, 0, v14")
    rowbytes(a, 14, 15, 16)
    a(f"s_lshl_b32 s{sT1}, s{sWAVE}, 2")
    a(f"s_add_u32 s{sT1}, s{sT1}, 1")
    a("s_nop 1")
    a(f"v_readlane_b32 s{sxb+4}, v15, 0")
    for m in range(4):
        a(f"v_readlane_b32 s{sxb+m}, v15, s{sT1}")
        a(f"s_add_u32 s{sT1}, s{sT1}, 1")
    a("v_and_b32 v17, 15, v13")
    a("v_lshlrev_b32 v14, 4, v17")
    a(f"v_add_u32 v14, s{sT0}, v14")
    rowbytes(a, 14, 15, 16)
    a("v_lshrrev_b32 v18, 4, v13")
    a("v_lshlrev_b32 v16, 4, v18")
    a("v_add_u32 v15, v15, v16")
    a(f"s_lshl_b32 s{sT1}, s{sET}, 8")
    a(f"s_lshl_b32 s{sT2}, s{sWAVE}, 6")
    a(f"s_add_u32 s{sT1}, s{sT1}, s{sT2}")
    a(f"v_add_u32 v{vout}, s{sT1}, v15")
    a(f"v_mov_b32 v{vmk}, 1")
    for thr in (0, 8000, 16000, 24000):
        a(f"v_cmp_ne_u32 vcc, {thr}, v14")
        a("s_nop 1")
        a(f"v_cndmask_b32 v{vmk}, 0, v{vmk}, vcc")
    a(f"v_mul_u32_u24 v15, {BLK}, v17")
    a(f"v_add_u32 v15, {12*64}, v15")
    a(f"v_mov_b32 v19, {ZOFF}")
    a(f"v_cmp_eq_u32 vcc, 1, v{vmk}")
    a("s_nop 1")
    a("v_cndmask_b32 v15, v19, v15, vcc")
    a(f"v_add_u32 v{vbh}, v15, v16")

def dma(a, m):
    if m < 4:
        return [f"s_add_u32 m0, s{sDBASE}, {m*BLK}"], [f"buffer_load_dwordx4 v{vXOFF}, s[{S_X}:{S_X+3}], s{sXB+m} offen lds"]
    return [f"s_mov_b32 m0, s{sDSLOT}"], [f"buffer_load_dwordx4 v{vHOFF}, s[{S_X}:{S_X+3}], s{sXB+4} offen lds"]

def wload(i, eb):
    return f"buffer_load_dwordx4 {W(i, eb)}, v{vWOFF}, s[{S_W}:{S_W+3}], s{sWOFF} offen offset:{eb*1024}"

def xread(s):
    if s < 4:
        return f"ds_read_b128 {X(s)}, v{vAH} offset:{s*64}"
    return f"ds_read_b128 {X(s)}, v{vAM} offset:{(s-4)*64}"

def body(a, first, o, tag):
    pre = {}
    post = {}
    def P(d, k, *ins):
        d.setdefault(k, []).extend(ins)
    for i in range(5):
        b = i * 64
        if i == 0:
            P(pre, b, "s_waitcnt vmcnt(17) lgkmcnt(4)")
        elif i == 1:
            P(pre, b, "s_waitcnt vmcnt(17) lgkmcnt(0)")
        elif i < 4:
            P(pre, b, "s_waitcnt vmcnt(17)")
        else:
            P(pre, b, "s_waitcnt vmcnt(12)")
            if not o.get("nobar"):
                P(pre, b, "s_barrier")
        wi = (i + 4) % 5
        ws = o.get("wslots", (5, 13, 21, 29))
        for eb in range(4):
            if not o.get("now"):
                P(post, b + ws[eb], wload(wi, eb))
        P(post, b + ws[3] + 1, f"s_add_u32 s{sWOFF}, s{sWOFF}, 4096")
        if i == 0:
            P(post, b + ws[3] + 2, f"s_cmp_eq_u32 s{sWOFF}, {WSLICE}", f"s_cselect_b32 s{sWOFF}, 0, s{sWOFF}")
    b = 3 * 64
    if not first:
        P(post, b + 40, f"s_cmp_eq_u32 s{sKC}, 15", f"s_cbranch_scc0 L_nosw_{tag}",
          f"v_mov_b32 v{vBH}, v{vBH2}", f"v_mov_b32 v{vMK}, v{vMK2}", f"L_nosw_{tag}:")
    P(post, b + 44, f"v_add_u32 v{vAM}, s{sRSLOT}, v{vBM}")
    P(post, b + 45, f"v_mad_u32_u24 v{vAH}, v{vMK}, s{sRSLOT}, v{vBH}")
    b = 4 * 64
    if not o.get("nox"):
        for s in range(4):
            P(post, b + s, xread(s))
        for j in range(16):
            P(post, b + 4 * j + 3, xread(j + 4))
    dsl = o.get("dslots", (34, 38, 42, 46, 50))
    for m in range(5):
        g0, g1 = dma(a, m)
        P(post, b + dsl[m] - 1, *g0)
        if not o.get("nodma"):
            P(post, b + dsl[m], *g1)
    k = b + dsl[4] + 2
    P(post, k, f"v_add_u32 v{vXOFF}, s{sDX}, v{vXOFF}", f"v_add_u32 v{vHOFF}, s{sDX}, v{vHOFF}")
    P(post, k + 1, f"s_xor_b32 s{sDSLOT}, s{sDSLOT}, {CH}", f"s_xor_b32 s{sRSLOT}, s{sRSLOT}, {CH}")
    P(post, k + 2, f"s_add_u32 s{sDBASE}, s{sDSLOT}, s{sWB}")
    if not first:
        P(post, k + 3, f"s_cmp_eq_u32 s{sKC}, 13", f"s_cbranch_scc0 L_nodsw_{tag}",
          *[f"s_mov_b32 s{sXB+m}, s{sXB2+m}" for m in range(5)], f"L_nodsw_{tag}:")
        P(post, k + 4, f"s_cmp_eq_u32 s{sKC}, 12", f"s_cselect_b32 s{sDX}, s{sT3}, 64")
    for i in range(5):
        for j in range(16):
            for eb in range(4):
                sl = i * 64 + j * 4 + eb
                for ins in pre.get(sl, []):
                    a(ins)
                t, b0 = acc(eb, j)
                c = "0" if (first and i == 0) else rng(t, b0)
                a(f"v_mfma_f32_16x16x32_bf16 {rng(t, b0)}, {W(i, eb)}, {X(j + i)}, {c}")
                for ins in post.get(sl, []):
                    if ins.endswith(":"):
                        a.label(ins[:-1])
                    else:
                        a(ins)

def epilogue(a, o):
    a(f"s_mov_b32 s{sSO}, 0")
    for j in range(16):
        regs = []
        for eb in range(4):
            t, b = acc(eb, j)
            if t == "a":
                _, nb = acc(eb, j - 14)
                for r in range(4):
                    a(f"v_accvgpr_read_b32 v{nb+r}, a{b+r}")
                b = nb
            regs.append(b)
        prs = []
        for h in range(2):
            for p in range(2):
                prs.append((regs[h] + 2 * p, regs[2 + h] + 2 * p, vT + 2 * (2 * h + p)))
        oq = vOQ + 4 * (j & 1)
        P2 = lambda r: f"v[{r}:{r+1}]"
        for f, g, t in prs:
            a(f"v_pk_mul_f32 {P2(f)}, {P2(f)}, s[{sC1}:{sC1+1}]")
        for f, g, t in prs:
            a(f"v_pk_mul_f32 {P2(g)}, {P2(g)}, s[{sC2}:{sC2+1}]")
        for f, g, t in prs:
            a(f"v_min_f32 v{f}, s{sCL}, v{f}")
            a(f"v_min_f32 v{f+1}, s{sCL}, v{f+1}")
        for f, g, t in prs:
            a(f"v_exp_f32 v{g}, v{g}")
            a(f"v_exp_f32 v{g+1}, v{g+1}")
        for f, g, t in prs:
            a(f"v_exp_f32 v{f}, v{f}")
            a(f"v_exp_f32 v{f+1}, v{f+1}")
        for f, g, t in prs:
            a(f"v_pk_add_f32 {P2(t)}, {P2(f)}, s[{sONE}:{sONE+1}]")
        for f, g, t in prs:
            a(f"v_pk_fma_f32 {P2(g)}, {P2(t)}, {P2(g)}, {P2(t)}")
        for f, g, t in prs:
            a(f"v_rcp_f32 v{g}, v{g}")
            a(f"v_rcp_f32 v{g+1}, v{g+1}")
        for f, g, t in prs:
            a(f"v_pk_add_f32 {P2(f)}, {P2(f)}, s[{sONE}:{sONE+1}] neg_lo:[0,1] neg_hi:[0,1]")
        for f, g, t in prs:
            a(f"v_pk_mul_f32 {P2(f)}, {P2(f)}, {P2(g)}")
        for n, (f, g, t) in enumerate(prs):
            a(f"v_cvt_pk_bf16_f32 v{oq+n}, v{f}, v{f+1}")
        a(f"buffer_store_dwordx4 v[{oq}:{oq+3}], v{vOUT}, s[{S_O}:{S_O+3}], s{sSO} offen offset:{(j&1)*2048}")
        if j & 1:
            a(f"s_add_u32 s{sSO}, s{sSO}, 4096")

def gen_main(a, o):
    K = NAME + "_kernel"
    a.raw(f".globl {K}")
    a.raw(".p2align 8")
    a.raw(f".type {K},@function")
    a.label(K)
    a("s_cmp_ge_u32 s2, 256")
    a("s_cbranch_scc1 L_END")
    a("s_load_dwordx8 s[4:11], s[0:1], 0")
    a("s_load_dwordx2 s[12:13], s[0:1], 32")
    if o.get("stamp"):
        a("s_memtime s[64:65]")
    a("v_lshrrev_b32 v1, 6, v0")
    a("v_and_b32 v13, 63, v0")
    a("s_nop 0")
    a(f"v_readfirstlane_b32 s{sWAVE}, v1")
    a("s_and_b32 s61, s2, 7")
    a("s_lshr_b32 s62, s2, 3")
    a("s_and_b32 s63, s61, 1")
    a("s_lshl_b32 s63, s63, 1")
    a(f"s_and_b32 s{sET}, s62, 1")
    a(f"s_add_u32 s{sET}, s{sET}, s63")
    a("s_lshr_b32 s61, s61, 1")
    a("s_lshr_b32 s62, s62, 1")
    a("s_mul_i32 s63, s61, 31")
    a("s_cmp_eq_u32 s61, 0")
    a(f"s_cselect_b32 s{sT3}, 0, 1")
    a(f"s_add_u32 s63, s63, s{sT3}")
    a("s_add_u32 s63, s63, s62")
    a(f"s_sub_u32 s{sT3}, 16, s{sT3}")
    a(f"s_cmp_lt_u32 s62, s{sT3}")
    a(f"s_cselect_b32 s{sNT}, 2, 1")
    a("s_cselect_b32 s62, 16, 0")
    a("s_add_u32 s62, s63, s62")
    tile_setup(a, 63, sXB, vBH, vMK, vOUT)
    tile_setup(a, 62, sXB2, vBH2, vMK2, vOUT2)
    for r, v in ((sC1, 2 * math.log2(math.e)), (sC2, -math.log2(math.e)), (sONE, 1.0)):
        a(f"s_mov_b32 s{r}, {f32bits(v):#x}")
        a(f"s_mov_b32 s{r+1}, {f32bits(v):#x}")
    a(f"s_mov_b32 s{sCL}, {f32bits(40.0):#x}")
    a(f"s_mov_b32 s{sT3}, -960")
    a(f"s_mov_b32 s{sDX}, 64")
    a(f"v_lshlrev_b32 v{vWOFF}, 4, v13")
    a("v_lshrrev_b32 v14, 2, v13")
    a("v_lshlrev_b32 v14, 11, v14")
    a("v_and_b32 v15, 3, v13")
    a("v_lshlrev_b32 v15, 4, v15")
    a(f"v_add_u32 v{vXOFF}, v14, v15")
    a("v_mov_b32 v14, 0x70000000")
    a("v_cmp_le_u32 vcc, 48, v13")
    a("s_nop 1")
    a(f"v_cndmask_b32 v{vHOFF}, v14, v{vXOFF}, vcc")
    a("v_and_b32 v14, 15, v13")
    a("v_add_u32 v14, 1, v14")
    a(f"v_mul_u32_u24 v14, {BLK}, v14")
    a("v_lshrrev_b32 v15, 4, v13")
    a("v_lshlrev_b32 v15, 4, v15")
    a(f"v_add_u32 v{vBM}, v14, v15")
    a(f"s_lshl_b32 s{sWB}, s{sWAVE}, 2")
    a(f"s_add_u32 s{sWB}, s{sWB}, 1")
    a(f"s_mul_i32 s{sWB}, s{sWB}, {BLK}")
    a("v_lshlrev_b32 v14, 2, v13")
    a("v_mov_b32 v15, 0")
    a(f"ds_write_b32 v14, v15 offset:{ZOFF}")
    a("s_waitcnt lgkmcnt(0)")
    a(f"s_mov_b32 s{S_X}, s4")
    a(f"s_and_b32 s{S_X+1}, s5, 0xffff")
    a(f"s_mov_b32 s{S_X+2}, 32768000")
    a(f"s_mov_b32 s{S_X+3}, 0x00020000")
    a(f"s_mov_b32 s{S_O}, s8")
    a(f"s_and_b32 s{S_O+1}, s9, 0xffff")
    a(f"s_mov_b32 s{S_O+2}, 32768000")
    a(f"s_mov_b32 s{S_O+3}, 0x00020000")
    a(f"s_lshl_b32 s{sT0}, s{sET}, 2")
    a(f"s_add_u32 s{sT0}, s{sT0}, s{sWAVE}")
    a(f"s_mul_i32 s{sT0}, s{sT0}, {WSLICE}")
    a(f"s_add_u32 s{S_W}, s12, s{sT0}")
    a(f"s_addc_u32 s{S_W+1}, s13, 0")
    a(f"s_and_b32 s{S_W+1}, s{S_W+1}, 0xffff")
    a(f"s_mov_b32 s{S_W+2}, {WSLICE}")
    a(f"s_mov_b32 s{S_W+3}, 0x00020000")
    a(f"s_mov_b32 s{sWOFF}, 0")
    for c in range(2):
        a(f"s_mov_b32 s{sDSLOT}, {c*CH}")
        a(f"s_add_u32 s{sDBASE}, s{sDSLOT}, s{sWB}")
        for m in range(5):
            g0, g1 = dma(a, m)
            for ins in g0: a(ins)
            a("s_nop 0")
            for ins in g1: a(ins)
        a(f"v_add_u32 v{vXOFF}, 64, v{vXOFF}")
        a(f"v_add_u32 v{vHOFF}, 64, v{vHOFF}")
        if c == 0:
            for i in range(4):
                for eb in range(4):
                    a(wload(i, eb))
                a(f"s_add_u32 s{sWOFF}, s{sWOFF}, 4096")
    a(f"s_mov_b32 s{sDSLOT}, 0")
    a(f"s_add_u32 s{sDBASE}, s{sDSLOT}, s{sWB}")
    a(f"s_mov_b32 s{sRSLOT}, {CH}")
    a(f"v_mov_b32 v{vAM}, v{vBM}")
    a(f"v_mov_b32 v{vAH}, v{vBH}")
    a("s_waitcnt vmcnt(21)")
    a("s_barrier")
    for s in range(20):
        a(xread(s))
    if o.get("stamp"):
        a("s_memtime s[66:67]")
    a.label("L_TILE")
    a(f"s_mov_b32 s{sKC}, 0")
    body(a, True, o, "f")
    a(f"s_mov_b32 s{sKC}, 1")
    a.raw(".p2align 6")
    a.label("L_LOOP")
    body(a, False, o, "l")
    a(f"s_add_u32 s{sKC}, s{sKC}, 1")
    a(f"s_cmp_lt_u32 s{sKC}, 16")
    a("s_cbranch_scc1 L_LOOP")
    if o.get("stamp"):
        a(f"s_cmp_eq_u32 s{sNT}, 1")
        a("s_cbranch_scc1 L_st2")
        a("s_memtime s[68:69]")
        a.label("L_st2")
        a("s_memtime s[72:73]")
    a("s_nop 7")
    if not o.get("noepi"):
        epilogue(a, o)
    if o.get("stamp"):
        a(f"s_cmp_eq_u32 s{sNT}, 1")
        a("s_cbranch_scc1 L_st3")
        a("s_memtime s[70:71]")
        a.label("L_st3")
    a(f"v_mov_b32 v{vOUT}, v{vOUT2}")
    a(f"s_sub_u32 s{sNT}, s{sNT}, 1")
    a(f"s_cmp_lg_u32 s{sNT}, 0")
    a("s_cbranch_scc1 L_TILE")
    a("s_waitcnt vmcnt(0) lgkmcnt(0)")
    if o.get("stamp"):
        a("s_memtime s[74:75]")
        a("s_memrealtime s[76:77]")
        a("s_waitcnt lgkmcnt(0)")
        a(f"s_cmp_eq_u32 s2, {o['stamp']-1}")
        a("s_cbranch_scc0 L_END")
        a(f"s_cmp_eq_u32 s{sWAVE}, 0")
        a("s_cbranch_scc0 L_END")
        a("s_mov_b32 s80, s10")
        a("s_and_b32 s81, s11, 0xffff")
        a("s_mov_b32 s82, 256")
        a("s_mov_b32 s83, 0x00020000")
        a("v_mov_b32 v14, 0")
        for n, r in enumerate((66, 68, 70, 72, 74)):
            a(f"s_sub_u32 s84, s{r}, s64")
            a("v_mov_b32 v15, s84")
            a(f"buffer_store_dword v15, v14, s[80:83], 0 offen offset:{4*n}")
        a("s_waitcnt vmcnt(0)")
    a.label("L_END")
    a("s_endpgm")

def kd(a, name, vg, sg, acco):
    a.raw(".p2align 6")
    a.raw(f".amdhsa_kernel {name}")
    a.raw(f"  .amdhsa_next_free_vgpr {vg}")
    a.raw(f"  .amdhsa_next_free_sgpr {sg}")
    a.raw(f"  .amdhsa_accum_offset {acco}")
    a.raw("  .amdhsa_group_segment_fixed_size 0")
    a.raw("  .amdhsa_kernarg_size 40")
    a.raw("  .amdhsa_user_sgpr_count 2")
    a.raw("  .amdhsa_user_sgpr_kernarg_segment_ptr 1")
    a.raw("  .amdhsa_system_sgpr_workgroup_id_x 1")
    a.raw(".end_amdhsa_kernel")

def main():
    out = sys.argv[1]
    o = {}
    for s in sys.argv[2:]:
        k, _, v = s.partition("=")
        o[k] = eval(v) if v else 1
    a = Asm()
    a.raw(HEADER.rstrip())
    a.raw("; @launch kernel=wprep_kernel grid=(320,1,1) block=(128,1,1) lds=0")
    a.raw(f"; @launch kernel={NAME}_kernel grid=(256,1,1) block=(256,1,1) lds={LDS_BYTES}")
    a.raw('.amdgcn_target "amdgcn-amd-amdhsa--gfx950"')
    a.raw(".text")
    gen_main(a, o)
    gen_wprep(a)
    a.raw('.section .rodata,"a"')
    kd(a, NAME + "_kernel", 448, 96, 256)
    kd(a, "wprep_kernel", 72, 32, 72)
    open(out, "w").write(a.text())

main()
```

```python
import sys, math

NAME = "standalone__autoregressive_conv_wavernn__speech"
HEADER = """; Kernarg layout for this problem (40 bytes, ptrs only, base s[0:1]):
"""

class Asm:
    def __init__(self):
        self.l = []
    def __call__(self, s):
        self.l.append("    " + s)
    def label(self, s):
        self.l.append(s + ":")
    def raw(self, s):
        self.l.append(s)
    def text(self):
        return "\n".join(self.l) + "\n"

def f32bits(v):
    import struct
    return struct.unpack("<I", struct.pack("<f", v))[0]

def gen_wprep(a, o):
    a.raw(".globl wprep_kernel")
    a.raw(".p2align 8")
    a.raw(".type wprep_kernel,@function")
    a.label("wprep_kernel")
    a(f"s_cmp_ge_u32 s2, {0 if o.get('emptyprep') else 320}")
    a("s_cbranch_scc1 WP_END")
    a("s_load_dwordx2 s[4:5], s[0:1], 8")
    a("s_load_dwordx2 s[6:7], s[0:1], 32")
    a("s_lshr_b32 s3, s2, 6")
    a("s_and_b32 s16, s2, 63")
    a("s_lshl_b32 s17, s2, 14")
    a("v_lshlrev_b32 v1, 4, v0")
    a("v_bfe_u32 v2, v0, 2, 4")
    a("s_mov_b32 s18, 327680")
    a("v_mul_lo_u32 v2, v2, s18")
    a("v_lshrrev_b32 v3, 6, v0")
    a("v_lshlrev_b32 v3, 11, v3")
    a("v_add_u32 v2, v2, v3")
    a("v_and_b32 v3, 3, v0")
    a("v_lshlrev_b32 v3, 6, v3")
    a("v_add_u32 v2, v2, v3")
    a("s_lshr_b32 s19, s16, 2")
    a("s_mul_i32 s19, s19, 5")
    a("s_add_u32 s19, s19, s3")
    a("s_lshl_b32 s19, s19, 12")
    a("s_and_b32 s20, s16, 3")
    a("s_lshl_b32 s20, s20, 8")
    a("s_add_u32 s19, s19, s20")
    a("s_mov_b32 s21, 0x05040100")
    a("s_mov_b32 s22, 0x07060302")
    a("s_waitcnt lgkmcnt(0)")
    a("s_mov_b32 s8, s4")
    a("s_and_b32 s9, s5, 0xffff")
    a("s_mov_b32 s10, 5242880")
    a("s_mov_b32 s11, 0x00020000")
    a("s_mov_b32 s12, s6")
    a("s_and_b32 s13, s7, 0xffff")
    a("s_mov_b32 s14, 5242880")
    a("s_mov_b32 s15, 0x00020000")
    for m in range(8):
        if m % 2 == 0 and m:
            a("s_add_u32 s17, s17, 4096")
        a(f"buffer_load_dwordx4 v[{8+4*m}:{11+4*m}], v1, s[8:11], s17 offen offset:{(m%2)*2048}")
    for n in range(4):
        a(f"s_waitcnt vmcnt({6-2*n})")
        for p in range(4):
            lo = 8 + 4 * (2 * n) + p
            hi = 8 + 4 * (2 * n + 1) + p
            a(f"v_perm_b32 v{40+4*(2*p)+n}, v{hi}, v{lo}, s21")
            a(f"v_perm_b32 v{40+4*(2*p+1)+n}, v{hi}, v{lo}, s22")
    for c in range(8):
        h, r = c >> 2, c & 3
        a(f"buffer_store_dwordx4 v[{40+4*c}:{43+4*c}], v2, s[12:15], s19 offen offset:{h*1024+r*16}")
    a("s_waitcnt vmcnt(0)")
    a.label("WP_END")
    a("s_endpgm")

BLK = 1056
CH = 17 * BLK
ZOFF = 2 * CH
LDS_BYTES = ZOFF + 256
WSLICE = 327680

S_X, S_W, S_O = 16, 20, 24
sWAVE, sET, sKC, sWOFF, sDSLOT, sDBASE, sRSLOT = 28, 29, 30, 31, 32, 33, 34
sXB = 36
sXB2 = 41
sNT, sDX, sWB = 46, 47, 35
sC1, sC2, sONE, sCL = 48, 50, 52, 54
sT0, sT1, sT2, sT3 = 56, 57, 58, 59
sSO = 60
vWOFF, vXOFF, vHOFF, vAM, vAH, vBM, vBH, vMK, vBH2, vMK2, vOUT, vOUT2 = 1, 2, 3, 4, 5, 6, 7, 8, 9, 10, 11, 12
vT = 14
vOQ = 24
NMISC = 32

def acc(eb, j):
    idx = j * 4 + eb
    if idx < 56:
        b = NMISC + idx * 4
        return ("v", b)
    return ("a", (idx - 56) * 4)
def rng(t, b, n=4):
    return f"{t}[{b}:{b+n-1}]"
def X(s):
    return rng("a", 32 + 4 * s)
def W(i, eb):
    return rng("a", 112 + 4 * (i * 4 + eb))

def rowbytes(a, vU, vD, vtmp):
    a(f"v_lshlrev_b32 v{vD}, 1, v{vU}")
    for thr, adj in ((8000, 15999), (16000, 1), (24000, 15999)):
        a(f"v_cmp_le_u32 vcc, {thr}, v{vU}")
        a(f"v_mov_b32 v{vtmp}, {adj}")
        a("s_nop 1")
        a(f"v_cndmask_b32 v{vtmp}, 0, v{vtmp}, vcc")
        a(f"v_sub_u32 v{vD}, v{vD}, v{vtmp}")
    a(f"v_lshlrev_b32 v{vD}, 10, v{vD}")

def tile_setup(a, sTT, sxb, vbh, vmk, vout):
    a(f"s_lshl_b32 s{sT0}, s{sTT}, 8")
    a("v_lshlrev_b32 v14, 4, v13")
    a(f"v_add_u32 v14, s{sT0}, v14")
    a("v_subrev_u32 v14, 16, v14")
    a("v_max_i32 v14, 0, v14")
    rowbytes(a, 14, 15, 16)
    a(f"s_lshl_b32 s{sT1}, s{sWAVE}, 2")
    a(f"s_add_u32 s{sT1}, s{sT1}, 1")
    a("s_nop 1")
    a(f"v_readlane_b32 s{sxb+4}, v15, 0")
    for m in range(4):
        a(f"v_readlane_b32 s{sxb+m}, v15, s{sT1}")
        a(f"s_add_u32 s{sT1}, s{sT1}, 1")
    a("v_and_b32 v17, 15, v13")
    a("v_lshlrev_b32 v14, 4, v17")
    a(f"v_add_u32 v14, s{sT0}, v14")
    rowbytes(a, 14, 15, 16)
    a("v_lshrrev_b32 v18, 4, v13")
    a("v_lshlrev_b32 v16, 4, v18")
    a("v_add_u32 v15, v15, v16")
    a(f"s_lshl_b32 s{sT1}, s{sET}, 8")
    a(f"s_lshl_b32 s{sT2}, s{sWAVE}, 6")
    a(f"s_add_u32 s{sT1}, s{sT1}, s{sT2}")
    a(f"v_add_u32 v{vout}, s{sT1}, v15")
    a(f"v_mov_b32 v{vmk}, 1")
    for thr in (0, 8000, 16000, 24000):
        a(f"v_cmp_ne_u32 vcc, {thr}, v14")
        a("s_nop 1")
        a(f"v_cndmask_b32 v{vmk}, 0, v{vmk}, vcc")
    a(f"v_mul_u32_u24 v15, {BLK}, v17")
    a(f"v_add_u32 v15, {12*64}, v15")
    a(f"v_mov_b32 v19, {ZOFF}")
    a(f"v_cmp_eq_u32 vcc, 1, v{vmk}")
    a("s_nop 1")
    a("v_cndmask_b32 v15, v19, v15, vcc")
    a(f"v_add_u32 v{vbh}, v15, v16")

def dma(a, m):
    if m < 4:
        return [f"s_add_u32 m0, s{sDBASE}, {m*BLK}"], [f"buffer_load_dwordx4 v{vXOFF}, s[{S_X}:{S_X+3}], s{sXB+m} offen lds"]
    return [f"s_mov_b32 m0, s{sDSLOT}"], [f"buffer_load_dwordx4 v{vHOFF}, s[{S_X}:{S_X+3}], s{sXB+4} offen lds"]

def wload(i, eb):
    return f"buffer_load_dwordx4 {W(i, eb)}, v{vWOFF}, s[{S_W}:{S_W+3}], s{sWOFF} offen offset:{eb*1024}"

def xread(s):
    if s < 4:
        return f"ds_read_b128 {X(s)}, v{vAH} offset:{s*64}"
    return f"ds_read_b128 {X(s)}, v{vAM} offset:{(s-4)*64}"

def body(a, first, o, tag):
    pre = {}
    post = {}
    def P(d, k, *ins):
        d.setdefault(k, []).extend(ins)
    for i in range(5):
        b = i * 64
        if i == 0:
            P(pre, b, "s_waitcnt vmcnt(17) lgkmcnt(4)")
        elif i == 1:
            P(pre, b, "s_waitcnt vmcnt(17) lgkmcnt(0)")
        elif i < 4:
            P(pre, b, "s_waitcnt vmcnt(17)")
        else:
            P(pre, b, "s_waitcnt vmcnt(12)")
            if not o.get("nobar"):
                P(pre, b, "s_barrier")
        if i == 1 and o.get("trace"):
            P(pre, b, "v_mov_b32 v22, s86", "v_mov_b32 v23, s88",
              "buffer_store_dwordx2 v[22:23], v13, s[80:83], s90 offen", "s_add_u32 s90, s90, 8",
              "s_memtime s[86:87]", "s_memrealtime s[88:89]")
        wi = (i + 4) % 5
        ws = o.get("wslots", (5, 13, 21, 29))
        for eb in range(4):
            if not o.get("now"):
                P(post, b + ws[eb], wload(wi, eb))
        P(post, b + ws[3] + 1, f"s_add_u32 s{sWOFF}, s{sWOFF}, 4096")
        if i == 0:
            P(post, b + ws[3] + 2, f"s_cmp_eq_u32 s{sWOFF}, {WSLICE}", f"s_cselect_b32 s{sWOFF}, 0, s{sWOFF}")
    b = 3 * 64
    if not first:
        P(post, b + 40, f"s_cmp_eq_u32 s{sKC}, 15", f"s_cbranch_scc0 L_nosw_{tag}",
          f"v_mov_b32 v{vBH}, v{vBH2}", f"v_mov_b32 v{vMK}, v{vMK2}", f"L_nosw_{tag}:")
    P(post, b + 44, f"v_add_u32 v{vAM}, s{sRSLOT}, v{vBM}")
    P(post, b + 45, f"v_mad_u32_u24 v{vAH}, v{vMK}, s{sRSLOT}, v{vBH}")
    b = 4 * 64
    if not o.get("nox"):
        for s in range(4):
            P(post, b + s, xread(s))
        for j in range(16):
            P(post, b + 4 * j + 3, xread(j + 4))
    dsl = o.get("dslots", (34, 38, 42, 46, 50))
    for m in range(5):
        g0, g1 = dma(a, m)
        P(post, b + dsl[m] - 1, *g0)
        if not o.get("nodma"):
            P(post, b + dsl[m], *g1)
    k = b + dsl[4] + 2
    P(post, k, f"v_add_u32 v{vXOFF}, s{sDX}, v{vXOFF}", f"v_add_u32 v{vHOFF}, s{sDX}, v{vHOFF}")
    P(post, k + 1, f"s_xor_b32 s{sDSLOT}, s{sDSLOT}, {CH}", f"s_xor_b32 s{sRSLOT}, s{sRSLOT}, {CH}")
    P(post, k + 2, f"s_add_u32 s{sDBASE}, s{sDSLOT}, s{sWB}")
    if not first:
        P(post, k + 3, f"s_cmp_eq_u32 s{sKC}, 13", f"s_cbranch_scc0 L_nodsw_{tag}",
          *[f"s_mov_b32 s{sXB+m}, s{sXB2+m}" for m in range(5)], f"L_nodsw_{tag}:")
        P(post, k + 4, f"s_cmp_eq_u32 s{sKC}, 12", f"s_cselect_b32 s{sDX}, s{sT3}, 64")
    for i in range(5):
        for j in range(16):
            for eb in range(4):
                sl = i * 64 + j * 4 + eb
                for ins in pre.get(sl, []):
                    a(ins)
                t, b0 = acc(eb, j)
                c = "0" if (first and i == 0) else rng(t, b0)
                a(f"v_mfma_f32_16x16x32_bf16 {rng(t, b0)}, {W(i, eb)}, {X(j + i)}, {c}")
                for ins in post.get(sl, []):
                    if ins.endswith(":"):
                        a.label(ins[:-1])
                    else:
                        a(ins)

def epilogue(a, o):
    a(f"s_mov_b32 s{sSO}, 0")
    for j in range(16):
        regs = []
        for eb in range(4):
            t, b = acc(eb, j)
            if t == "a":
                _, nb = acc(eb, j - 14)
                for r in range(4):
                    a(f"v_accvgpr_read_b32 v{nb+r}, a{b+r}")
                b = nb
            regs.append(b)
        prs = []
        for h in range(2):
            for p in range(2):
                prs.append((regs[h] + 2 * p, regs[2 + h] + 2 * p, vT + 2 * (2 * h + p)))
        oq = vOQ + 4 * (j & 1)
        P2 = lambda r: f"v[{r}:{r+1}]"
        for f, g, t in prs:
            a(f"v_pk_mul_f32 {P2(f)}, {P2(f)}, s[{sC1}:{sC1+1}]")
        for f, g, t in prs:
            a(f"v_pk_mul_f32 {P2(g)}, {P2(g)}, s[{sC2}:{sC2+1}]")
        for f, g, t in prs:
            a(f"v_min_f32 v{f}, s{sCL}, v{f}")
            a(f"v_min_f32 v{f+1}, s{sCL}, v{f+1}")
        for f, g, t in prs:
            a(f"v_exp_f32 v{g}, v{g}")
            a(f"v_exp_f32 v{g+1}, v{g+1}")
        for f, g, t in prs:
            a(f"v_exp_f32 v{f}, v{f}")
            a(f"v_exp_f32 v{f+1}, v{f+1}")
        for f, g, t in prs:
            a(f"v_pk_add_f32 {P2(t)}, {P2(f)}, s[{sONE}:{sONE+1}]")
        for f, g, t in prs:
            a(f"v_pk_fma_f32 {P2(g)}, {P2(t)}, {P2(g)}, {P2(t)}")
        for f, g, t in prs:
            a(f"v_rcp_f32 v{g}, v{g}")
            a(f"v_rcp_f32 v{g+1}, v{g+1}")
        for f, g, t in prs:
            a(f"v_pk_add_f32 {P2(f)}, {P2(f)}, s[{sONE}:{sONE+1}] neg_lo:[0,1] neg_hi:[0,1]")
        for f, g, t in prs:
            a(f"v_pk_mul_f32 {P2(f)}, {P2(f)}, {P2(g)}")
        for n, (f, g, t) in enumerate(prs):
            a(f"v_cvt_pk_bf16_f32 v{oq+n}, v{f}, v{f+1}")
        a(f"buffer_store_dwordx4 v[{oq}:{oq+3}], v{vOUT}, s[{S_O}:{S_O+3}], s{sSO} offen offset:{(j&1)*2048}")
        if j & 1:
            a(f"s_add_u32 s{sSO}, s{sSO}, 4096")

def gen_main(a, o):
    K = NAME + "_kernel"
    a.raw(f".globl {K}")
    a.raw(".p2align 8")
    a.raw(f".type {K},@function")
    a.label(K)
    a(f"s_cmp_ge_u32 s2, {0 if o.get('emptymain') else 256}")
    a("s_cbranch_scc1 L_END")
    a("s_load_dwordx8 s[4:11], s[0:1], 0")
    a("s_load_dwordx2 s[12:13], s[0:1], 32")
    if o.get("stamp"):
        a("s_memtime s[64:65]")
        a("s_memrealtime s[78:79]")
    a("v_lshrrev_b32 v1, 6, v0")
    a("v_and_b32 v13, 63, v0")
    a("s_nop 0")
    a(f"v_readfirstlane_b32 s{sWAVE}, v1")
    a("s_and_b32 s61, s2, 7")
    a("s_lshr_b32 s62, s2, 3")
    a("s_and_b32 s63, s61, 1")
    a("s_lshl_b32 s63, s63, 1")
    a(f"s_and_b32 s{sET}, s62, 1")
    a(f"s_add_u32 s{sET}, s{sET}, s63")
    a("s_lshr_b32 s61, s61, 1")
    a("s_lshr_b32 s62, s62, 1")
    a("s_mul_i32 s63, s61, 31")
    a("s_cmp_eq_u32 s61, 0")
    a(f"s_cselect_b32 s{sT3}, 0, 1")
    a(f"s_add_u32 s63, s63, s{sT3}")
    a("s_add_u32 s63, s63, s62")
    a(f"s_sub_u32 s{sT3}, 16, s{sT3}")
    a(f"s_cmp_lt_u32 s62, s{sT3}")
    a(f"s_cselect_b32 s{sNT}, 2, 1")
    a("s_cselect_b32 s62, 16, 0")
    a("s_add_u32 s62, s63, s62")
    tile_setup(a, 63, sXB, vBH, vMK, vOUT)
    tile_setup(a, 62, sXB2, vBH2, vMK2, vOUT2)
    for r, v in ((sC1, 2 * math.log2(math.e)), (sC2, -math.log2(math.e)), (sONE, 1.0)):
        a(f"s_mov_b32 s{r}, {f32bits(v):#x}")
        a(f"s_mov_b32 s{r+1}, {f32bits(v):#x}")
    a(f"s_mov_b32 s{sCL}, {f32bits(40.0):#x}")
    a(f"s_mov_b32 s{sT3}, -960")
    a(f"s_mov_b32 s{sDX}, 64")
    a(f"v_lshlrev_b32 v{vWOFF}, 4, v13")
    a("v_lshrrev_b32 v14, 2, v13")
    a("v_lshlrev_b32 v14, 11, v14")
    a("v_and_b32 v15, 3, v13")
    a("v_lshlrev_b32 v15, 4, v15")
    a(f"v_add_u32 v{vXOFF}, v14, v15")
    a("v_mov_b32 v14, 0x70000000")
    a("v_cmp_le_u32 vcc, 48, v13")
    a("s_nop 1")
    a(f"v_cndmask_b32 v{vHOFF}, v14, v{vXOFF}, vcc")
    a("v_and_b32 v14, 15, v13")
    a("v_add_u32 v14, 1, v14")
    a(f"v_mul_u32_u24 v14, {BLK}, v14")
    a("v_lshrrev_b32 v15, 4, v13")
    a("v_lshlrev_b32 v15, 4, v15")
    a(f"v_add_u32 v{vBM}, v14, v15")
    a(f"s_lshl_b32 s{sWB}, s{sWAVE}, 2")
    a(f"s_add_u32 s{sWB}, s{sWB}, 1")
    a(f"s_mul_i32 s{sWB}, s{sWB}, {BLK}")
    a("v_lshlrev_b32 v14, 2, v13")
    a("v_mov_b32 v15, 0")
    a(f"ds_write_b32 v14, v15 offset:{ZOFF}")
    a("s_waitcnt lgkmcnt(0)")
    a(f"s_mov_b32 s{S_X}, s4")
    a(f"s_and_b32 s{S_X+1}, s5, 0xffff")
    a(f"s_mov_b32 s{S_X+2}, 32768000")
    a(f"s_mov_b32 s{S_X+3}, 0x00020000")
    a(f"s_mov_b32 s{S_O}, s8")
    a(f"s_and_b32 s{S_O+1}, s9, 0xffff")
    a(f"s_mov_b32 s{S_O+2}, 32768000")
    a(f"s_mov_b32 s{S_O+3}, 0x00020000")
    a(f"s_lshl_b32 s{sT0}, s{sET}, 2")
    a(f"s_add_u32 s{sT0}, s{sT0}, s{sWAVE}")
    a(f"s_mul_i32 s{sT0}, s{sT0}, {WSLICE}")
    a(f"s_add_u32 s{S_W}, s12, s{sT0}")
    a(f"s_addc_u32 s{S_W+1}, s13, 0")
    a(f"s_and_b32 s{S_W+1}, s{S_W+1}, 0xffff")
    a(f"s_mov_b32 s{S_W+2}, {WSLICE}")
    a(f"s_mov_b32 s{S_W+3}, 0x00020000")
    if o.get("trace"):
        a("s_add_u32 s80, s12, 0x800000")
        a("s_addc_u32 s81, s13, 0")
        a("s_and_b32 s81, s81, 0xffff")
        a("s_mov_b32 s82, 0x100000")
        a("s_mov_b32 s83, 0x00020000")
        a("s_lshl_b32 s90, s2, 2")
        a(f"s_add_u32 s90, s90, s{sWAVE}")
        a("s_lshl_b32 s90, s90, 9")
        a("v_mov_b32 v13, 0")
        a("s_mov_b32 s86, s64")
        a("s_mov_b32 s88, s78")
    a(f"s_mov_b32 s{sWOFF}, 0")
    for c in range(2):
        a(f"s_mov_b32 s{sDSLOT}, {c*CH}")
        a(f"s_add_u32 s{sDBASE}, s{sDSLOT}, s{sWB}")
        for m in range(5):
            g0, g1 = dma(a, m)
            for ins in g0: a(ins)
            a("s_nop 0")
            for ins in g1: a(ins)
        a(f"v_add_u32 v{vXOFF}, 64, v{vXOFF}")
        a(f"v_add_u32 v{vHOFF}, 64, v{vHOFF}")
        if c == 0:
            for i in range(4):
                for eb in range(4):
                    a(wload(i, eb))
                a(f"s_add_u32 s{sWOFF}, s{sWOFF}, 4096")
    a(f"s_mov_b32 s{sDSLOT}, 0")
    a(f"s_add_u32 s{sDBASE}, s{sDSLOT}, s{sWB}")
    a(f"s_mov_b32 s{sRSLOT}, {CH}")
    a(f"v_mov_b32 v{vAM}, v{vBM}")
    a(f"v_mov_b32 v{vAH}, v{vBH}")
    a("s_waitcnt vmcnt(21)")
    a("s_barrier")
    for s in range(20):
        a(xread(s))
    if o.get("stamp"):
        a("s_memtime s[66:67]")
    a.label("L_TILE")
    a(f"s_mov_b32 s{sKC}, 0")
    body(a, True, o, "f")
    a(f"s_mov_b32 s{sKC}, 1")
    a.raw(".p2align 6")
    a.label("L_LOOP")
    body(a, False, o, "l")
    a(f"s_add_u32 s{sKC}, s{sKC}, 1")
    a(f"s_cmp_lt_u32 s{sKC}, 16")
    a("s_cbranch_scc1 L_LOOP")
    if o.get("stamp"):
        a(f"s_cmp_eq_u32 s{sNT}, 1")
        a("s_cbranch_scc1 L_st2")
        a("s_memtime s[68:69]")
        a.label("L_st2")
        a("s_memtime s[72:73]")
    a("s_nop 7")
    if not o.get("noepi"):
        epilogue(a, o)
    if o.get("stamp"):
        a(f"s_cmp_eq_u32 s{sNT}, 1")
        a("s_cbranch_scc1 L_st3")
        a("s_memtime s[70:71]")
        a.label("L_st3")
    a(f"v_mov_b32 v{vOUT}, v{vOUT2}")
    a(f"s_sub_u32 s{sNT}, s{sNT}, 1")
    a(f"s_cmp_lg_u32 s{sNT}, 0")
    a("s_cbranch_scc1 L_TILE")
    a("s_waitcnt vmcnt(0) lgkmcnt(0)")
    if o.get("trace"):
        for ins in ("v_mov_b32 v22, s86", "v_mov_b32 v23, s88",
              "buffer_store_dwordx2 v[22:23], v13, s[80:83], s90 offen", "s_add_u32 s90, s90, 8",
              "s_memtime s[86:87]", "s_memrealtime s[88:89]", "s_waitcnt lgkmcnt(0)",
              "v_mov_b32 v22, s86", "v_mov_b32 v23, s88",
              "buffer_store_dwordx2 v[22:23], v13, s[80:83], s90 offen", "s_waitcnt vmcnt(0)"):
            a(ins)
        a("s_branch L_END")
    if o.get("stamp"):
        a("s_memtime s[74:75]")
        a("s_memrealtime s[76:77]")
        a("s_waitcnt lgkmcnt(0)")
        a(f"s_cmp_eq_u32 s2, {o['stamp']-1}")
        a("s_cbranch_scc0 L_END")
        a(f"s_cmp_eq_u32 s{sWAVE}, 0")
        a("s_cbranch_scc0 L_END")
        a("s_mov_b32 s80, s10")
        a("s_and_b32 s81, s11, 0xffff")
        a("s_mov_b32 s82, 256")
        a("s_mov_b32 s83, 0x00020000")
        a("v_mov_b32 v14, 0")
        for n, r in enumerate((66, 68, 70, 72, 74)):
            a(f"s_sub_u32 s84, s{r}, s64")
            a("v_mov_b32 v15, s84")
            a(f"buffer_store_dword v15, v14, s[80:83], 0 offen offset:{4*n}")
        a("s_sub_u32 s84, s76, s78")
        a("v_mov_b32 v15, s84")
        a("buffer_store_dword v15, v14, s[80:83], 0 offen offset:20")
        a("s_waitcnt vmcnt(0)")
    a.label("L_END")
    a("s_endpgm")

def kd(a, name, vg, sg, acco):
    a.raw(".p2align 6")
    a.raw(f".amdhsa_kernel {name}")
    a.raw(f"  .amdhsa_next_free_vgpr {vg}")
    a.raw(f"  .amdhsa_next_free_sgpr {sg}")
    a.raw(f"  .amdhsa_accum_offset {acco}")
    a.raw("  .amdhsa_group_segment_fixed_size 0")
    a.raw("  .amdhsa_kernarg_size 40")
    a.raw("  .amdhsa_user_sgpr_count 2")
    a.raw("  .amdhsa_user_sgpr_kernarg_segment_ptr 1")
    a.raw("  .amdhsa_system_sgpr_workgroup_id_x 1")
    a.raw(".end_amdhsa_kernel")

def main():
    out = sys.argv[1]
    o = {}
    for s in sys.argv[2:]:
        k, _, v = s.partition("=")
        o[k] = eval(v) if v else 1
    a = Asm()
    a.raw(HEADER.rstrip())
    if not o.get("noprep"):
        a.raw("; @launch kernel=wprep_kernel grid=(320,1,1) block=(128,1,1) lds=0")
    for _ in range(o.get("nempty", 0)):
        a.raw("; @launch kernel=nop_kernel grid=(256,1,1) block=(64,1,1) lds=0")
    a.raw(f"; @launch kernel={NAME}_kernel grid=(256,1,1) block=(256,1,1) lds={LDS_BYTES}")
    a.raw('.amdgcn_target "amdgcn-amd-amdhsa--gfx950"')
    a.raw(".text")
    gen_main(a, o)
    gen_wprep(a, o)
    if o.get("nempty"):
        a.raw(".globl nop_kernel\n.p2align 8\n.type nop_kernel,@function\nnop_kernel:\n    s_endpgm")
    a.raw('.section .rodata,"a"')
    if o.get("nempty"):
        kd(a, "nop_kernel", 8, 16, 8)
    kd(a, NAME + "_kernel", 448, 96, 256)
    kd(a, "wprep_kernel", 72, 32, 72)
    open(out, "w").write(a.text())

main()
```

```python
import sys, math

NAME = "standalone__autoregressive_conv_wavernn__speech"
HEADER = """; Kernarg layout for this problem (40 bytes, ptrs only, base s[0:1]):
;   offset  24: d_debug   256 bytes
; Two launches: (1) wprep re-lays w out in MFMA A-fragment order into d_ws,
"""

class Asm:
    def __init__(self):
        self.l = []
    def __call__(self, s):
        self.l.append("    " + s)
    def label(self, s):
        self.l.append(s + ":")
    def raw(self, s):
        self.l.append(s)
    def text(self):
        return "\n".join(self.l) + "\n"

def f32bits(v):
    import struct
    return struct.unpack("<I", struct.pack("<f", v))[0]

def gen_wprep(a, o):
    a.raw(".globl wprep_kernel")
    a.raw(".p2align 8")
    a.raw(".type wprep_kernel,@function")
    a.label("wprep_kernel")
    a(f"s_cmp_ge_u32 s2, {0 if o.get('emptyprep') else 320}")
    a("s_cbranch_scc1 WP_END")
    a("s_load_dwordx2 s[4:5], s[0:1], 8")
    a("s_load_dwordx2 s[6:7], s[0:1], 32")
    a("s_lshr_b32 s3, s2, 6")
    a("s_and_b32 s16, s2, 63")
    a("s_lshl_b32 s17, s2, 14")
    a("v_lshlrev_b32 v1, 4, v0")
    a("v_bfe_u32 v2, v0, 2, 4")
    a("s_mov_b32 s18, 327680")
    a("v_mul_lo_u32 v2, v2, s18")
    a("v_lshrrev_b32 v3, 6, v0")
    a("v_lshlrev_b32 v3, 11, v3")
    a("v_add_u32 v2, v2, v3")
    a("v_and_b32 v3, 3, v0")
    a("v_lshlrev_b32 v3, 6, v3")
    a("v_add_u32 v2, v2, v3")
    a("s_lshr_b32 s19, s16, 2")
    a("s_mul_i32 s19, s19, 5")
    a("s_add_u32 s19, s19, s3")
    a("s_lshl_b32 s19, s19, 12")
    a("s_and_b32 s20, s16, 3")
    a("s_lshl_b32 s20, s20, 8")
    a("s_add_u32 s19, s19, s20")
    a("s_mov_b32 s21, 0x05040100")
    a("s_mov_b32 s22, 0x07060302")
    a("s_waitcnt lgkmcnt(0)")
    a("s_mov_b32 s8, s4")
    a("s_and_b32 s9, s5, 0xffff")
    a("s_mov_b32 s10, 5242880")
    a("s_mov_b32 s11, 0x00020000")
    a("s_mov_b32 s12, s6")
    a("s_and_b32 s13, s7, 0xffff")
    a("s_mov_b32 s14, 5242880")
    a("s_mov_b32 s15, 0x00020000")
    for m in range(8):
        if m % 2 == 0 and m:
            a("s_add_u32 s17, s17, 4096")
        a(f"buffer_load_dwordx4 v[{8+4*m}:{11+4*m}], v1, s[8:11], s17 offen offset:{(m%2)*2048}")
    for n in range(4):
        a(f"s_waitcnt vmcnt({6-2*n})")
        for p in range(4):
            lo = 8 + 4 * (2 * n) + p
            hi = 8 + 4 * (2 * n + 1) + p
            a(f"v_perm_b32 v{40+4*(2*p)+n}, v{hi}, v{lo}, s21")
            a(f"v_perm_b32 v{40+4*(2*p+1)+n}, v{hi}, v{lo}, s22")
    for c in range(8):
        h, r = c >> 2, c & 3
        a(f"buffer_store_dwordx4 v[{40+4*c}:{43+4*c}], v2, s[12:15], s19 offen offset:{h*1024+r*16}")
    a("s_waitcnt vmcnt(0)")
    a.label("WP_END")
    a("s_endpgm")

BLK = 1056
CH = 17 * BLK
ZOFF = 2 * CH
LDS_BYTES = ZOFF + 256
WSLICE = 327680

S_X, S_W, S_O = 16, 20, 24
sWAVE, sET, sKC, sWOFF, sDSLOT, sDBASE, sRSLOT = 28, 29, 30, 31, 32, 33, 34
sXB = 36
sXB2 = 41
sNT, sDX, sWB = 46, 47, 35
sC1, sC2, sONE, sCL = 48, 50, 52, 54
sT0, sT1, sT2, sT3 = 56, 57, 58, 59
sSO = 60
vWOFF, vXOFF, vHOFF, vAM, vAH, vBM, vBH, vMK, vBH2, vMK2, vOUT, vOUT2 = 1, 2, 3, 4, 5, 6, 7, 8, 9, 10, 11, 12
vT = 14
vOQ = 24
NMISC = 32

def acc(eb, j):
    idx = j * 4 + eb
    if idx < 56:
        b = NMISC + idx * 4
        return ("v", b)
    return ("a", (idx - 56) * 4)
def rng(t, b, n=4):
    return f"{t}[{b}:{b+n-1}]"
def X(s):
    return rng("a", 32 + 4 * s)
def W(i, eb):
    return rng("a", 112 + 4 * (i * 4 + eb))

def rowbytes(a, vU, vD, vtmp):
    a(f"v_lshlrev_b32 v{vD}, 1, v{vU}")
    for thr, adj in ((8000, 15999), (16000, 1), (24000, 15999)):
        a(f"v_cmp_le_u32 vcc, {thr}, v{vU}")
        a(f"v_mov_b32 v{vtmp}, {adj}")
        a("s_nop 1")
        a(f"v_cndmask_b32 v{vtmp}, 0, v{vtmp}, vcc")
        a(f"v_sub_u32 v{vD}, v{vD}, v{vtmp}")
    a(f"v_lshlrev_b32 v{vD}, 10, v{vD}")

def tile_setup(a, sTT, sxb, vbh, vmk, vout):
    a(f"s_lshl_b32 s{sT0}, s{sTT}, 8")
    a("v_lshlrev_b32 v14, 4, v13")
    a(f"v_add_u32 v14, s{sT0}, v14")
    a("v_subrev_u32 v14, 16, v14")
    a("v_max_i32 v14, 0, v14")
    rowbytes(a, 14, 15, 16)
    a(f"s_lshl_b32 s{sT1}, s{sWAVE}, 2")
    a(f"s_add_u32 s{sT1}, s{sT1}, 1")
    a("s_nop 1")
    a(f"v_readlane_b32 s{sxb+4}, v15, 0")
    for m in range(4):
        a(f"v_readlane_b32 s{sxb+m}, v15, s{sT1}")
        a(f"s_add_u32 s{sT1}, s{sT1}, 1")
    a("v_and_b32 v17, 15, v13")
    a("v_lshlrev_b32 v14, 4, v17")
    a(f"v_add_u32 v14, s{sT0}, v14")
    rowbytes(a, 14, 15, 16)
    a("v_lshrrev_b32 v18, 4, v13")
    a("v_lshlrev_b32 v16, 4, v18")
    a("v_add_u32 v15, v15, v16")
    a(f"s_lshl_b32 s{sT1}, s{sET}, 8")
    a(f"s_lshl_b32 s{sT2}, s{sWAVE}, 6")
    a(f"s_add_u32 s{sT1}, s{sT1}, s{sT2}")
    a(f"v_add_u32 v{vout}, s{sT1}, v15")
    a(f"v_mov_b32 v{vmk}, 1")
    for thr in (0, 8000, 16000, 24000):
        a(f"v_cmp_ne_u32 vcc, {thr}, v14")
        a("s_nop 1")
        a(f"v_cndmask_b32 v{vmk}, 0, v{vmk}, vcc")
    a(f"v_mul_u32_u24 v15, {BLK}, v17")
    a(f"v_add_u32 v15, {12*64}, v15")
    a(f"v_mov_b32 v19, {ZOFF}")
    a(f"v_cmp_eq_u32 vcc, 1, v{vmk}")
    a("s_nop 1")
    a("v_cndmask_b32 v15, v19, v15, vcc")
    a(f"v_add_u32 v{vbh}, v15, v16")

def dma(a, m):
    if m < 4:
        return [f"s_add_u32 m0, s{sDBASE}, {m*BLK}"], [f"buffer_load_dwordx4 v{vXOFF}, s[{S_X}:{S_X+3}], s{sXB+m} offen lds"]
    return [f"s_mov_b32 m0, s{sDSLOT}"], [f"buffer_load_dwordx4 v{vHOFF}, s[{S_X}:{S_X+3}], s{sXB+4} offen lds"]

def wload(i, eb):
    return f"buffer_load_dwordx4 {W(i, eb)}, v{vWOFF}, s[{S_W}:{S_W+3}], s{sWOFF} offen offset:{eb*1024}"

def xread(s):
    if s < 4:
        return f"ds_read_b128 {X(s)}, v{vAH} offset:{s*64}"
    return f"ds_read_b128 {X(s)}, v{vAM} offset:{(s-4)*64}"

def body(a, first, o, tag):
    pre = {}
    post = {}
    def P(d, k, *ins):
        d.setdefault(k, []).extend(ins)
    for i in range(5):
        b = i * 64
        if i == 0:
            P(pre, b, "s_waitcnt vmcnt(17) lgkmcnt(4)")
        elif i == 1:
            P(pre, b, "s_waitcnt vmcnt(17) lgkmcnt(0)")
        elif i < 4:
            P(pre, b, "s_waitcnt vmcnt(17)")
        else:
            P(pre, b, "s_waitcnt vmcnt(12)")
            if not o.get("nobar"):
                P(pre, b, "s_barrier")
        if i == 1 and o.get("trace"):
            P(pre, b, "v_mov_b32 v22, s86", "v_mov_b32 v23, s88",
              "buffer_store_dwordx2 v[22:23], v13, s[80:83], s90 offen", "s_add_u32 s90, s90, 8",
              "s_memtime s[86:87]", "s_memrealtime s[88:89]")
        wi = (i + 4) % 5
        ws = o.get("wslots", (5, 13, 21, 29))
        for eb in range(4):
            if not o.get("now"):
                P(post, b + ws[eb], wload(wi, eb))
        P(post, b + ws[3] + 1, f"s_add_u32 s{sWOFF}, s{sWOFF}, 4096")
        if i == 0:
            P(post, b + ws[3] + 2, f"s_cmp_eq_u32 s{sWOFF}, {WSLICE}", f"s_cselect_b32 s{sWOFF}, 0, s{sWOFF}")
    b = 3 * 64
    if not first:
        P(post, b + 40, f"s_cmp_eq_u32 s{sKC}, 15", f"s_cbranch_scc0 L_nosw_{tag}",
          f"v_mov_b32 v{vBH}, v{vBH2}", f"v_mov_b32 v{vMK}, v{vMK2}", f"L_nosw_{tag}:")
    P(post, b + 44, f"v_add_u32 v{vAM}, s{sRSLOT}, v{vBM}")
    P(post, b + 45, f"v_mad_u32_u24 v{vAH}, v{vMK}, s{sRSLOT}, v{vBH}")
    b = 4 * 64
    if not o.get("nox"):
        for s in range(4):
            P(post, b + s, xread(s))
        for j in range(16):
            P(post, b + 4 * j + 3, xread(j + 4))
    dsl = o.get("dslots", (34, 38, 42, 46, 50))
    for m in range(5):
        g0, g1 = dma(a, m)
        P(post, b + dsl[m] - 1, *g0)
        if not o.get("nodma"):
            P(post, b + dsl[m], *g1)
    k = b + dsl[4] + 2
    P(post, k, f"v_add_u32 v{vXOFF}, s{sDX}, v{vXOFF}", f"v_add_u32 v{vHOFF}, s{sDX}, v{vHOFF}")
    P(post, k + 1, f"s_xor_b32 s{sDSLOT}, s{sDSLOT}, {CH}", f"s_xor_b32 s{sRSLOT}, s{sRSLOT}, {CH}")
    P(post, k + 2, f"s_add_u32 s{sDBASE}, s{sDSLOT}, s{sWB}")
    if not first:
        P(post, k + 3, f"s_cmp_eq_u32 s{sKC}, 13", f"s_cbranch_scc0 L_nodsw_{tag}",
          *[f"s_mov_b32 s{sXB+m}, s{sXB2+m}" for m in range(5)], f"L_nodsw_{tag}:")
        P(post, k + 4, f"s_cmp_eq_u32 s{sKC}, 12", f"s_cselect_b32 s{sDX}, s{sT3}, 64")
    for i in range(5):
        for sl0 in range(64):
            sl = i * 64 + sl0
            j, eb = sl0 // 4, sl0 % 4
            if o.get("order") == "eb" and i not in (0, 4):
                eb, j = sl0 // 16, sl0 % 16
            if o.get("order") == "eb2" and i not in (0, 4):
                jp, r = sl0 // 8, sl0 % 8
                eb = r // 2
                j = 2 * jp + ((r % 2) ^ (eb & 1))
            for ins in pre.get(sl, []):
                a(ins)
            t, b0 = acc(eb, j)
            c = "0" if (first and i == 0) else rng(t, b0)
            if o.get("mf32"):
                if sl0 % 2 == 0:
                    n = sl0 // 2
                    j2, rr = n // 4, n % 4
                    half, e2 = rr // 2, rr % 2
                    tidx = j2 * 2 + e2
                    t, b0 = ("v", NMISC + tidx * 16) if tidx < 14 else ("a", (tidx - 14) * 16)
                    c = "0" if (first and i == 0 and half == 0) else rng(t, b0, 16)
                    a(f"v_mfma_f32_32x32x16_bf16 {rng(t, b0, 16)}, {W(i, e2*2+half)}, {X(2*j2 + half + i)}, {c}")
            elif o.get("swap"):
                a(f"v_mfma_f32_16x16x32_bf16 {rng(t, b0)}, {X(j + i)}, {W(i, eb)}, {c}")
            else:
                a(f"v_mfma_f32_16x16x32_bf16 {rng(t, b0)}, {W(i, eb)}, {X(j + i)}, {c}")
            for ins in post.get(sl, []):
                if ins.endswith(":"):
                    a.label(ins[:-1])
                else:
                    a(ins)

def epilogue(a, o):
    a(f"s_mov_b32 s{sSO}, 0")
    for j in range(16):
        regs = []
        for eb in range(4):
            t, b = acc(eb, j)
            if t == "a":
                _, nb = acc(eb, j - 14)
                for r in range(4):
                    a(f"v_accvgpr_read_b32 v{nb+r}, a{b+r}")
                b = nb
            regs.append(b)
        prs = []
        for h in range(2):
            for p in range(2):
                prs.append((regs[h] + 2 * p, regs[2 + h] + 2 * p, vT + 2 * (2 * h + p)))
        oq = vOQ + 4 * (j & 1)
        P2 = lambda r: f"v[{r}:{r+1}]"
        if o.get("noise"):
            for f, g, t in prs:
                for r in (f, f + 1, g, g + 1):
                    a(f"v_and_b32 v{t}, 0xffff, v{r}")
                    a(f"v_subrev_u32 v{t}, 0x8000, v{t}")
                    a(f"v_cvt_f32_i32 v{t}, v{t}")
                    a(f"v_mul_f32 v{t}, {f32bits(o['noise'] * math.sqrt(12) / 65536):#x}, v{t}")
                    a(f"v_add_f32 v{r}, v{t}, v{r}")
        for f, g, t in prs:
            a(f"v_pk_mul_f32 {P2(f)}, {P2(f)}, s[{sC1}:{sC1+1}]")
        for f, g, t in prs:
            a(f"v_pk_mul_f32 {P2(g)}, {P2(g)}, s[{sC2}:{sC2+1}]")
        for f, g, t in prs:
            a(f"v_min_f32 v{f}, s{sCL}, v{f}")
            a(f"v_min_f32 v{f+1}, s{sCL}, v{f+1}")
        for f, g, t in prs:
            a(f"v_exp_f32 v{g}, v{g}")
            a(f"v_exp_f32 v{g+1}, v{g+1}")
        for f, g, t in prs:
            a(f"v_exp_f32 v{f}, v{f}")
            a(f"v_exp_f32 v{f+1}, v{f+1}")
        for f, g, t in prs:
            a(f"v_pk_add_f32 {P2(t)}, {P2(f)}, s[{sONE}:{sONE+1}]")
        for f, g, t in prs:
            a(f"v_pk_fma_f32 {P2(g)}, {P2(t)}, {P2(g)}, {P2(t)}")
        for f, g, t in prs:
            a(f"v_rcp_f32 v{g}, v{g}")
            a(f"v_rcp_f32 v{g+1}, v{g+1}")
        for f, g, t in prs:
            a(f"v_pk_add_f32 {P2(f)}, {P2(f)}, s[{sONE}:{sONE+1}] neg_lo:[0,1] neg_hi:[0,1]")
        for f, g, t in prs:
            a(f"v_pk_mul_f32 {P2(f)}, {P2(f)}, {P2(g)}")
        if o.get("bias"):
            for f, g, t in prs:
                a(f"v_add_f32 v{f}, {f32bits(o['bias']):#x}, v{f}")
                a(f"v_add_f32 v{f+1}, {f32bits(o['bias']):#x}, v{f+1}")
        for n, (f, g, t) in enumerate(prs):
            a(f"v_cvt_pk_bf16_f32 v{oq+n}, v{f}, v{f+1}")
        a(f"buffer_store_dwordx4 v[{oq}:{oq+3}], v{vOUT}, s[{S_O}:{S_O+3}], s{sSO} offen offset:{(j&1)*2048}")
        if j & 1:
            a(f"s_add_u32 s{sSO}, s{sSO}, 4096")

def gen_main(a, o):
    K = NAME + "_kernel"
    a.raw(f".globl {K}")
    a.raw(".p2align 8")
    a.raw(f".type {K},@function")
    a.label(K)
    a(f"s_cmp_ge_u32 s2, {0 if o.get('emptymain') else 256}")
    a("s_cbranch_scc1 L_END")
    a("s_load_dwordx8 s[4:11], s[0:1], 0")
    a("s_load_dwordx2 s[12:13], s[0:1], 32")
    if o.get("stamp"):
        a("s_memtime s[64:65]")
        a("s_memrealtime s[78:79]")
    a("v_lshrrev_b32 v1, 6, v0")
    a("v_and_b32 v13, 63, v0")
    a("s_nop 0")
    a(f"v_readfirstlane_b32 s{sWAVE}, v1")
    a("s_and_b32 s61, s2, 7")
    a("s_lshr_b32 s62, s2, 3")
    a("s_and_b32 s63, s61, 1")
    a("s_lshl_b32 s63, s63, 1")
    a(f"s_and_b32 s{sET}, s62, 1")
    a(f"s_add_u32 s{sET}, s{sET}, s63")
    a("s_lshr_b32 s61, s61, 1")
    a("s_lshr_b32 s62, s62, 1")
    a("s_mul_i32 s63, s61, 31")
    a("s_cmp_eq_u32 s61, 0")
    a(f"s_cselect_b32 s{sT3}, 0, 1")
    a(f"s_add_u32 s63, s63, s{sT3}")
    a("s_add_u32 s63, s63, s62")
    a(f"s_sub_u32 s{sT3}, 16, s{sT3}")
    a(f"s_cmp_lt_u32 s62, s{sT3}")
    a(f"s_cselect_b32 s{sNT}, 2, 1")
    a("s_cselect_b32 s62, 16, 0")
    a("s_add_u32 s62, s63, s62")
    tile_setup(a, 63, sXB, vBH, vMK, vOUT)
    tile_setup(a, 62, sXB2, vBH2, vMK2, vOUT2)
    for r, v in ((sC1, 2 * math.log2(math.e)), (sC2, -math.log2(math.e)), (sONE, 1.0)):
        a(f"s_mov_b32 s{r}, {f32bits(v):#x}")
        a(f"s_mov_b32 s{r+1}, {f32bits(v):#x}")
    a(f"s_mov_b32 s{sCL}, {f32bits(40.0):#x}")
    a(f"s_mov_b32 s{sT3}, -960")
    a(f"s_mov_b32 s{sDX}, 64")
    a(f"v_lshlrev_b32 v{vWOFF}, 4, v13")
    a("v_lshrrev_b32 v14, 2, v13")
    a("v_lshlrev_b32 v14, 11, v14")
    a("v_and_b32 v15, 3, v13")
    a("v_lshlrev_b32 v15, 4, v15")
    a(f"v_add_u32 v{vXOFF}, v14, v15")
    a("v_mov_b32 v14, 0x70000000")
    a("v_cmp_le_u32 vcc, 48, v13")
    a("s_nop 1")
    a(f"v_cndmask_b32 v{vHOFF}, v14, v{vXOFF}, vcc")
    a("v_and_b32 v14, 15, v13")
    a("v_add_u32 v14, 1, v14")
    a(f"v_mul_u32_u24 v14, {BLK}, v14")
    a("v_lshrrev_b32 v15, 4, v13")
    a("v_lshlrev_b32 v15, 4, v15")
    a(f"v_add_u32 v{vBM}, v14, v15")
    a(f"s_lshl_b32 s{sWB}, s{sWAVE}, 2")
    a(f"s_add_u32 s{sWB}, s{sWB}, 1")
    a(f"s_mul_i32 s{sWB}, s{sWB}, {BLK}")
    a("v_lshlrev_b32 v14, 2, v13")
    a("v_mov_b32 v15, 0")
    a(f"ds_write_b32 v14, v15 offset:{ZOFF}")
    a("s_waitcnt lgkmcnt(0)")
    a(f"s_mov_b32 s{S_X}, s4")
    a(f"s_and_b32 s{S_X+1}, s5, 0xffff")
    a(f"s_mov_b32 s{S_X+2}, 32768000")
    a(f"s_mov_b32 s{S_X+3}, 0x00020000")
    a(f"s_mov_b32 s{S_O}, s8")
    a(f"s_and_b32 s{S_O+1}, s9, 0xffff")
    a(f"s_mov_b32 s{S_O+2}, 32768000")
    a(f"s_mov_b32 s{S_O+3}, 0x00020000")
    a(f"s_lshl_b32 s{sT0}, s{sET}, 2")
    a(f"s_add_u32 s{sT0}, s{sT0}, s{sWAVE}")
    a(f"s_mul_i32 s{sT0}, s{sT0}, {WSLICE}")
    a(f"s_add_u32 s{S_W}, s12, s{sT0}")
    a(f"s_addc_u32 s{S_W+1}, s13, 0")
    a(f"s_and_b32 s{S_W+1}, s{S_W+1}, 0xffff")
    a(f"s_mov_b32 s{S_W+2}, {WSLICE}")
    a(f"s_mov_b32 s{S_W+3}, 0x00020000")
    if o.get("trace"):
        a("s_add_u32 s80, s12, 0x800000")
        a("s_addc_u32 s81, s13, 0")
        a("s_and_b32 s81, s81, 0xffff")
        a("s_mov_b32 s82, 0x100000")
        a("s_mov_b32 s83, 0x00020000")
        a("s_lshl_b32 s90, s2, 2")
        a(f"s_add_u32 s90, s90, s{sWAVE}")
        a("s_lshl_b32 s90, s90, 9")
        a("v_mov_b32 v13, 0")
        a("s_mov_b32 s86, s64")
        a("s_mov_b32 s88, s78")
    a(f"s_mov_b32 s{sWOFF}, 0")
    for c in range(2):
        a(f"s_mov_b32 s{sDSLOT}, {c*CH}")
        a(f"s_add_u32 s{sDBASE}, s{sDSLOT}, s{sWB}")
        for m in range(5):
            g0, g1 = dma(a, m)
            for ins in g0: a(ins)
            a("s_nop 0")
            for ins in g1: a(ins)
        a(f"v_add_u32 v{vXOFF}, 64, v{vXOFF}")
        a(f"v_add_u32 v{vHOFF}, 64, v{vHOFF}")
        if c == 0:
            for i in range(4):
                for eb in range(4):
                    a(wload(i, eb))
                a(f"s_add_u32 s{sWOFF}, s{sWOFF}, 4096")
    a(f"s_mov_b32 s{sDSLOT}, 0")
    a(f"s_add_u32 s{sDBASE}, s{sDSLOT}, s{sWB}")
    a(f"s_mov_b32 s{sRSLOT}, {CH}")
    a(f"v_mov_b32 v{vAM}, v{vBM}")
    a(f"v_mov_b32 v{vAH}, v{vBH}")
    a("s_waitcnt vmcnt(21)")
    a("s_barrier")
    for s in range(20):
        a(xread(s))
    if o.get("stamp"):
        a("s_memtime s[66:67]")
    a.label("L_TILE")
    a(f"s_mov_b32 s{sKC}, 0")
    body(a, True, o, "f")
    a(f"s_mov_b32 s{sKC}, 1")
    a.raw(".p2align 6")
    a.label("L_LOOP")
    body(a, False, o, "l")
    a(f"s_add_u32 s{sKC}, s{sKC}, 1")
    a(f"s_cmp_lt_u32 s{sKC}, 16")
    a("s_cbranch_scc1 L_LOOP")
    if o.get("stamp"):
        a(f"s_cmp_eq_u32 s{sNT}, 1")
        a("s_cbranch_scc1 L_st2")
        a("s_memtime s[68:69]")
        a.label("L_st2")
        a("s_memtime s[72:73]")
    a("s_nop 7")
    if not o.get("noepi"):
        epilogue(a, o)
    if o.get("stamp"):
        a(f"s_cmp_eq_u32 s{sNT}, 1")
        a("s_cbranch_scc1 L_st3")
        a("s_memtime s[70:71]")
        a.label("L_st3")
    a(f"v_mov_b32 v{vOUT}, v{vOUT2}")
    a(f"s_sub_u32 s{sNT}, s{sNT}, 1")
    a(f"s_cmp_lg_u32 s{sNT}, 0")
    a("s_cbranch_scc1 L_TILE")
    a("s_waitcnt vmcnt(0) lgkmcnt(0)")
    if o.get("trace"):
        for ins in ("v_mov_b32 v22, s86", "v_mov_b32 v23, s88",
              "buffer_store_dwordx2 v[22:23], v13, s[80:83], s90 offen", "s_add_u32 s90, s90, 8",
              "s_memtime s[86:87]", "s_memrealtime s[88:89]", "s_waitcnt lgkmcnt(0)",
              "v_mov_b32 v22, s86", "v_mov_b32 v23, s88",
              "buffer_store_dwordx2 v[22:23], v13, s[80:83], s90 offen", "s_waitcnt vmcnt(0)"):
            a(ins)
        a("s_branch L_END")
    if o.get("stamp"):
        a("s_memtime s[74:75]")
        a("s_memrealtime s[76:77]")
        a("s_waitcnt lgkmcnt(0)")
        a(f"s_cmp_eq_u32 s2, {o['stamp']-1}")
        a("s_cbranch_scc0 L_END")
        a(f"s_cmp_eq_u32 s{sWAVE}, 0")
        a("s_cbranch_scc0 L_END")
        a("s_mov_b32 s80, s10")
        a("s_and_b32 s81, s11, 0xffff")
        a("s_mov_b32 s82, 256")
        a("s_mov_b32 s83, 0x00020000")
        a("v_mov_b32 v14, 0")
        for n, r in enumerate((66, 68, 70, 72, 74)):
            a(f"s_sub_u32 s84, s{r}, s64")
            a("v_mov_b32 v15, s84")
            a(f"buffer_store_dword v15, v14, s[80:83], 0 offen offset:{4*n}")
        a("s_sub_u32 s84, s76, s78")
        a("v_mov_b32 v15, s84")
        a("buffer_store_dword v15, v14, s[80:83], 0 offen offset:20")
        a("s_waitcnt vmcnt(0)")
    a.label("L_END")
    a("s_endpgm")

def kd(a, name, vg, sg, acco):
    a.raw(".p2align 6")
    a.raw(f".amdhsa_kernel {name}")
    a.raw(f"  .amdhsa_next_free_vgpr {vg}")
    a.raw(f"  .amdhsa_next_free_sgpr {sg}")
    a.raw(f"  .amdhsa_accum_offset {acco}")
    a.raw("  .amdhsa_group_segment_fixed_size 0")
    a.raw("  .amdhsa_kernarg_size 40")
    a.raw("  .amdhsa_user_sgpr_count 2")
    a.raw("  .amdhsa_user_sgpr_kernarg_segment_ptr 1")
    a.raw("  .amdhsa_system_sgpr_workgroup_id_x 1")
    a.raw(".end_amdhsa_kernel")

def main():
    out = sys.argv[1]
    o = {}
    for s in sys.argv[2:]:
        k, _, v = s.partition("=")
        o[k] = eval(v) if v else 1
    a = Asm()
    a.raw(HEADER.rstrip())
    if not o.get("noprep"):
        a.raw("; @launch kernel=wprep_kernel grid=(320,1,1) block=(128,1,1) lds=0")
    for _ in range(o.get("nempty", 0)):
        a.raw("; @launch kernel=nop_kernel grid=(256,1,1) block=(64,1,1) lds=0")
    a.raw(f"; @launch kernel={NAME}_kernel grid=(256,1,1) block=(256,1,1) lds={LDS_BYTES}")
    a.raw('.amdgcn_target "amdgcn-amd-amdhsa--gfx950"')
    a.raw(".text")
    gen_main(a, o)
    gen_wprep(a, o)
    if o.get("nempty"):
        a.raw(".globl nop_kernel\n.p2align 8\n.type nop_kernel,@function\nnop_kernel:\n    s_endpgm")
    a.raw('.section .rodata,"a"')
    if o.get("nempty"):
        kd(a, "nop_kernel", 8, 16, 8)
    kd(a, NAME + "_kernel", 448, 96, 256)
    kd(a, "wprep_kernel", 72, 32, 72)
    open(out, "w").write(a.text())

main()
```

```python
import sys, math, struct

NAME = "standalone__autoregressive_conv_wavernn__speech"
HEADER = """; Kernarg layout for this problem (40 bytes, ptrs only, base s[0:1]):
; Launch 2: persistent kernel: input transform (VALU) -> LDS -> MFMA, output transform, tanh*sigmoid."""

A_ = math.sqrt(0.5)
B_ = math.sqrt(2.0)

def f32(v):
    return struct.unpack("<I", struct.pack("<f", v))[0]
def hx(v):
    return f"{f32(v):#x}"

class I:
    __slots__ = ("s", "kind", "tag")
    def __init__(self, s, kind=None, tag=None):
        self.s, self.kind, self.tag = s, kind, tag
class Wt:
    __slots__ = ("vm", "lg", "nvm", "nlg")
    def __init__(self, vm=(), lg=()):
        self.vm, self.lg = list(vm), list(lg)
        self.nvm = None; self.nlg = None
    def text(self):
        p = []
        if self.nvm is not None: p.append(f"vmcnt({min(self.nvm, 63)})")
        if self.nlg is not None: p.append(f"lgkmcnt({min(self.nlg, 15)})")
        return "s_waitcnt " + " ".join(p) if p else None

class Piece:
    def __init__(self, name):
        self.name = name; self.items = []
    def __call__(self, s, kind=None, tag=None):
        self.items.append(I(s, kind, tag))
    def add(self, it):
        self.items.append(it)
    def label(self, s):
        self.items.append(I(s + ":"))
    def wait(self, vm=(), lg=()):
        w = Wt(vm, lg); self.items.append(w); return w

def simulate(seq):
    cnt = {"vm": 0, "lg": 0}
    last = {}
    for p in seq:
        for it in p.items:
            if isinstance(it, Wt):
                for kind, tags in (("vm", it.vm), ("lg", it.lg)):
                    for t in tags:
                        if (kind, t) in last:
                            n = cnt[kind] - last[(kind, t)]
                            cur = it.nvm if kind == "vm" else it.nlg
                            n = n if cur is None else min(cur, n)
                            if kind == "vm": it.nvm = n
                            else: it.nlg = n
                        else:
                            raise RuntimeError(f"tag {t} never issued before wait in {p.name}")
            elif it.kind:
                cnt[it.kind] += 1
                if it.tag is not None:
                    last[(it.kind, it.tag)] = cnt[it.kind]

def emit(out, p):
    for it in p.items:
        if isinstance(it, Wt):
            t = it.text()
            if t: out.append("    " + t)
        elif it.s.endswith(":") or it.s.startswith("."):
            out.append(it.s)
        else:
            out.append("    " + it.s)

WSLICE = 3 * 16 * 2 * 4 * 1024
def gen_wprep(o):
    a = Piece("wprep")
    a(".globl wprep_kernel"); a(".p2align 8"); a(".type wprep_kernel,@function"); a.label("wprep_kernel")
    a("s_cmp_ge_u32 s2, 256")
    a("s_cbranch_scc1 WP_END")
    a("s_load_dwordx2 s[4:5], s[0:1], 8")
    a("s_load_dwordx2 s[6:7], s[0:1], 32")
    a("s_lshr_b32 s16, s2, 2")
    a("s_and_b32 s3, s2, 3")
    a("s_lshl_b32 s3, s3, 7")
    a("v_add_u32 v0, s3, v0")
    a("v_lshlrev_b32 v1, 2, v0")
    a("s_lshl_b32 s17, s16, 14")
    a("v_bfe_u32 v2, v0, 4, 4")
    a(f"s_mov_b32 s18, {WSLICE}")
    a("v_mul_lo_u32 v2, v2, s18")
    a("v_lshrrev_b32 v3, 8, v0"); a("v_lshlrev_b32 v3, 11, v3"); a("v_add_u32 v2, v2, v3")
    a("v_bfe_u32 v3, v0, 1, 1"); a("v_lshlrev_b32 v3, 10, v3"); a("v_add_u32 v2, v2, v3")
    a("v_bfe_u32 v3, v0, 2, 2"); a("v_lshlrev_b32 v3, 6, v3"); a("v_add_u32 v2, v2, v3")
    a("v_and_b32 v3, 1, v0"); a("v_lshlrev_b32 v3, 5, v3"); a("v_add_u32 v2, v2, v3")
    a("s_lshr_b32 s19, s16, 2")
    a("s_lshl_b32 s19, s19, 13")
    a("s_and_b32 s20, s16, 3"); a("s_lshl_b32 s20, s20, 8"); a("s_add_u32 s19, s19, s20")
    a("s_mov_b32 s21, 0x05040100"); a("s_mov_b32 s22, 0x07060302"); a("s_mov_b32 s23, 0xffff0000")
    ca = -1 / 1.5
    consts = dict(ca=ca, caa=ca * A_, ncaa=-ca * A_, b=B_, nb=-B_, c3=1.5 / 6, c4=(4 / 3) / 6, q=0.25)
    sr = {}
    for n, (k, v) in enumerate(consts.items()):
        sr[k] = 24 + n
        a(f"s_mov_b32 s{24+n}, {hx(v)}")
    a("s_waitcnt lgkmcnt(0)")
    a("s_mov_b32 s8, s4"); a("s_and_b32 s9, s5, 0xffff"); a("s_mov_b32 s10, 5242880"); a("s_mov_b32 s11, 0x00020000")
    a("s_mov_b32 s12, s6"); a("s_and_b32 s13, s7, 0xffff"); a(f"s_mov_b32 s14, {16*WSLICE}"); a("s_mov_b32 s15, 0x00020000")
    RAW = 8
    for m in range(8):
        for i in range(5):
            a(f"s_add_u32 s32, s17, {i*1048576 + (m//2)*4096}")
            a(f"buffer_load_dword v{RAW+m*5+i}, v1, s[8:11], s32 offen offset:{(m%2)*2048}")
    OUT = 48
    TMP = 96
    def o_(k, col, n): return OUT + (k * 2 + col) * 4 + n
    for n in range(4):
        a(f"s_waitcnt vmcnt({30-10*n})")
        res = {}
        for mm in range(2):
            m = 2 * n + mm
            for col in range(2):
                base = TMP + (mm * 2 + col) * 8
                g = [base + i for i in range(5)]
                for i in range(5):
                    src = RAW + m * 5 + i
                    a(f"v_lshlrev_b32 v{g[i]}, 16, v{src}" if col == 0 else f"v_and_b32 v{g[i]}, s23, v{src}")
                t0, t1, t2 = base + 5, base + 6, base + 7
                a(f"v_fma_f32 v{t0}, 0.5, v{g[2]}, v{g[0]}")
                a(f"v_fma_f32 v{t1}, 0.5, v{g[3]}, v{g[1]}")
                a(f"v_fmac_f32 v{t0}, s{sr['q']}, v{g[4]}")
                a(f"v_fmac_f32 v{g[0]}, 2.0, v{g[2]}")
                a(f"v_fmac_f32 v{g[1]}, 2.0, v{g[3]}")
                a(f"v_mul_f32 v{t0}, s{sr['ca']}, v{t0}")
                a(f"v_fmac_f32 v{g[0]}, 4.0, v{g[4]}")
                a(f"v_mul_f32 v{g[4]}, s{sr['b']}, v{g[4]}")
                a(f"v_fma_f32 v{t2}, s{sr['caa']}, v{t1}, v{t0}")
                a(f"v_fmac_f32 v{t0}, s{sr['ncaa']}, v{t1}")
                a(f"v_fma_f32 v{g[2]}, s{sr['b']}, v{g[1]}, v{g[0]}")
                a(f"v_fmac_f32 v{g[0]}, s{sr['nb']}, v{g[1]}")
                a(f"v_mul_f32 v{g[2]}, s{sr['c3']}, v{g[2]}")
                a(f"v_mul_f32 v{g[0]}, s{sr['c4']}, v{g[0]}")
                res[(mm, col)] = [g[2], g[0], t2, t0, None, g[4]]
        for col in range(2):
            for k in range(6):
                if k == 4:
                    a(f"v_perm_b32 v{o_(4,col,n)}, v{RAW+(2*n+1)*5}, v{RAW+(2*n)*5}, s{21+col}")
                else:
                    a(f"v_cvt_pk_bf16_f32 v{o_(k,col,n)}, v{res[(0,col)][k]}, v{res[(1,col)][k]}")
    for k in range(6):
        a(f"s_add_u32 s32, s19, {(k//2)*16*8192 + (k%2)*4096}")
        for col in range(2):
            a(f"buffer_store_dwordx4 v[{o_(k,col,0)}:{o_(k,col,3)}], v2, s[12:15], s32 offen offset:{col*16}")
    a("s_waitcnt vmcnt(0)")
    a.label("WP_END")
    a("s_endpgm")
    return a

LDS_BYTES = 131072
S_X, S_W, S_O = 16, 20, 24
sWAVE, sET, sSIG, sWOFF, sXO, sXS, sUN, sNT = 28, 29, 30, 31, 32, 33, 34, 35
sB, sNB, sNK, sM25, sMASK = 36, 37, 38, 39, 40
sC1, sC2, sC1o, sC2o, sONE, sK1, sK2, sM2, sCL = 42, 44, 46, 48, 50, 52, 54, 56, 58
sT0, sT1, sT2, sT3, sSO = 60, 61, 62, 63, 59
vWOFF, vXM, vXH, vX2, vXMn, vXHn, vTR, vTW, vOUT, vOUT2, vLANE = 1, 2, 3, 4, 5, 6, 7, 8, 9, 10, 11
OUTQ = 12
POOL = list(range(24, 48))
TMP8 = 48
RAWB = 56
NRAW = 10
ACCV = 96
def acc(jp, uv, eb):
    idx = (jp * 2 + uv) * 4 + eb
    if idx < 40: return ("v", ACCV + idx * 4)
    return ("a", (idx - 40) * 4)
def R(t, b, n=4): return f"{t}[{b}:{b+n-1}]"
def Wr(h, eb): return R("a", 96 + (h * 4 + eb) * 4)
def Tr(s): return R("a", 224 + s * 4)
def raw(slot): return RAWB + slot * 4

class Pool:
    def __init__(self): self.free = list(POOL); self.hi = 0
    def get(self):
        r = self.free.pop(0); self.hi = max(self.hi, len(POOL) - len(self.free)); return r
    def put(self, *rs):
        self.free.extend(rs)

def xload(slot, vaddr):
    r = raw(slot)
    return I(f"buffer_load_dwordx4 v[{r}:{r+3}], v{vaddr}, s[{S_X}:{S_X+3}], s{sXO} offen", "vm", ("X", slot))
def xadv():
    return I(f"s_add_u32 s{sXO}, s{sXO}, s{sXS}")

def next_unit_setup():
    L = []
    a = lambda s: L.append(I(s))
    a(f"s_add_u32 s{sUN}, s{sUN}, 1")
    a(f"s_cmp_eq_u32 s{sUN}, 12")
    a(f"s_cselect_b32 s{sUN}, 0, s{sUN}")
    a("s_cbranch_scc0 {L}_a")
    a(f"v_mov_b32 v{vXM}, v{vXMn}")
    a(f"v_mov_b32 v{vXH}, v{vXHn}")
    a("{L}_a:")
    a(f"s_lshl_b32 s{sXO}, s{sUN}, 2")
    a(f"s_add_u32 s{sXO}, s{sXO}, s{sWAVE}")
    a(f"s_and_b32 s{sXO}, s{sXO}, 15")
    a(f"s_lshl_b32 s{sXO}, s{sXO}, 6")
    a(f"v_mov_b32 v{vX2}, v{vXM}")
    a(f"s_mov_b32 s{sXS}, 4096")
    a(f"s_cmp_ge_u32 s{sUN}, 8")
    a("s_cbranch_scc1 {L}_b")
    a(f"v_mov_b32 v{vX2}, v{vXH}")
    a(f"s_mov_b32 s{sXS}, 2048")
    a(f"s_add_u32 s{sXO}, s{sXO}, 2048")
    a("{L}_b:")
    return L

_lab = [0]
def fresh(L):
    _lab[0] += 1
    n = f"LU{_lab[0]}"
    return [[I(i.s.replace("{L}", n), i.kind, i.tag) for i in L]]

def unit_stream(typ):
    S = []
    pool = Pool()
    def op(s, kind=None, tag=None): S.append([I(s, kind, tag)])
    nrows = 18 if typ == "AB" else 20
    loads_done = [0]
    def consumed(k):
        freed.add(k % NRAW if False else k)
        while True:
            n = loads_done[0] + NRAW
            if n < nrows:
                prev = n - NRAW
                if prev not in freed: break
                if typ == "C" and n == 10:
                    op(f"s_sub_u32 s{sXO}, s{sXO}, {19*2048}")
                va = vXH if (typ == "C" and n in (10, 11)) else vXM
                S.append([xload(n % NRAW, va), xadv()])
            else:
                kk = n - nrows
                if kk >= NRAW: break
                prev = max(r for r in range(nrows) if r % NRAW == kk)
                if prev not in freed: break
                if kk == 0:
                    S.extend(fresh(next_unit_setup()))
                va = vXH if kk < 2 else (vX2 if kk == 2 else vXM)
                S.append([xload(kk, va), xadv()])
            loads_done[0] += 1
    freed = set()
    oq = [0]
    def unp(dst, src, half):
        op(f"v_lshlrev_b32 v{dst}, 16, v{src}" if half == 0 else f"v_and_b32 v{dst}, s{sMASK}, v{src}")
    def newq():
        q = OUTQ + 4 * (oq[0] % 3); oq[0] += 1; return q
    def twrite(q, kk, jp):
        op(f"ds_write_b128 v{vTW}, v[{q}:{q+3}] offset:{(kk*8+jp)*1024}", "lg", "TW")
    if typ == "AB":
        P = [None] * 8; M = [None] * 8
        for n in range(9):
            k3, k4 = 2 * n, 2 * n + 1
            S.append(("need", [k3 % NRAW, k4 % NRAW]))
            r3, r4 = raw(k3 % NRAW), raw(k4 % NRAW)
            if n: qa, qb = newq(), newq()
            for dw in range(4):
                t3 = [pool.get(), pool.get()]; t4 = [pool.get(), pool.get()]
                for h in range(2): unp(t3[h], r3 + dw, h)
                for h in range(2): unp(t4[h], r4 + dw, h)
                if dw == 3:
                    consumed(k3); consumed(k4)
                p = [pool.get(), pool.get()]
                for h in range(2): op(f"v_fma_f32 v{p[h]}, s{sB}, v{t3[h]}, v{t4[h]}")
                for h in range(2): op(f"v_fmac_f32 v{t4[h]}, s{sNB}, v{t3[h]}")
                pool.put(*t3)
                if n:
                    for h in range(2): op(f"v_fma_f32 v{P[2*dw+h]}, s{sNK}, v{P[2*dw+h]}, v{p[h]}")
                    for h in range(2): op(f"v_fma_f32 v{M[2*dw+h]}, s{sNK}, v{M[2*dw+h]}, v{t4[h]}")
                    op(f"v_cvt_pk_bf16_f32 v{qa+dw}, v{P[2*dw]}, v{P[2*dw+1]}")
                    op(f"v_cvt_pk_bf16_f32 v{qb+dw}, v{M[2*dw]}, v{M[2*dw+1]}")
                    pool.put(P[2*dw], P[2*dw+1], M[2*dw], M[2*dw+1])
                for h in range(2): P[2*dw+h] = p[h]; M[2*dw+h] = t4[h]
            if n:
                twrite(qa, 0, n - 1); twrite(qb, 1, n - 1)
        pool.put(*P); pool.put(*M)
    else:
        for par in range(2):
            Q = [None] * 8; prev = [None] * 8
            for n in range(10):
                k = par * 10 + n
                S.append(("need", [k % NRAW]))
                r = raw(k % NRAW)
                if n >= 2: q = newq()
                for dw2 in range(2):
                    e = [pool.get() for _ in range(4)]
                    for x in range(4): unp(e[x], r + 2 * dw2 + x // 2, x % 2)
                    if dw2 == 1: consumed(k)
                    c0 = 4 * dw2
                    if n >= 2:
                        for x in range(4): op(f"v_add_f32 v{Q[c0+x]}, v{Q[c0+x]}, v{e[x]}")
                    if 1 <= n <= 8:
                        for x in range(4): op(f"v_fmac_f32 v{prev[c0+x]}, s{sM25}, v{e[x]}")
                    if n >= 2:
                        for x in range(2): op(f"v_cvt_pk_bf16_f32 v{q+2*dw2+x}, v{Q[c0+2*x]}, v{Q[c0+2*x+1]}")
                        pool.put(*Q[c0:c0+4])
                    if n == 9:
                        pool.put(*prev[c0:c0+4]); pool.put(*e)
                    else:
                        for x in range(4):
                            if n >= 1: Q[c0+x] = prev[c0+x]
                            prev[c0+x] = e[x]
                if n >= 2: twrite(q, par, n - 2)
    assert loads_done[0] + NRAW == nrows + NRAW, loads_done
    assert len(pool.free) == len(POOL)
    return S, pool.hi

def cost(g):
    if isinstance(g, tuple): return 0
    c = 0
    for i in g:
        if i.s.endswith(":"): continue
        c += 3 if i.s.startswith("ds_write") else 1
    return c

def split_stream(S, ngroups, weights=None):
    tot = sum(cost(g) for g in S)
    w = weights or [1.0] * ngroups
    cum = [sum(w[:i + 1]) / sum(w) * tot for i in range(ngroups)]
    parts = [[] for _ in range(ngroups)]
    acc_ = 0; gi = 0
    for g in S:
        c = cost(g)
        while gi < ngroups - 1 and acc_ + c / 2 > cum[gi] and not isinstance(g, tuple): gi += 1
        parts[gi].append(g); acc_ += c
    for i in range(ngroups - 1):
        while parts[i] and isinstance(parts[i][-1], tuple):
            parts[i + 1].insert(0, parts[i].pop())
    return parts

def wload(h, eb):
    return I(f"buffer_load_dwordx4 {Wr(h, eb)}, v{vWOFF}, s[{S_W}:{S_W+3}], s{sWOFF} offen offset:{eb*1024}", "vm", ("W", h))
def tread(G, f):
    G %= 16
    cp, kk, jp = G >> 2, (G >> 1) & 1, 4 * (G & 1) + f
    s = (G & 1) * 4 + f
    return I(f"ds_read_b128 {Tr(s)}, v{vTR} offset:{cp*16384 + (kk*8+jp)*1024}", "lg", ("T", s))

def group(p, G, part, o, first=False, mfma=True, extra_pre=(), wl=True):
    h = G >> 1
    needx = [("X", s) for g in part if isinstance(g, tuple) for s in g[1]]
    vm = list(needx)
    lg = []
    if mfma:
        if G % 2 == 0: vm.append(("W", h))
        lg = [("T", (G & 1) * 4 + 3)]
    for it in extra_pre: p.add(it)
    if vm or lg: p.wait(vm, lg)
    fixed = {k: [] for k in range(16)}
    for f in range(4):
        fixed[4 * f + 3].append([tread(G + 2, f)])
    hp = (h - 1) % 8
    if wl:
        if G % 2 == 0:
            if hp == 0:
                fixed[0].append([I(f"s_cmp_eq_u32 s{sWOFF}, {WSLICE}"), I(f"s_cselect_b32 s{sWOFF}, 0, s{sWOFF}")])
            fixed[1].append([wload(hp, 0)]); fixed[9].append([wload(hp, 1)])
        else:
            fixed[1].append([wload(hp, 2)]); fixed[9].append([wload(hp, 3), I(f"s_add_u32 s{sWOFF}, s{sWOFF}, 4096")])
    ops = [g for g in part if not isinstance(g, tuple)]
    tot = sum(cost(g) for g in ops) + sum(cost(g) for v in fixed.values() for g in v)
    done = 0.0; oi = 0
    for k in range(16):
        jp, eb, kk = 4 * (G & 1) + k // 4, k % 4, (G >> 1) & 1
        if mfma:
            t, b = acc(jp, kk, eb)
            c = "0" if (first and G < 4) else R(t, b)
            if o.get("mf32"):
                if k % 2 == 0:
                    idx = ((jp * 2 + kk) * 4 + eb) // 4
                    t, b = ("v", ACCV + idx * 16) if idx < 10 else ("a", (idx - 10) * 16)
                    c = "0" if (first and G < 4 and k % 4 == 0) else R(t, b, 16)
                    p(f"v_mfma_f32_32x32x16_bf16 {R(t, b, 16)}, {Wr(h, eb)}, {Tr((G&1)*4 + k//4)}, {c}")
            else:
                p(f"v_mfma_f32_16x16x32_bf16 {R(t, b)}, {Wr(h, eb)}, {Tr((G&1)*4 + k//4)}, {c}")
        for g in fixed[k]:
            for it in g: p.add(it)
            done += cost(g)
        target = tot * (k + 1) / 16
        while oi < len(ops) and (done + cost(ops[oi]) / 2 <= target or k == 15):
            for it in ops[oi]: p.add(it)
            done += cost(ops[oi]); oi += 1

def tail_pre(typ):
    L = [Wt(lg=["TW"]), I("s_barrier"), I(f"v_xor_b32 v{vTR}, 0x10000, v{vTR}"), I(f"v_xor_b32 v{vTW}, 0x10000, v{vTW}")]
    if typ == "AB":
        L += [I(f"s_cmp_lt_u32 s{sUN}, 4"),
              I(f"s_cselect_b32 s{sB}, {hx(B_)}, s{sT3}"),
              I(f"s_cselect_b32 s{sNK}, -0.5, -2.0"),
              I(f"s_xor_b32 s{sNB}, s{sB}, 0x80000000")]
    return L

def rowbytes(a, vU, vD, vt):
    a(f"v_lshlrev_b32 v{vD}, 1, v{vU}")
    for thr, adj in ((8000, 15999), (16000, 1), (24000, 15999)):
        a(f"v_cmp_le_u32 vcc, {thr}, v{vU}")
        a(f"v_mov_b32 v{vt}, {adj}")
        a("s_nop 1")
        a(f"v_cndmask_b32 v{vt}, 0, v{vt}, vcc")
        a(f"v_sub_u32 v{vD}, v{vD}, v{vt}")
    a(f"v_lshlrev_b32 v{vD}, 10, v{vD}")

def tile_setup(a, sTT, vxm, vxh, vout):
    t = POOL
    a(f"s_lshl_b32 s{sT0}, s{sTT}, 8")
    a(f"v_lshrrev_b32 v{t[0]}, 2, v{vLANE}")
    a(f"v_lshlrev_b32 v{t[1]}, 4, v{t[0]}")
    a(f"v_add_u32 v{t[1]}, s{sT0}, v{t[1]}")
    rowbytes(a, t[1], t[2], t[3])
    a(f"v_lshrrev_b32 v{t[3]}, 5, v{vLANE}")
    a(f"v_mul_u32_u24 v{t[3]}, 3, v{t[3]}")
    a(f"v_and_b32 v{t[4]}, 3, v{vLANE}")
    a(f"v_xor_b32 v{t[3]}, v{t[3]}, v{t[4]}")
    a(f"v_lshlrev_b32 v{t[3]}, 4, v{t[3]}")
    a(f"v_add_u32 v{vxm}, v{t[2]}, v{t[3]}")
    a(f"v_mov_b32 v{vxh}, v{vxm}")
    a(f"v_mov_b32 v{t[4]}, 0x70000000")
    for thr in (0, 8000, 16000, 24000):
        a(f"v_cmp_eq_u32 vcc, {thr}, v{t[1]}")
        a("s_nop 1")
        a(f"v_cndmask_b32 v{vxh}, v{vxh}, v{t[4]}, vcc")
    a(f"v_and_b32 v{t[0]}, 15, v{vLANE}")
    a(f"v_lshlrev_b32 v{t[1]}, 4, v{t[0]}")
    a(f"v_add_u32 v{t[1]}, s{sT0}, v{t[1]}")
    rowbytes(a, t[1], t[2], t[3])
    a(f"v_lshrrev_b32 v{t[3]}, 4, v{vLANE}")
    a(f"v_lshlrev_b32 v{t[3]}, 4, v{t[3]}")
    a(f"v_add_u32 v{t[2]}, v{t[2]}, v{t[3]}")
    a(f"s_lshl_b32 s{sT1}, s{sET}, 8")
    a(f"s_lshl_b32 s{sT2}, s{sWAVE}, 6")
    a(f"s_add_u32 s{sT1}, s{sT1}, s{sT2}")
    a(f"v_add_u32 v{vout}, s{sT1}, v{t[2]}")

P2 = lambda r: f"v[{r}:{r+1}]"
def bfly(name, which):
    a = Piece(name)
    a("s_nop 7")
    tq = [TMP8, TMP8 + 4]
    def two(u, v):
        for x in (0, 2):
            for uu, vv in zip(u, v):
                if which == 1: a(f"v_pk_fma_f32 {P2(uu+x)}, {P2(vv+x)}, s[{sK1}:{sK1+1}], {P2(uu+x)}")
                else: a(f"v_pk_add_f32 {P2(uu+x)}, {P2(uu+x)}, {P2(vv+x)}")
        for x in (0, 2):
            for uu, vv in zip(u, v):
                if which == 1: a(f"v_pk_fma_f32 {P2(vv+x)}, {P2(uu+x)}, s[{sK2}:{sK2+1}], {P2(vv+x)}")
                else: a(f"v_pk_fma_f32 {P2(vv+x)}, {P2(vv+x)}, s[{sM2}:{sM2+1}], {P2(uu+x)}")
    for jp in range(5):
        two([acc(jp, 0, eb)[1] for eb in range(4)], [acc(jp, 1, eb)[1] for eb in range(4)])
    for jp in range(5, 8):
        for eb in range(4):
            ua, va = acc(jp, 0, eb)[1], acc(jp, 1, eb)[1]
            for x in range(4): a(f"v_accvgpr_read_b32 v{tq[0]+x}, a{ua+x}")
            for x in range(4): a(f"v_accvgpr_read_b32 v{tq[1]+x}, a{va+x}")
            two([tq[0]], [tq[1]])
            for x in range(4): a(f"v_accvgpr_write_b32 a{ua+x}, v{tq[0]+x}")
            for x in range(4): a(f"v_accvgpr_write_b32 a{va+x}, v{tq[1]+x}")
    a("s_nop 1")
    return a

def epilogue(o):
    a = Piece("epi")
    a("s_nop 7")
    a(f"s_mov_b32 s{sSO}, 0")
    for j in range(16):
        jp, uv = j >> 1, j & 1
        regs = []
        for eb in range(4):
            t, b = acc(jp, uv, eb)
            if t == "a":
                nb = acc(jp - 5, uv, eb)[1]
                for r in range(4): a(f"v_accvgpr_read_b32 v{nb+r}, a{b+r}")
                b = nb
            regs.append(b)
        tb = TMP8 if j == 0 else prev_g
        oq = tb
        prs = [(regs[h] + 2 * p, regs[2 + h] + 2 * p, tb + 2 * (2 * h + p)) for h in range(2) for p in range(2)]
        prev_g, prev_f = regs[2], regs[0]
        assert regs[3] == regs[2] + 4
        c1, c2 = (sC1, sC2) if uv == 0 else (sC1o, sC2o)
        for f, g, t in prs: a(f"v_pk_mul_f32 {P2(f)}, {P2(f)}, s[{c1}:{c1+1}]")
        for f, g, t in prs: a(f"v_pk_mul_f32 {P2(g)}, {P2(g)}, s[{c2}:{c2+1}]")
        for f, g, t in prs:
            a(f"v_min_f32 v{f}, s{sCL}, v{f}"); a(f"v_min_f32 v{f+1}, s{sCL}, v{f+1}")
        for f, g, t in prs:
            a(f"v_exp_f32 v{g}, v{g}"); a(f"v_exp_f32 v{g+1}, v{g+1}")
        for f, g, t in prs:
            a(f"v_exp_f32 v{f}, v{f}"); a(f"v_exp_f32 v{f+1}, v{f+1}")
        for f, g, t in prs: a(f"v_pk_add_f32 {P2(t)}, {P2(f)}, s[{sONE}:{sONE+1}]")
        for f, g, t in prs: a(f"v_pk_fma_f32 {P2(g)}, {P2(t)}, {P2(g)}, {P2(t)}")
        for f, g, t in prs:
            a(f"v_rcp_f32 v{g}, v{g}"); a(f"v_rcp_f32 v{g+1}, v{g+1}")
        for f, g, t in prs: a(f"v_pk_add_f32 {P2(f)}, {P2(f)}, s[{sONE}:{sONE+1}] neg_lo:[0,1] neg_hi:[0,1]")
        for f, g, t in prs: a(f"v_pk_mul_f32 {P2(f)}, {P2(f)}, {P2(g)}")
        for n, (f, g, t) in enumerate(prs): a(f"v_cvt_pk_bf16_f32 v{oq+n}, v{f}, v{f+1}")
        a(f"buffer_store_dwordx4 v[{oq}:{oq+3}], v{vOUT}, s[{S_O}:{S_O+3}], s{sSO} offen offset:{(j&1)*2048}", "vm")
        if j & 1: a(f"s_add_u32 s{sSO}, s{sSO}, 4096")
    a(f"v_mov_b32 v{vOUT}, v{vOUT2}")
    return a

def gen_main(o):
    K = NAME + "_kernel"
    wts = o.get("wts")
    parts = {}
    for typ in ("AB", "ABf", "C", "pro"):
        S, hi = unit_stream("C" if typ == "C" else "AB")
        parts[typ] = split_stream(S, 16, wts)
    def mk_M(name, typ, first):
        p = Piece(name)
        for G in range(14):
            group(p, G, parts[typ][G + 2], o, first=first)
        return p
    def mk_T(name, typ, mfma=True):
        p = Piece(name)
        for G in (14, 15):
            group(p, G, parts[typ][G - 14], o, mfma=mfma, extra_pre=tail_pre(typ) if G == 14 else (), wl=mfma)
        return p
    M_AB, M_ABf, M_C = mk_M("M_AB", "AB", False), mk_M("M_ABf", "ABf", True), mk_M("M_C", "C", False)
    T_AB, T_C = mk_T("T_AB", "AB"), mk_T("T_C", "C")
    B1, B2, EP = bfly("b1", 1), bfly("b2", 2), epilogue(o)

    a = Piece("pro")
    a(f".globl {K}"); a(".p2align 8"); a(f".type {K},@function"); a.label(K)
    a("s_cmp_ge_u32 s2, 256")
    a("s_cbranch_scc1 L_END")
    a("s_load_dwordx8 s[4:11], s[0:1], 0")
    a("s_load_dwordx2 s[12:13], s[0:1], 32")
    if o.get("trace"):
        a("s_memtime s[86:87]"); a("s_memrealtime s[88:89]")
    a("v_lshrrev_b32 v1, 6, v0")
    a(f"v_and_b32 v{vLANE}, 63, v0")
    a("s_nop 0")
    a(f"v_readfirstlane_b32 s{sWAVE}, v1")
    a("s_and_b32 s64, s2, 7"); a("s_lshr_b32 s65, s2, 3")
    a("s_and_b32 s66, s64, 1"); a("s_lshl_b32 s66, s66, 1")
    a(f"s_and_b32 s{sET}, s65, 1"); a(f"s_add_u32 s{sET}, s{sET}, s66")
    a("s_lshr_b32 s64, s64, 1"); a("s_lshr_b32 s65, s65, 1")
    a("s_mul_i32 s66, s64, 31")
    a("s_cmp_eq_u32 s64, 0"); a("s_cselect_b32 s67, 0, 1")
    a("s_add_u32 s66, s66, s67"); a("s_add_u32 s66, s66, s65")
    a("s_sub_u32 s67, 16, s67")
    a("s_cmp_lt_u32 s65, s67")
    a(f"s_cselect_b32 s{sNT}, 2, 1"); a("s_cselect_b32 s65, 16, 0")
    a("s_add_u32 s65, s66, s65")
    tile_setup(a, 66, vXM, vXH, vOUT)
    a("s_waitcnt lgkmcnt(0)")
    a(f"s_sub_u32 s{S_X}, s4, 8192"); a(f"s_subb_u32 s{S_X+1}, s5, 0"); a(f"s_and_b32 s{S_X+1}, s{S_X+1}, 0xffff")
    a(f"s_mov_b32 s{S_X+2}, {32768000+8192}"); a(f"s_mov_b32 s{S_X+3}, 0x00020000")
    a(f"s_mov_b32 s{sUN}, 0")
    a(f"s_lshl_b32 s{sXO}, s{sWAVE}, 6"); a(f"s_add_u32 s{sXO}, s{sXO}, 2048"); a(f"s_mov_b32 s{sXS}, 2048")
    for k in range(NRAW):
        a.add(xload(k, vXH if k < 3 else vXM)); a.add(xadv())
    a(f"v_lshlrev_b32 v{vWOFF}, 4, v{vLANE}")
    a(f"s_lshl_b32 s{sT0}, s{sET}, 2"); a(f"s_add_u32 s{sT0}, s{sT0}, s{sWAVE}"); a(f"s_mul_i32 s{sT0}, s{sT0}, {WSLICE}")
    a(f"s_add_u32 s{S_W}, s12, s{sT0}"); a(f"s_addc_u32 s{S_W+1}, s13, 0"); a(f"s_and_b32 s{S_W+1}, s{S_W+1}, 0xffff")
    a(f"s_mov_b32 s{S_W+2}, {WSLICE}"); a(f"s_mov_b32 s{S_W+3}, 0x00020000")
    a(f"s_mov_b32 s{sWOFF}, 0")
    for h in range(7):
        for eb in range(4): a.add(wload(h, eb))
        a(f"s_add_u32 s{sWOFF}, s{sWOFF}, 4096")
    a(f"s_mov_b32 s{S_O}, s8"); a(f"s_and_b32 s{S_O+1}, s9, 0xffff"); a(f"s_mov_b32 s{S_O+2}, 32768000"); a(f"s_mov_b32 s{S_O+3}, 0x00020000")
    tile_setup(a, 65, vXMn, vXHn, vOUT2)
    l2e = math.log2(math.e)
    for r, v in ((sC1, 2 * l2e), (sC2, -l2e), (sC1o, 2 * l2e * A_), (sC2o, -l2e * A_), (sONE, 1.0), (sK1, -0.375), (sK2, -1 / 3), (sM2, -2.0)):
        a(f"s_mov_b32 s{r}, {hx(v)}"); a(f"s_mov_b32 s{r+1}, {hx(v)}")
    a(f"s_mov_b32 s{sCL}, {hx(40.0)}"); a(f"s_mov_b32 s{sM25}, {hx(-2.5)}"); a(f"s_mov_b32 s{sMASK}, 0xffff0000")
    a(f"s_mov_b32 s{sT3}, {hx(A_)}")
    a(f"s_mov_b32 s{sB}, {hx(B_)}"); a(f"s_mov_b32 s{sNB}, {hx(-B_)}"); a(f"s_mov_b32 s{sNK}, -0.5")
    t = POOL
    a(f"s_lshl_b32 s{sT0}, s{sWAVE}, 14")
    a(f"v_add_u32 v{vTW}, s{sT0}, v{vWOFF}")
    a(f"v_and_b32 v{t[0]}, 15, v{vLANE}"); a(f"v_lshrrev_b32 v{t[1]}, 3, v{t[0]}"); a(f"v_mul_u32_u24 v{t[1]}, 3, v{t[1]}")
    a(f"v_lshrrev_b32 v{t[2]}, 4, v{vLANE}"); a(f"v_xor_b32 v{t[1]}, v{t[1]}, v{t[2]}")
    a(f"v_lshlrev_b32 v{t[0]}, 2, v{t[0]}"); a(f"v_add_u32 v{t[0]}, v{t[0]}, v{t[1]}"); a(f"v_lshlrev_b32 v{t[0]}, 4, v{t[0]}")
    a(f"v_xor_b32 v{vTR}, 0x10000, v{t[0]}")
    if o.get("trace"):
        a("s_add_u32 s80, s12, 0x800000"); a("s_addc_u32 s81, s13, 0"); a("s_and_b32 s81, s81, 0xffff")
        a("s_mov_b32 s82, 0x100000"); a("s_mov_b32 s83, 0x00020000")
        a("s_lshl_b32 s90, s2, 2"); a(f"s_add_u32 s90, s90, s{sWAVE}"); a("s_lshl_b32 s90, s90, 9")
        a(f"v_mov_b32 v{vLANE}, 0")
    for part in parts["pro"]:
        for g in part:
            if isinstance(g, tuple): a.wait(vm=[("X", s) for s in g[1]])
            else:
                for it in g: a.add(it)
    T0 = mk_T("T_pro", "AB", mfma=False)
    T0.items = [I(i.s, i.kind, i.tag) if isinstance(i, I) else Wt(i.vm, i.lg) for i in T0.items]
    for it in T0.items:
        if isinstance(it, I) and "LU" in it.s: raise RuntimeError("label in head")

    def ctl(name, L):
        p = Piece(name)
        for s in L: p(s)
        return p
    TR = []
    if o.get("trace"):
        TR = ["s_waitcnt lgkmcnt(0)", f"v_mov_b32 v{TMP8}, s86", f"v_mov_b32 v{TMP8+1}, s88",
              f"buffer_store_dwordx2 v[{TMP8}:{TMP8+1}], v{vLANE}, s[80:83], s90 offen", "s_add_u32 s90, s90, 8",
              "s_memtime s[86:87]", "s_memrealtime s[88:89]"]
    seq = [a, T0]
    for tile in range(3):
        for s in range(12):
            seq.append(M_ABf if s == 0 else (M_C if 7 <= s <= 10 else M_AB))
            seq.append(T_C if 6 <= s <= 9 else T_AB)
            if s == 3: seq.append(B1)
            if s == 7: seq.append(B2)
            if s == 11: seq.append(EP)
    simulate(seq)
    out = []
    emit(out, a); emit(out, T0)
    out.append("L_TILE:")
    out.append(f"    s_mov_b32 s{sSIG}, 0")
    out += ["    " + s for s in TR]
    emit(out, M_ABf)
    out.append("    s_branch L_TAB")
    out.append(".p2align 6\nL_MC:")
    out += ["    " + s for s in TR]
    emit(out, M_C)
    out += [f"    s_cmp_eq_u32 s{sSIG}, 10", "    s_cbranch_scc1 L_TAB"]
    out.append("L_TC:")
    emit(out, T_C)
    out += [f"    s_add_u32 s{sSIG}, s{sSIG}, 1", f"    s_cmp_lg_u32 s{sSIG}, 8", "    s_cbranch_scc1 L_MC"]
    emit(out, B2)
    out.append("    s_branch L_MC")
    out.append(".p2align 6\nL_MAB:")
    out += ["    " + s for s in TR]
    emit(out, M_AB)
    out += [f"    s_cmp_eq_u32 s{sSIG}, 6", "    s_cbranch_scc1 L_TC"]
    out.append("L_TAB:")
    emit(out, T_AB)
    out += [f"    s_add_u32 s{sSIG}, s{sSIG}, 1", f"    s_cmp_eq_u32 s{sSIG}, 12", "    s_cbranch_scc1 L_EPI",
            f"    s_cmp_lg_u32 s{sSIG}, 4", "    s_cbranch_scc1 L_MAB"]
    emit(out, B1)
    out.append("    s_branch L_MAB")
    out.append("L_EPI:")
    emit(out, EP)
    out += [f"    s_sub_u32 s{sNT}, s{sNT}, 1", f"    s_cmp_lg_u32 s{sNT}, 0", "    s_cbranch_scc1 L_TILE",
            "    s_waitcnt vmcnt(0) lgkmcnt(0)"]
    if o.get("trace"):
        out += ["    " + s for s in TR + TR[:4] + ["s_waitcnt vmcnt(0)"]]
    out += ["L_END:", "    s_endpgm"]
    return out

def kd(name, vg, sg, acco):
    return [".p2align 6", f".amdhsa_kernel {name}", f"  .amdhsa_next_free_vgpr {vg}", f"  .amdhsa_next_free_sgpr {sg}",
            f"  .amdhsa_accum_offset {acco}", "  .amdhsa_group_segment_fixed_size 0", "  .amdhsa_kernarg_size 40",
            "  .amdhsa_user_sgpr_count 2", "  .amdhsa_user_sgpr_kernarg_segment_ptr 1",
            "  .amdhsa_system_sgpr_workgroup_id_x 1", ".end_amdhsa_kernel"]

def main():
    o = {}
    for s in sys.argv[2:]:
        k, _, v = s.partition("=")
        o[k] = eval(v) if v else 1
    out = [HEADER,
           "; @launch kernel=wprep_kernel grid=(256,1,1) block=(128,1,1) lds=0",
           f"; @launch kernel={NAME}_kernel grid=(256,1,1) block=(256,1,1) lds={LDS_BYTES}",
           '.amdgcn_target "amdgcn-amd-amdhsa--gfx950"', ".text"]
    out += gen_main(o)
    emit(out, gen_wprep(o))
    out.append('.section .rodata,"a"')
    out += kd(NAME + "_kernel", 512, 96, 256)
    out += kd("wprep_kernel", 128, 40, 128)
    open(sys.argv[1], "w").write("\n".join(out) + "\n")

main()
```

```python
import sys, math, struct

NAME = "standalone__autoregressive_conv_wavernn__speech"
HEADER = """; Kernarg layout for this problem (40 bytes, ptrs only, base s[0:1]):
; Launch 2: persistent kernel: input transform (VALU) -> LDS -> MFMA, output transform, tanh*sigmoid."""

A_ = math.sqrt(0.5)
B_ = math.sqrt(2.0)

def f32(v):
    return struct.unpack("<I", struct.pack("<f", v))[0]
def hx(v):
    return f"{f32(v):#x}"

class I:
    __slots__ = ("s", "kind", "tag")
    def __init__(self, s, kind=None, tag=None):
        self.s, self.kind, self.tag = s, kind, tag
class Wt:
    __slots__ = ("vm", "lg", "nvm", "nlg")
    def __init__(self, vm=(), lg=()):
        self.vm, self.lg = list(vm), list(lg)
        self.nvm = None; self.nlg = None
    def text(self):
        p = []
        if self.nvm is not None: p.append(f"vmcnt({min(self.nvm, 63)})")
        if self.nlg is not None: p.append(f"lgkmcnt({min(self.nlg, 15)})")
        return "s_waitcnt " + " ".join(p) if p else None

class Piece:
    def __init__(self, name):
        self.name = name; self.items = []
    def __call__(self, s, kind=None, tag=None):
        self.items.append(I(s, kind, tag))
    def add(self, it):
        self.items.append(it)
    def label(self, s):
        self.items.append(I(s + ":"))
    def wait(self, vm=(), lg=()):
        w = Wt(vm, lg); self.items.append(w); return w

def simulate(seq):
    cnt = {"vm": 0, "lg": 0}
    last = {}
    for p in seq:
        for it in p.items:
            if isinstance(it, Wt):
                for kind, tags in (("vm", it.vm), ("lg", it.lg)):
                    for t in tags:
                        if (kind, t) in last:
                            n = cnt[kind] - last[(kind, t)]
                            cur = it.nvm if kind == "vm" else it.nlg
                            n = n if cur is None else min(cur, n)
                            if kind == "vm": it.nvm = n
                            else: it.nlg = n
                        else:
                            raise RuntimeError(f"tag {t} never issued before wait in {p.name}")
            elif it.kind:
                cnt[it.kind] += 1
                if it.tag is not None:
                    last[(it.kind, it.tag)] = cnt[it.kind]

DROP = []
def emit(out, p):
    for it in p.items:
        if isinstance(it, I) and p.name[:2] in ("M_", "T_") and p.name != "T_pro" and any(it.s.startswith(d) for d in DROP):
            continue
        if isinstance(it, Wt):
            t = it.text()
            if t: out.append("    " + t)
        elif it.s.endswith(":") or it.s.startswith("."):
            out.append(it.s)
        else:
            out.append("    " + it.s)

WSLICE = 3 * 16 * 2 * 4 * 1024
def gen_wprep(o):
    a = Piece("wprep")
    a(".globl wprep_kernel"); a(".p2align 8"); a(".type wprep_kernel,@function"); a.label("wprep_kernel")
    a("s_cmp_ge_u32 s2, 256")
    a("s_cbranch_scc1 WP_END")
    a("s_load_dwordx2 s[4:5], s[0:1], 8")
    a("s_load_dwordx2 s[6:7], s[0:1], 32")
    a("s_lshr_b32 s16, s2, 2")
    a("s_and_b32 s3, s2, 3")
    a("s_lshl_b32 s3, s3, 7")
    a("v_add_u32 v0, s3, v0")
    a("v_lshlrev_b32 v1, 2, v0")
    a("s_lshl_b32 s17, s16, 14")
    a("v_bfe_u32 v2, v0, 4, 4")
    a(f"s_mov_b32 s18, {WSLICE}")
    a("v_mul_lo_u32 v2, v2, s18")
    a("v_lshrrev_b32 v3, 8, v0"); a("v_lshlrev_b32 v3, 11, v3"); a("v_add_u32 v2, v2, v3")
    a("v_bfe_u32 v3, v0, 1, 1"); a("v_lshlrev_b32 v3, 10, v3"); a("v_add_u32 v2, v2, v3")
    a("v_bfe_u32 v3, v0, 2, 2"); a("v_lshlrev_b32 v3, 6, v3"); a("v_add_u32 v2, v2, v3")
    a("v_and_b32 v3, 1, v0"); a("v_lshlrev_b32 v3, 5, v3"); a("v_add_u32 v2, v2, v3")
    a("s_lshr_b32 s19, s16, 2")
    a("s_lshl_b32 s19, s19, 13")
    a("s_and_b32 s20, s16, 3"); a("s_lshl_b32 s20, s20, 8"); a("s_add_u32 s19, s19, s20")
    a("s_mov_b32 s21, 0x05040100"); a("s_mov_b32 s22, 0x07060302"); a("s_mov_b32 s23, 0xffff0000")
    ca = -1 / 1.5
    consts = dict(ca=ca, caa=ca * A_, ncaa=-ca * A_, b=B_, nb=-B_, c3=1.5 / 6, c4=(4 / 3) / 6, q=0.25)
    sr = {}
    for n, (k, v) in enumerate(consts.items()):
        sr[k] = 24 + n
        a(f"s_mov_b32 s{24+n}, {hx(v)}")
    a("s_waitcnt lgkmcnt(0)")
    a("s_mov_b32 s8, s4"); a("s_and_b32 s9, s5, 0xffff"); a("s_mov_b32 s10, 5242880"); a("s_mov_b32 s11, 0x00020000")
    a("s_mov_b32 s12, s6"); a("s_and_b32 s13, s7, 0xffff"); a(f"s_mov_b32 s14, {16*WSLICE}"); a("s_mov_b32 s15, 0x00020000")
    RAW = 8
    for m in range(8):
        for i in range(5):
            a(f"s_add_u32 s32, s17, {i*1048576 + (m//2)*4096}")
            a(f"buffer_load_dword v{RAW+m*5+i}, v1, s[8:11], s32 offen offset:{(m%2)*2048}")
    OUT = 48
    TMP = 96
    def o_(k, col, n): return OUT + (k * 2 + col) * 4 + n
    for n in range(4):
        a(f"s_waitcnt vmcnt({30-10*n})")
        res = {}
        for mm in range(2):
            m = 2 * n + mm
            for col in range(2):
                base = TMP + (mm * 2 + col) * 8
                g = [base + i for i in range(5)]
                for i in range(5):
                    src = RAW + m * 5 + i
                    a(f"v_lshlrev_b32 v{g[i]}, 16, v{src}" if col == 0 else f"v_and_b32 v{g[i]}, s23, v{src}")
                t0, t1, t2 = base + 5, base + 6, base + 7
                a(f"v_fma_f32 v{t0}, 0.5, v{g[2]}, v{g[0]}")
                a(f"v_fma_f32 v{t1}, 0.5, v{g[3]}, v{g[1]}")
                a(f"v_fmac_f32 v{t0}, s{sr['q']}, v{g[4]}")
                a(f"v_fmac_f32 v{g[0]}, 2.0, v{g[2]}")
                a(f"v_fmac_f32 v{g[1]}, 2.0, v{g[3]}")
                a(f"v_mul_f32 v{t0}, s{sr['ca']}, v{t0}")
                a(f"v_fmac_f32 v{g[0]}, 4.0, v{g[4]}")
                a(f"v_mul_f32 v{g[4]}, s{sr['b']}, v{g[4]}")
                a(f"v_fma_f32 v{t2}, s{sr['caa']}, v{t1}, v{t0}")
                a(f"v_fmac_f32 v{t0}, s{sr['ncaa']}, v{t1}")
                a(f"v_fma_f32 v{g[2]}, s{sr['b']}, v{g[1]}, v{g[0]}")
                a(f"v_fmac_f32 v{g[0]}, s{sr['nb']}, v{g[1]}")
                a(f"v_mul_f32 v{g[2]}, s{sr['c3']}, v{g[2]}")
                a(f"v_mul_f32 v{g[0]}, s{sr['c4']}, v{g[0]}")
                res[(mm, col)] = [g[2], g[0], t2, t0, None, g[4]]
        for col in range(2):
            for k in range(6):
                if k == 4:
                    a(f"v_perm_b32 v{o_(4,col,n)}, v{RAW+(2*n+1)*5}, v{RAW+(2*n)*5}, s{21+col}")
                else:
                    a(f"v_cvt_pk_bf16_f32 v{o_(k,col,n)}, v{res[(0,col)][k]}, v{res[(1,col)][k]}")
    for k in range(6):
        a(f"s_add_u32 s32, s19, {(k//2)*16*8192 + (k%2)*4096}")
        for col in range(2):
            a(f"buffer_store_dwordx4 v[{o_(k,col,0)}:{o_(k,col,3)}], v2, s[12:15], s32 offen offset:{col*16}")
    a("s_waitcnt vmcnt(0)")
    a.label("WP_END")
    a("s_endpgm")
    return a

LDS_BYTES = 131072
S_X, S_W, S_O = 16, 20, 24
sWAVE, sET, sSIG, sWOFF, sXO, sXS, sUN, sNT = 28, 29, 30, 31, 32, 33, 34, 35
sB, sNB, sNK, sM25, sMASK = 36, 37, 38, 39, 40
sC1, sC2, sC1o, sC2o, sONE, sK1, sK2, sM2, sCL = 42, 44, 46, 48, 50, 52, 54, 56, 58
sT0, sT1, sT2, sT3, sSO = 60, 61, 62, 63, 59
vWOFF, vXM, vXH, vX2, vXMn, vXHn, vTR, vTW, vOUT, vOUT2, vLANE = 1, 2, 3, 4, 5, 6, 7, 8, 9, 10, 11
OUTQ = 12
POOL = list(range(24, 48))
TMP8 = 48
RAWB = 56
NRAW = 10
ACCV = 96
def acc(jp, uv, eb):
    idx = (jp * 2 + uv) * 4 + eb
    if idx < 40: return ("v", ACCV + idx * 4)
    return ("a", (idx - 40) * 4)
def R(t, b, n=4): return f"{t}[{b}:{b+n-1}]"
def Wr(h, eb): return R("a", 96 + (h * 4 + eb) * 4)
def Tr(s): return R("a", 224 + s * 4)
def raw(slot): return RAWB + slot * 4

class Pool:
    def __init__(self): self.free = list(POOL); self.hi = 0
    def get(self):
        r = self.free.pop(0); self.hi = max(self.hi, len(POOL) - len(self.free)); return r
    def put(self, *rs):
        self.free.extend(rs)

def xload(slot, vaddr):
    r = raw(slot)
    return I(f"buffer_load_dwordx4 v[{r}:{r+3}], v{vaddr}, s[{S_X}:{S_X+3}], s{sXO} offen", "vm", ("X", slot))
def xadv():
    return I(f"s_add_u32 s{sXO}, s{sXO}, s{sXS}")

def next_unit_setup():
    L = []
    a = lambda s: L.append(I(s))
    a(f"s_add_u32 s{sUN}, s{sUN}, 1")
    a(f"s_cmp_eq_u32 s{sUN}, 12")
    a(f"s_cselect_b32 s{sUN}, 0, s{sUN}")
    a("s_cbranch_scc0 {L}_a")
    a(f"v_mov_b32 v{vXM}, v{vXMn}")
    a(f"v_mov_b32 v{vXH}, v{vXHn}")
    a("{L}_a:")
    a(f"s_lshl_b32 s{sXO}, s{sUN}, 2")
    a(f"s_add_u32 s{sXO}, s{sXO}, s{sWAVE}")
    a(f"s_and_b32 s{sXO}, s{sXO}, 15")
    a(f"s_lshl_b32 s{sXO}, s{sXO}, 6")
    a(f"v_mov_b32 v{vX2}, v{vXM}")
    a(f"s_mov_b32 s{sXS}, 4096")
    a(f"s_cmp_ge_u32 s{sUN}, 8")
    a("s_cbranch_scc1 {L}_b")
    a(f"v_mov_b32 v{vX2}, v{vXH}")
    a(f"s_mov_b32 s{sXS}, 2048")
    a(f"s_add_u32 s{sXO}, s{sXO}, 2048")
    a("{L}_b:")
    return L

_lab = [0]
def fresh(L):
    _lab[0] += 1
    n = f"LU{_lab[0]}"
    return [[I(i.s.replace("{L}", n), i.kind, i.tag) for i in L]]

def unit_stream(typ):
    S = []
    pool = Pool()
    def op(s, kind=None, tag=None): S.append([I(s, kind, tag)])
    nrows = 18 if typ == "AB" else 20
    loads_done = [0]
    def consumed(k):
        freed.add(k % NRAW if False else k)
        while True:
            n = loads_done[0] + NRAW
            if n < nrows:
                prev = n - NRAW
                if prev not in freed: break
                if typ == "C" and n == 10:
                    op(f"s_sub_u32 s{sXO}, s{sXO}, {19*2048}")
                va = vXH if (typ == "C" and n in (10, 11)) else vXM
                S.append([xload(n % NRAW, va), xadv()])
            else:
                kk = n - nrows
                if kk >= NRAW: break
                prev = max(r for r in range(nrows) if r % NRAW == kk)
                if prev not in freed: break
                if kk == 0:
                    S.extend(fresh(next_unit_setup()))
                va = vXH if kk < 2 else (vX2 if kk == 2 else vXM)
                S.append([xload(kk, va), xadv()])
            loads_done[0] += 1
    freed = set()
    oq = [0]
    def unp(dst, src, half):
        op(f"v_lshlrev_b32 v{dst}, 16, v{src}" if half == 0 else f"v_and_b32 v{dst}, s{sMASK}, v{src}")
    def newq():
        q = OUTQ + 4 * (oq[0] % 3); oq[0] += 1; return q
    def twrite(q, kk, jp):
        op(f"ds_write_b128 v{vTW}, v[{q}:{q+3}] offset:{(kk*8+jp)*1024}", "lg", "TW")
    if typ == "AB":
        P = [None] * 8; M = [None] * 8
        for n in range(9):
            k3, k4 = 2 * n, 2 * n + 1
            S.append(("need", [k3 % NRAW, k4 % NRAW]))
            r3, r4 = raw(k3 % NRAW), raw(k4 % NRAW)
            if n: qa, qb = newq(), newq()
            for dw in range(4):
                t3 = [pool.get(), pool.get()]; t4 = [pool.get(), pool.get()]
                for h in range(2): unp(t3[h], r3 + dw, h)
                for h in range(2): unp(t4[h], r4 + dw, h)
                if dw == 3:
                    consumed(k3); consumed(k4)
                p = [pool.get(), pool.get()]
                for h in range(2): op(f"v_fma_f32 v{p[h]}, s{sB}, v{t3[h]}, v{t4[h]}")
                for h in range(2): op(f"v_fmac_f32 v{t4[h]}, s{sNB}, v{t3[h]}")
                pool.put(*t3)
                if n:
                    for h in range(2): op(f"v_fma_f32 v{P[2*dw+h]}, s{sNK}, v{P[2*dw+h]}, v{p[h]}")
                    for h in range(2): op(f"v_fma_f32 v{M[2*dw+h]}, s{sNK}, v{M[2*dw+h]}, v{t4[h]}")
                    op(f"v_cvt_pk_bf16_f32 v{qa+dw}, v{P[2*dw]}, v{P[2*dw+1]}")
                    op(f"v_cvt_pk_bf16_f32 v{qb+dw}, v{M[2*dw]}, v{M[2*dw+1]}")
                    pool.put(P[2*dw], P[2*dw+1], M[2*dw], M[2*dw+1])
                for h in range(2): P[2*dw+h] = p[h]; M[2*dw+h] = t4[h]
            if n:
                twrite(qa, 0, n - 1); twrite(qb, 1, n - 1)
        pool.put(*P); pool.put(*M)
    else:
        for par in range(2):
            Q = [None] * 8; prev = [None] * 8
            for n in range(10):
                k = par * 10 + n
                S.append(("need", [k % NRAW]))
                r = raw(k % NRAW)
                if n >= 2: q = newq()
                for dw2 in range(2):
                    e = [pool.get() for _ in range(4)]
                    for x in range(4): unp(e[x], r + 2 * dw2 + x // 2, x % 2)
                    if dw2 == 1: consumed(k)
                    c0 = 4 * dw2
                    if n >= 2:
                        for x in range(4): op(f"v_add_f32 v{Q[c0+x]}, v{Q[c0+x]}, v{e[x]}")
                    if 1 <= n <= 8:
                        for x in range(4): op(f"v_fmac_f32 v{prev[c0+x]}, s{sM25}, v{e[x]}")
                    if n >= 2:
                        for x in range(2): op(f"v_cvt_pk_bf16_f32 v{q+2*dw2+x}, v{Q[c0+2*x]}, v{Q[c0+2*x+1]}")
                        pool.put(*Q[c0:c0+4])
                    if n == 9:
                        pool.put(*prev[c0:c0+4]); pool.put(*e)
                    else:
                        for x in range(4):
                            if n >= 1: Q[c0+x] = prev[c0+x]
                            prev[c0+x] = e[x]
                if n >= 2: twrite(q, par, n - 2)
    assert loads_done[0] + NRAW == nrows + NRAW, loads_done
    assert len(pool.free) == len(POOL)
    return S, pool.hi

def cost(g):
    if isinstance(g, tuple): return 0
    c = 0
    for i in g:
        if i.s.endswith(":"): continue
        c += 3 if i.s.startswith("ds_write") else 1
    return c

def split_stream(S, ngroups, weights=None):
    tot = sum(cost(g) for g in S)
    w = weights or [1.0] * ngroups
    cum = [sum(w[:i + 1]) / sum(w) * tot for i in range(ngroups)]
    parts = [[] for _ in range(ngroups)]
    acc_ = 0; gi = 0
    for g in S:
        c = cost(g)
        while gi < ngroups - 1 and acc_ + c / 2 > cum[gi] and not isinstance(g, tuple): gi += 1
        parts[gi].append(g); acc_ += c
    for i in range(ngroups - 1):
        while parts[i] and isinstance(parts[i][-1], tuple):
            parts[i + 1].insert(0, parts[i].pop())
    return parts

def wload(h, eb):
    return I(f"buffer_load_dwordx4 {Wr(h, eb)}, v{vWOFF}, s[{S_W}:{S_W+3}], s{sWOFF} offen offset:{eb*1024}", "vm", ("W", h))
def tread(G, f):
    G %= 16
    cp, kk, jp = G >> 2, (G >> 1) & 1, 4 * (G & 1) + f
    s = (G & 1) * 4 + f
    return I(f"ds_read_b128 {Tr(s)}, v{vTR} offset:{cp*16384 + (kk*8+jp)*1024}", "lg", ("T", s))

def group(p, G, part, o, first=False, mfma=True, extra_pre=(), wl=True):
    h = G >> 1
    needx = [("X", s) for g in part if isinstance(g, tuple) for s in g[1]]
    vm = list(needx)
    lg = []
    if mfma:
        if G % 2 == 0: vm.append(("W", h))
        lg = [("T", (G & 1) * 4 + 3)]
    for it in extra_pre: p.add(it)
    if vm or lg: p.wait(vm, lg)
    fixed = {k: [] for k in range(16)}
    for f in range(4):
        fixed[4 * f + 3].append([tread(G + 2, f)])
    hp = (h - 1) % 8
    if wl:
        if G % 2 == 0:
            if hp == 0:
                fixed[0].append([I(f"s_cmp_eq_u32 s{sWOFF}, {WSLICE}"), I(f"s_cselect_b32 s{sWOFF}, 0, s{sWOFF}")])
            fixed[1].append([wload(hp, 0)]); fixed[9].append([wload(hp, 1)])
        else:
            fixed[1].append([wload(hp, 2)]); fixed[9].append([wload(hp, 3), I(f"s_add_u32 s{sWOFF}, s{sWOFF}, 4096")])
    ops = [g for g in part if not isinstance(g, tuple)]
    tot = sum(cost(g) for g in ops) + sum(cost(g) for v in fixed.values() for g in v)
    done = 0.0; oi = 0
    for k in range(16):
        jp, eb, kk = 4 * (G & 1) + k // 4, k % 4, (G >> 1) & 1
        if mfma:
            t, b = acc(jp, kk, eb)
            c = "0" if (first and G < 4) else R(t, b)
            if o.get("mf32"):
                if k % 2 == 0:
                    idx = ((jp * 2 + kk) * 4 + eb) // 4
                    t, b = ("v", ACCV + idx * 16) if idx < 10 else ("a", (idx - 10) * 16)
                    c = "0" if (first and G < 4 and k % 4 == 0) else R(t, b, 16)
                    p(f"v_mfma_f32_32x32x16_bf16 {R(t, b, 16)}, {Wr(h, eb)}, {Tr((G&1)*4 + k//4)}, {c}")
            else:
                p(f"v_mfma_f32_16x16x32_bf16 {R(t, b)}, {Wr(h, eb)}, {Tr((G&1)*4 + k//4)}, {c}")
        for g in fixed[k]:
            for it in g: p.add(it)
            done += cost(g)
        target = tot * (k + 1) / 16
        while oi < len(ops) and (done + cost(ops[oi]) / 2 <= target or k == 15):
            for it in ops[oi]: p.add(it)
            done += cost(ops[oi]); oi += 1

def tail_pre(typ):
    L = [Wt(lg=["TW"]), I("s_barrier"), I(f"v_xor_b32 v{vTR}, 0x10000, v{vTR}"), I(f"v_xor_b32 v{vTW}, 0x10000, v{vTW}")]
    if typ == "AB":
        L += [I(f"s_cmp_lt_u32 s{sUN}, 4"),
              I(f"s_cselect_b32 s{sB}, {hx(B_)}, s{sT3}"),
              I(f"s_cselect_b32 s{sNK}, -0.5, -2.0"),
              I(f"s_xor_b32 s{sNB}, s{sB}, 0x80000000")]
    return L

def rowbytes(a, vU, vD, vt):
    a(f"v_lshlrev_b32 v{vD}, 1, v{vU}")
    for thr, adj in ((8000, 15999), (16000, 1), (24000, 15999)):
        a(f"v_cmp_le_u32 vcc, {thr}, v{vU}")
        a(f"v_mov_b32 v{vt}, {adj}")
        a("s_nop 1")
        a(f"v_cndmask_b32 v{vt}, 0, v{vt}, vcc")
        a(f"v_sub_u32 v{vD}, v{vD}, v{vt}")
    a(f"v_lshlrev_b32 v{vD}, 10, v{vD}")

def tile_setup(a, sTT, vxm, vxh, vout):
    t = POOL
    a(f"s_lshl_b32 s{sT0}, s{sTT}, 8")
    a(f"v_lshrrev_b32 v{t[0]}, 2, v{vLANE}")
    a(f"v_lshlrev_b32 v{t[1]}, 4, v{t[0]}")
    a(f"v_add_u32 v{t[1]}, s{sT0}, v{t[1]}")
    rowbytes(a, t[1], t[2], t[3])
    a(f"v_lshrrev_b32 v{t[3]}, 5, v{vLANE}")
    a(f"v_mul_u32_u24 v{t[3]}, 3, v{t[3]}")
    a(f"v_and_b32 v{t[4]}, 3, v{vLANE}")
    a(f"v_xor_b32 v{t[3]}, v{t[3]}, v{t[4]}")
    a(f"v_lshlrev_b32 v{t[3]}, 4, v{t[3]}")
    a(f"v_add_u32 v{vxm}, v{t[2]}, v{t[3]}")
    a(f"v_mov_b32 v{vxh}, v{vxm}")
    a(f"v_mov_b32 v{t[4]}, 0x70000000")
    for thr in (0, 8000, 16000, 24000):
        a(f"v_cmp_eq_u32 vcc, {thr}, v{t[1]}")
        a("s_nop 1")
        a(f"v_cndmask_b32 v{vxh}, v{vxh}, v{t[4]}, vcc")
    a(f"v_and_b32 v{t[0]}, 15, v{vLANE}")
    a(f"v_lshlrev_b32 v{t[1]}, 4, v{t[0]}")
    a(f"v_add_u32 v{t[1]}, s{sT0}, v{t[1]}")
    rowbytes(a, t[1], t[2], t[3])
    a(f"v_lshrrev_b32 v{t[3]}, 4, v{vLANE}")
    a(f"v_lshlrev_b32 v{t[3]}, 4, v{t[3]}")
    a(f"v_add_u32 v{t[2]}, v{t[2]}, v{t[3]}")
    a(f"s_lshl_b32 s{sT1}, s{sET}, 8")
    a(f"s_lshl_b32 s{sT2}, s{sWAVE}, 6")
    a(f"s_add_u32 s{sT1}, s{sT1}, s{sT2}")
    a(f"v_add_u32 v{vout}, s{sT1}, v{t[2]}")

P2 = lambda r: f"v[{r}:{r+1}]"
def bfly(name, which):
    a = Piece(name)
    a("s_nop 7")
    tq = [TMP8, TMP8 + 4]
    def two(u, v):
        for x in (0, 2):
            for uu, vv in zip(u, v):
                if which == 1: a(f"v_pk_fma_f32 {P2(uu+x)}, {P2(vv+x)}, s[{sK1}:{sK1+1}], {P2(uu+x)}")
                else: a(f"v_pk_add_f32 {P2(uu+x)}, {P2(uu+x)}, {P2(vv+x)}")
        for x in (0, 2):
            for uu, vv in zip(u, v):
                if which == 1: a(f"v_pk_fma_f32 {P2(vv+x)}, {P2(uu+x)}, s[{sK2}:{sK2+1}], {P2(vv+x)}")
                else: a(f"v_pk_fma_f32 {P2(vv+x)}, {P2(vv+x)}, s[{sM2}:{sM2+1}], {P2(uu+x)}")
    for jp in range(5):
        two([acc(jp, 0, eb)[1] for eb in range(4)], [acc(jp, 1, eb)[1] for eb in range(4)])
    for jp in range(5, 8):
        for eb in range(4):
            ua, va = acc(jp, 0, eb)[1], acc(jp, 1, eb)[1]
            for x in range(4): a(f"v_accvgpr_read_b32 v{tq[0]+x}, a{ua+x}")
            for x in range(4): a(f"v_accvgpr_read_b32 v{tq[1]+x}, a{va+x}")
            two([tq[0]], [tq[1]])
            for x in range(4): a(f"v_accvgpr_write_b32 a{ua+x}, v{tq[0]+x}")
            for x in range(4): a(f"v_accvgpr_write_b32 a{va+x}, v{tq[1]+x}")
    a("s_nop 1")
    return a

def epilogue(o):
    a = Piece("epi")
    a("s_nop 7")
    a(f"s_mov_b32 s{sSO}, 0")
    for j in range(16):
        jp, uv = j >> 1, j & 1
        regs = []
        for eb in range(4):
            t, b = acc(jp, uv, eb)
            if t == "a":
                nb = acc(jp - 5, uv, eb)[1]
                for r in range(4): a(f"v_accvgpr_read_b32 v{nb+r}, a{b+r}")
                b = nb
            regs.append(b)
        tb = TMP8 if j == 0 else prev_g
        oq = tb
        prs = [(regs[h] + 2 * p, regs[2 + h] + 2 * p, tb + 2 * (2 * h + p)) for h in range(2) for p in range(2)]
        prev_g, prev_f = regs[2], regs[0]
        assert regs[3] == regs[2] + 4
        c1, c2 = (sC1, sC2) if uv == 0 else (sC1o, sC2o)
        for f, g, t in prs: a(f"v_pk_mul_f32 {P2(f)}, {P2(f)}, s[{c1}:{c1+1}]")
        for f, g, t in prs: a(f"v_pk_mul_f32 {P2(g)}, {P2(g)}, s[{c2}:{c2+1}]")
        for f, g, t in prs:
            a(f"v_min_f32 v{f}, s{sCL}, v{f}"); a(f"v_min_f32 v{f+1}, s{sCL}, v{f+1}")
        for f, g, t in prs:
            a(f"v_exp_f32 v{g}, v{g}"); a(f"v_exp_f32 v{g+1}, v{g+1}")
        for f, g, t in prs:
            a(f"v_exp_f32 v{f}, v{f}"); a(f"v_exp_f32 v{f+1}, v{f+1}")
        for f, g, t in prs: a(f"v_pk_add_f32 {P2(t)}, {P2(f)}, s[{sONE}:{sONE+1}]")
        for f, g, t in prs: a(f"v_pk_fma_f32 {P2(g)}, {P2(t)}, {P2(g)}, {P2(t)}")
        for f, g, t in prs:
            a(f"v_rcp_f32 v{g}, v{g}"); a(f"v_rcp_f32 v{g+1}, v{g+1}")
        for f, g, t in prs: a(f"v_pk_add_f32 {P2(f)}, {P2(f)}, s[{sONE}:{sONE+1}] neg_lo:[0,1] neg_hi:[0,1]")
        for f, g, t in prs: a(f"v_pk_mul_f32 {P2(f)}, {P2(f)}, {P2(g)}")
        for n, (f, g, t) in enumerate(prs): a(f"v_cvt_pk_bf16_f32 v{oq+n}, v{f}, v{f+1}")
        a(f"buffer_store_dwordx4 v[{oq}:{oq+3}], v{vOUT}, s[{S_O}:{S_O+3}], s{sSO} offen offset:{(j&1)*2048}", "vm")
        if j & 1: a(f"s_add_u32 s{sSO}, s{sSO}, 4096")
    a(f"v_mov_b32 v{vOUT}, v{vOUT2}")
    return a

def gen_main(o):
    K = NAME + "_kernel"
    wts = o.get("wts")
    parts = {}
    for typ in ("AB", "ABf", "C", "pro"):
        S, hi = unit_stream("C" if typ == "C" else "AB")
        parts[typ] = split_stream(S, 16, wts)
    def mk_M(name, typ, first):
        p = Piece(name)
        for G in range(14):
            group(p, G, parts[typ][G + 2], o, first=first)
        return p
    def mk_T(name, typ, mfma=True):
        p = Piece(name)
        for G in (14, 15):
            group(p, G, parts[typ][G - 14], o, mfma=mfma, extra_pre=tail_pre(typ) if G == 14 else (), wl=mfma)
        return p
    M_AB, M_ABf, M_C = mk_M("M_AB", "AB", False), mk_M("M_ABf", "ABf", True), mk_M("M_C", "C", False)
    T_AB, T_C = mk_T("T_AB", "AB"), mk_T("T_C", "C")
    B1, B2, EP = bfly("b1", 1), bfly("b2", 2), epilogue(o)

    a = Piece("pro")
    a(f".globl {K}"); a(".p2align 8"); a(f".type {K},@function"); a.label(K)
    a("s_cmp_ge_u32 s2, 256")
    a("s_cbranch_scc1 L_END")
    a("s_load_dwordx8 s[4:11], s[0:1], 0")
    a("s_load_dwordx2 s[12:13], s[0:1], 32")
    if o.get("trace"):
        a("s_memtime s[86:87]"); a("s_memrealtime s[88:89]")
    a("v_lshrrev_b32 v1, 6, v0")
    a(f"v_and_b32 v{vLANE}, 63, v0")
    a("s_nop 0")
    a(f"v_readfirstlane_b32 s{sWAVE}, v1")
    a("s_and_b32 s64, s2, 7"); a("s_lshr_b32 s65, s2, 3")
    a("s_and_b32 s66, s64, 1"); a("s_lshl_b32 s66, s66, 1")
    a(f"s_and_b32 s{sET}, s65, 1"); a(f"s_add_u32 s{sET}, s{sET}, s66")
    a("s_lshr_b32 s64, s64, 1"); a("s_lshr_b32 s65, s65, 1")
    a("s_mul_i32 s66, s64, 31")
    a("s_cmp_eq_u32 s64, 0"); a("s_cselect_b32 s67, 0, 1")
    a("s_add_u32 s66, s66, s67"); a("s_add_u32 s66, s66, s65")
    a("s_sub_u32 s67, 16, s67")
    a("s_cmp_lt_u32 s65, s67")
    a(f"s_cselect_b32 s{sNT}, 2, 1"); a("s_cselect_b32 s65, 16, 0")
    a("s_add_u32 s65, s66, s65")
    tile_setup(a, 66, vXM, vXH, vOUT)
    a("s_waitcnt lgkmcnt(0)")
    a(f"s_sub_u32 s{S_X}, s4, 8192"); a(f"s_subb_u32 s{S_X+1}, s5, 0"); a(f"s_and_b32 s{S_X+1}, s{S_X+1}, 0xffff")
    a(f"s_mov_b32 s{S_X+2}, {32768000+8192}"); a(f"s_mov_b32 s{S_X+3}, 0x00020000")
    a(f"s_mov_b32 s{sUN}, 0")
    a(f"s_lshl_b32 s{sXO}, s{sWAVE}, 6"); a(f"s_add_u32 s{sXO}, s{sXO}, 2048"); a(f"s_mov_b32 s{sXS}, 2048")
    for k in range(NRAW):
        a.add(xload(k, vXH if k < 3 else vXM)); a.add(xadv())
    a(f"v_lshlrev_b32 v{vWOFF}, 4, v{vLANE}")
    a(f"s_lshl_b32 s{sT0}, s{sET}, 2"); a(f"s_add_u32 s{sT0}, s{sT0}, s{sWAVE}"); a(f"s_mul_i32 s{sT0}, s{sT0}, {WSLICE}")
    a(f"s_add_u32 s{S_W}, s12, s{sT0}"); a(f"s_addc_u32 s{S_W+1}, s13, 0"); a(f"s_and_b32 s{S_W+1}, s{S_W+1}, 0xffff")
    a(f"s_mov_b32 s{S_W+2}, {WSLICE}"); a(f"s_mov_b32 s{S_W+3}, 0x00020000")
    a(f"s_mov_b32 s{sWOFF}, 0")
    for h in range(7):
        for eb in range(4): a.add(wload(h, eb))
        a(f"s_add_u32 s{sWOFF}, s{sWOFF}, 4096")
    a(f"s_mov_b32 s{S_O}, s8"); a(f"s_and_b32 s{S_O+1}, s9, 0xffff"); a(f"s_mov_b32 s{S_O+2}, 32768000"); a(f"s_mov_b32 s{S_O+3}, 0x00020000")
    tile_setup(a, 65, vXMn, vXHn, vOUT2)
    l2e = math.log2(math.e)
    for r, v in ((sC1, 2 * l2e), (sC2, -l2e), (sC1o, 2 * l2e * A_), (sC2o, -l2e * A_), (sONE, 1.0), (sK1, -0.375), (sK2, -1 / 3), (sM2, -2.0)):
        a(f"s_mov_b32 s{r}, {hx(v)}"); a(f"s_mov_b32 s{r+1}, {hx(v)}")
    a(f"s_mov_b32 s{sCL}, {hx(40.0)}"); a(f"s_mov_b32 s{sM25}, {hx(-2.5)}"); a(f"s_mov_b32 s{sMASK}, 0xffff0000")
    a(f"s_mov_b32 s{sT3}, {hx(A_)}")
    a(f"s_mov_b32 s{sB}, {hx(B_)}"); a(f"s_mov_b32 s{sNB}, {hx(-B_)}"); a(f"s_mov_b32 s{sNK}, -0.5")
    t = POOL
    a(f"s_lshl_b32 s{sT0}, s{sWAVE}, 14")
    a(f"v_add_u32 v{vTW}, s{sT0}, v{vWOFF}")
    a(f"v_and_b32 v{t[0]}, 15, v{vLANE}"); a(f"v_lshrrev_b32 v{t[1]}, 3, v{t[0]}"); a(f"v_mul_u32_u24 v{t[1]}, 3, v{t[1]}")
    a(f"v_lshrrev_b32 v{t[2]}, 4, v{vLANE}"); a(f"v_xor_b32 v{t[1]}, v{t[1]}, v{t[2]}")
    a(f"v_lshlrev_b32 v{t[0]}, 2, v{t[0]}"); a(f"v_add_u32 v{t[0]}, v{t[0]}, v{t[1]}"); a(f"v_lshlrev_b32 v{t[0]}, 4, v{t[0]}")
    a(f"v_xor_b32 v{vTR}, 0x10000, v{t[0]}")
    if o.get("trace"):
        a("s_add_u32 s80, s12, 0x800000"); a("s_addc_u32 s81, s13, 0"); a("s_and_b32 s81, s81, 0xffff")
        a("s_mov_b32 s82, 0x100000"); a("s_mov_b32 s83, 0x00020000")
        a("s_lshl_b32 s90, s2, 2"); a(f"s_add_u32 s90, s90, s{sWAVE}"); a("s_lshl_b32 s90, s90, 9")
        a(f"v_mov_b32 v{vLANE}, 0")
    for part in parts["pro"]:
        for g in part:
            if isinstance(g, tuple): a.wait(vm=[("X", s) for s in g[1]])
            else:
                for it in g: a.add(it)
    T0 = mk_T("T_pro", "AB", mfma=False)
    T0.items = [I(i.s, i.kind, i.tag) if isinstance(i, I) else Wt(i.vm, i.lg) for i in T0.items]
    for it in T0.items:
        if isinstance(it, I) and "LU" in it.s: raise RuntimeError("label in head")

    def ctl(name, L):
        p = Piece(name)
        for s in L: p(s)
        return p
    TR = []
    if o.get("trace"):
        TR = ["s_waitcnt lgkmcnt(0)", f"v_mov_b32 v{TMP8}, s86", f"v_mov_b32 v{TMP8+1}, s88",
              f"buffer_store_dwordx2 v[{TMP8}:{TMP8+1}], v{vLANE}, s[80:83], s90 offen", "s_add_u32 s90, s90, 8",
              "s_memtime s[86:87]", "s_memrealtime s[88:89]"]
    seq = [a, T0]
    for tile in range(3):
        for s in range(12):
            seq.append(M_ABf if s == 0 else (M_C if 7 <= s <= 10 else M_AB))
            seq.append(T_C if 6 <= s <= 9 else T_AB)
            if s == 3: seq.append(B1)
            if s == 7: seq.append(B2)
            if s == 11: seq.append(EP)
    simulate(seq)
    out = []
    emit(out, a); emit(out, T0)
    out.append("L_TILE:")
    out.append(f"    s_mov_b32 s{sSIG}, 0")
    out += ["    " + s for s in TR]
    emit(out, M_ABf)
    out.append("    s_branch L_TAB")
    out.append(".p2align 6\nL_MC:")
    out += ["    " + s for s in TR]
    emit(out, M_C)
    out += [f"    s_cmp_eq_u32 s{sSIG}, 10", "    s_cbranch_scc1 L_TAB"]
    out.append("L_TC:")
    emit(out, T_C)
    out += [f"    s_add_u32 s{sSIG}, s{sSIG}, 1", f"    s_cmp_lg_u32 s{sSIG}, 8", "    s_cbranch_scc1 L_MC"]
    emit(out, B2)
    out.append("    s_branch L_MC")
    out.append(".p2align 6\nL_MAB:")
    out += ["    " + s for s in TR]
    emit(out, M_AB)
    out += [f"    s_cmp_eq_u32 s{sSIG}, 6", "    s_cbranch_scc1 L_TC"]
    out.append("L_TAB:")
    emit(out, T_AB)
    out += [f"    s_add_u32 s{sSIG}, s{sSIG}, 1", f"    s_cmp_eq_u32 s{sSIG}, 12", "    s_cbranch_scc1 L_EPI",
            f"    s_cmp_lg_u32 s{sSIG}, 4", "    s_cbranch_scc1 L_MAB"]
    emit(out, B1)
    out.append("    s_branch L_MAB")
    out.append("L_EPI:")
    emit(out, EP)
    out += [f"    s_sub_u32 s{sNT}, s{sNT}, 1", f"    s_cmp_lg_u32 s{sNT}, 0", "    s_cbranch_scc1 L_TILE",
            "    s_waitcnt vmcnt(0) lgkmcnt(0)"]
    if o.get("trace"):
        out += ["    " + s for s in TR + TR[:4] + ["s_waitcnt vmcnt(0)"]]
    out += ["L_END:", "    s_endpgm"]
    return out

def kd(name, vg, sg, acco):
    return [".p2align 6", f".amdhsa_kernel {name}", f"  .amdhsa_next_free_vgpr {vg}", f"  .amdhsa_next_free_sgpr {sg}",
            f"  .amdhsa_accum_offset {acco}", "  .amdhsa_group_segment_fixed_size 0", "  .amdhsa_kernarg_size 40",
            "  .amdhsa_user_sgpr_count 2", "  .amdhsa_user_sgpr_kernarg_segment_ptr 1",
            "  .amdhsa_system_sgpr_workgroup_id_x 1", ".end_amdhsa_kernel"]

def main():
    o = {}
    for s in sys.argv[2:]:
        k, _, v = s.partition("=")
        o[k] = eval(v) if v else 1
    DROP.extend(o.get("drop", []))
    out = [HEADER,
           *["; @launch kernel=wprep_kernel grid=(256,1,1) block=(128,1,1) lds=0"] * o.get("nprep", 1),
           f"; @launch kernel={NAME}_kernel grid=(256,1,1) block=(256,1,1) lds={LDS_BYTES}",
           '.amdgcn_target "amdgcn-amd-amdhsa--gfx950"', ".text"]
    out += gen_main(o)
    emit(out, gen_wprep(o))
    out.append('.section .rodata,"a"')
    out += kd(NAME + "_kernel", 512, 96, 256)
    out += kd("wprep_kernel", 128, 40, 128)
    open(sys.argv[1], "w").write("\n".join(out) + "\n")

main()
```

```python
import sys, math, struct, re
sys.path.insert(0, "tools")

NAME = "standalone__autoregressive_conv_wavernn__speech"
HEADER = """; Kernarg layout for this problem (40 bytes, ptrs only, base s[0:1]):
; Launch 2: persistent kernel: input transform (VALU) -> LDS -> MFMA, output transform, tanh*sigmoid."""
A_ = math.sqrt(0.5); B_ = math.sqrt(2.0)
def f32(v): return struct.unpack("<I", struct.pack("<f", v))[0]
def hx(v): return f"{f32(v):#x}"

class I:
    __slots__ = ("s", "kind", "tag", "needs", "cls", "w")
    def __init__(self, s, kind=None, tag=None, needs=(), cls=None):
        self.s, self.kind, self.tag, self.needs, self.cls = s, kind, tag, tuple(needs), cls
        self.w = {}
    def wait_text(self):
        p = []
        if "vm" in self.w: p.append(f"vmcnt({min(self.w['vm'], 63)})")
        if "lg" in self.w: p.append(f"lgkmcnt({min(self.w['lg'], 15)})")
        return "s_waitcnt " + " ".join(p) if p else None

CW = {"dsw": 4, "dsr": 1, "vm": 2, "s": 0.75, "trans": 2}
def icost(i):
    s = i.s
    if s.startswith("ds_write"): return CW["dsw"]
    if s.startswith("ds_read"): return CW["dsr"]
    if s.startswith("buffer_"): return CW["vm"]
    if s.startswith("s_"): return CW["s"]
    if s.startswith(("v_exp", "v_rcp")): return CW["trans"]
    return 1

def resolve(seq, slack):
    cnt = {"vm": 0, "lg": 0}; mark = {"vm": 0, "lg": 0}; last = {}
    cap = {"vm": 63, "lg": 15}
    for it in seq:
        need = {}
        for k, t in it.needs:
            if (k, t) not in last: raise RuntimeError(f"{t} never issued before {it.s}")
            need[k] = max(need.get(k, 0), last[(k, t)])
        for k, idx in need.items():
            if k in it.w: pass
            if idx > mark[k] and (k not in it.w or cnt[k] - min(it.w[k], cap[k]) < idx):
                n = cnt[k] - idx
                if slack.get(k) is not None: n = min(n, max(slack[k], 0)) if n > slack[k] else n
                it.w[k] = min(it.w.get(k, 99), n)
        for k, n in it.w.items():
            mark[k] = max(mark[k], cnt[k] - min(n, cap[k]))
        if it.s == "DRAIN":
            mark = dict(cnt)
        if it.kind:
            cnt[it.kind] += 1
            if it.tag is not None: last[(it.kind, it.tag)] = cnt[it.kind]

def emit(out, L):
    for it in L:
        w = it.wait_text()
        if w: out.append(" " + w)
        if it.s == "DRAIN": out.append("    s_waitcnt vmcnt(0) lgkmcnt(0)")
        elif it.s == "NOP": pass
        elif it.s.endswith(":") or it.s.startswith("."): out.append(it.s)
        else: out.append(" " + it.s)

WSLICE = 3 * 16 * 2 * 4 * 1024
LDS_BYTES = 131072
S_X, S_W, S_O = 16, 20, 24
sWAVE, sET, sNT = 28, 29, 30
sA, sB, sM25, sMASK, sC1, sC2, sC1o, sC2o, sCL, sK1, sK2 = 31, 32, 33, 34, 35, 36, 37, 38, 39, 40, 41
sT0, sT1, sT2 = 42, 43, 44
sROW = 48
sPB, sPK = 60, 62
vWOFF, vXM, vXH, vXMn, vXHn, vTR, vTW, vOUT, vOUT2, vPF = 1, 2, 3, 4, 5, 6, 7, 8, 9, 10
vLANE = 11
OUTQ = 12; NOUTQ = 2
POOL = list(range(20, 42))
TMP = 44
TMPO = 52
RAWB = 56; NRAW = 10
ACCV = 96
def acc(jp, uv, eb):
    idx = (jp * 2 + uv) * 4 + eb
    return ("v", ACCV + idx * 4) if idx < 40 else ("a", (idx - 40) * 4)
def R(t, b, n=4): return f"{t}[{b}:{b+n-1}]"
def Wr(h, eb): return R("a", 96 + (h * 4 + eb) * 4)
def Tr(s): return R("a", 224 + s * 4)
def raw(slot): return RAWB + slot * 4
P2 = lambda r: f"v[{r}:{r+1}]"
def utype(u): return "ABC"[(u % 12) // 4]
def urows(u): return list(range(0, 20, 2)) + list(range(1, 20, 2)) if utype(u) == "C" else list(range(1, 19))

def xload(u, k, dst=None, tag=None):
    row = urows(u)[k]
    r = raw(k % NRAW) if dst is None else dst
    va = vXH if row < 4 else vXM
    off = (row & 1) * 2048 + ((4 * u) & 15) * 64
    return I(f"buffer_load_dwordx4 v[{r}:{r+3}], v{va}, s[{S_X}:{S_X+3}], s{sROW + row//2} offen offset:{off}", "vm",
             ("X", k % NRAW) if tag is None else tag, cls=f"xl{u % 12}")

class Pool:
    def __init__(self, regs): self.free = list(regs)
    def get(self): return self.free.pop(0)
    def put(self, *rs): self.free.extend(rs)

def unit_stream(u):
    S = []; pool = Pool(POOL); cls = f"p{u}"
    typ = utype(u); nrows = len(urows(u)); un = (u + 1) % 12
    pend = []
    def op(s, kind=None, tag=None):
        S.append(I(s, kind, tag, needs=pend[:], cls=cls)); pend.clear()
    freed = set(); ld = [0]; oq = [0]
    def consumed(k):
        freed.add(k)
        while True:
            n = ld[0] + NRAW
            if n < nrows:
                if n - NRAW not in freed: break
                S.append(xload(u, n))
            else:
                kk = n - nrows
                if kk >= NRAW or max(r for r in range(nrows) if r % NRAW == kk) not in freed: break
                if kk == 0 and un == 0:
                    S.append(I(f"v_mov_b32 v{vXM}, v{vXMn}", cls="xsw")); S.append(I(f"v_mov_b32 v{vXH}, v{vXHn}", cls="xsw"))
                S.append(xload(un, kk))
            ld[0] += 1
    def unp(d, s, h): op(f"v_lshlrev_b32 v{d}, 16, v{s}" if h == 0 else f"v_and_b32 v{d}, s{sMASK}, v{s}")
    def newq():
        q = OUTQ + 4 * (oq[0] % NOUTQ); oq[0] += 1; return q
    def tw(q, kk, jp): op(f"ds_write_b128 v{vTW}, v[{q}:{q+3}] offset:{(kk*8+jp)*1024}", "lg", "TW")
    if typ != "C":
        sb = sB if typ == "A" else sA
        nk = "-0.5" if typ == "A" else "-2.0"
        P = [None] * 8; M = [None] * 8
        for n in range(9):
            k3, k4 = 2 * n, 2 * n + 1
            pend.extend([("vm", ("X", k3 % NRAW)), ("vm", ("X", k4 % NRAW))])
            r3, r4 = raw(k3 % NRAW), raw(k4 % NRAW)
            if n: qa, qb = newq(), newq()
            for dw in range(4):
                t3 = [pool.get(), pool.get()]; t4 = [pool.get(), pool.get()]
                for h in range(2): unp(t3[h], r3 + dw, h)
                for h in range(2): unp(t4[h], r4 + dw, h)
                if dw == 3: consumed(k3); consumed(k4)
                p = [pool.get(), pool.get()]
                for h in range(2): op(f"v_fma_f32 v{p[h]}, s{sb}, v{t3[h]}, v{t4[h]}")
                for h in range(2): op(f"v_fma_f32 v{t4[h]}, -s{sb}, v{t3[h]}, v{t4[h]}")
                pool.put(*t3)
                if n:
                    for h in range(2): op(f"v_fma_f32 v{P[2*dw+h]}, {nk}, v{P[2*dw+h]}, v{p[h]}")
                    for h in range(2): op(f"v_fma_f32 v{M[2*dw+h]}, {nk}, v{M[2*dw+h]}, v{t4[h]}")
                    op(f"v_cvt_pk_bf16_f32 v{qa+dw}, v{P[2*dw]}, v{P[2*dw+1]}")
                    op(f"v_cvt_pk_bf16_f32 v{qb+dw}, v{M[2*dw]}, v{M[2*dw+1]}")
                    pool.put(P[2*dw], P[2*dw+1], M[2*dw], M[2*dw+1])
                for h in range(2): P[2*dw+h] = p[h]; M[2*dw+h] = t4[h]
            if n: tw(qa, 0, n - 1); tw(qb, 1, n - 1)
    else:
        for par in range(2):
            Q = [None] * 8; prev = [None] * 8
            for n in range(10):
                k = par * 10 + n
                pend.append(("vm", ("X", k % NRAW)))
                r = raw(k % NRAW)
                if n >= 2: q = newq()
                for d2 in range(2):
                    e = [pool.get() for _ in range(4)]
                    for x in range(4): unp(e[x], r + 2 * d2 + x // 2, x % 2)
                    if d2 == 1: consumed(k)
                    c0 = 4 * d2
                    if n >= 2:
                        for x in range(4): op(f"v_add_f32 v{Q[c0+x]}, v{Q[c0+x]}, v{e[x]}")
                    if 1 <= n <= 8:
                        for x in range(4): op(f"v_fmac_f32 v{prev[c0+x]}, s{sM25}, v{e[x]}")
                    if n >= 2:
                        for x in range(2): op(f"v_cvt_pk_bf16_f32 v{q+2*d2+x}, v{Q[c0+2*x]}, v{Q[c0+2*x+1]}")
                        pool.put(*Q[c0:c0+4])
                    if n == 9: pool.put(*prev[c0:c0+4]); pool.put(*e)
                    else:
                        for x in range(4):
                            if n >= 1: Q[c0+x] = prev[c0+x]
                            prev[c0+x] = e[x]
                if n >= 2: tw(q, par, n - 2)
    return S

def mf_order(P):
    L = []; per = 8 // P
    for ph in range(P):
        for cp in range(4):
            for kk in range(2):
                for jp in range(ph * per, (ph + 1) * per):
                    L.append((cp, kk, jp))
    return L

def bfly_ops(which, jp):
    L = []; cls = "bf"
    a = lambda s: L.append(I(s, cls=cls))
    for eb in range(4):
        (t, U), (_, V) = acc(jp, 0, eb), acc(jp, 1, eb)
        u, v = U, V
        if t == "a":
            u, v = TMP, TMP + 4
            for x in range(4): a(f"v_accvgpr_read_b32 v{u+x}, a{U+x}")
            for x in range(4): a(f"v_accvgpr_read_b32 v{v+x}, a{V+x}")
        for x in range(4): a(f"v_fmac_f32 v{u+x}, s{sK1}, v{v+x}" if which == 1 else f"v_add_f32 v{u+x}, v{u+x}, v{v+x}")
        for x in range(4): a(f"v_fmac_f32 v{v+x}, s{sK2}, v{u+x}" if which == 1 else f"v_fma_f32 v{v+x}, -2.0, v{v+x}, v{u+x}")
        if t == "a":
            for x in range(4): a(f"v_accvgpr_write_b32 a{U+x}, v{u+x}")
            for x in range(4): a(f"v_accvgpr_write_b32 a{V+x}, v{v+x}")
    return L

def epi_ops(jp):
    L = []; cls = "epi"
    a = lambda s, kind=None: L.append(I(s, kind, cls=cls))
    for uv in range(2):
        j = 2 * jp + uv
        c1, c2 = (sC1, sC2) if uv == 0 else (sC1o, sC2o)
        isa = acc(jp, uv, 0)[0] == "a"
        dst = TMPO if isa else acc(jp, uv, 0)[1]
        for h in range(2):
            F, G = acc(jp, uv, h)[1], acc(jp, uv, 2 + h)[1]
            if isa:
                for x in range(4): a(f"v_accvgpr_read_b32 v{TMP+x}, a{F+x}")
                for x in range(4): a(f"v_accvgpr_read_b32 v{TMP+4+x}, a{G+x}")
                F, G = TMP, TMP + 4
            for x in range(4): a(f"v_mul_f32 v{F+x}, s{c1}, v{F+x}")
            for x in range(4): a(f"v_mul_f32 v{G+x}, s{c2}, v{G+x}")
            for x in range(4): a(f"v_min_f32 v{F+x}, s{sCL}, v{F+x}")
            for x in range(4): a(f"v_exp_f32 v{G+x}, v{G+x}")
            for x in range(4): a(f"v_exp_f32 v{F+x}, v{F+x}")
            for x in range(4): a(f"v_fma_f32 v{F+x}, 0.5, v{F+x}, 0.5")
            for x in range(4): a(f"v_fma_f32 v{G+x}, v{F+x}, v{G+x}, v{F+x}")
            for x in range(4): a(f"v_rcp_f32 v{G+x}, v{G+x}")
            a("s_nop 0")
            for x in range(4): a(f"v_fma_f32 v{F+x}, v{F+x}, v{G+x}, -v{G+x}")
            for x in range(2): a(f"v_cvt_pk_bf16_f32 v{dst+2*h+x}, v{F+2*x}, v{F+2*x+1}")
        a(f"buffer_store_dwordx4 v[{dst}:{dst+3}], v{vOUT}, s[{S_O}:{S_O+3}], s{sROW + j//2} offen offset:{(j&1)*2048}", "vm")
    return L

NM = 3072
def build_tile(o):
    PH = o.get("ph", [4, 1, 1, 2, 2, 1, 1, 2, 2, 1, 1, 4])
    MARG = o.get("marg", 4)
    frags = [mf_order(PH[s]) for s in range(12)]
    mf = []; firsts = set()
    lastuseW = {}; firstacc = {}; lastacc = {}
    for s in range(12):
        for f, (cp, kk, jp) in enumerate(frags[s]):
            for eb in range(4):
                m = s * 256 + f * 4 + eb
                t, b = acc(jp, kk, eb)
                c = "0" if (s == 0 and cp == 0) else R(t, b)
                needs = []
                if eb == 0: needs.append(("lg", ("T", f % 8)))
                if (s, cp * 2 + kk, eb) not in lastuseW: needs.append(("vm", ("W", cp * 2 + kk, eb)))
                lastuseW[(s, cp * 2 + kk, eb)] = m
                firstacc.setdefault((s, jp), m); lastacc[(s, jp)] = m
                mf.append(I(f"v_mfma_f32_16x16x32_bf16 {R(t, b)}, {Wr(cp*2+kk, eb)}, {Tr(f % 8)}, {c}", needs=needs, cls="mfma"))
    fixed = [[] for _ in range(NM)]
    BAR = [256 * (s + 1) - 29 for s in range(12)]
    for s in range(12):
        fixed[BAR[s]] += [I("s_barrier", needs=[("lg", "TW")], cls="bar"),
                          I(f"v_xor_b32 v{vTR}, 0x10000, v{vTR}", cls="bar"), I(f"v_xor_b32 v{vTW}, 0x10000, v{vTW}", cls="bar")]
    for s in range(12):
        for f, (cp, kk, jp) in enumerate(frags[s]):
            m = (s * 256 + (f - 8) * 4 + 3) % NM
            fixed[m].append(I(f"ds_read_b128 {Tr(f % 8)}, v{vTR} offset:{cp*16384 + (kk*8+jp)*1024}", "lg", ("T", f % 8), cls="T"))
        sn = (s + 1) % 12
        prevm = -1
        for h in range(8):
            for eb in range(4):
                m = max(lastuseW[(s, h, eb)] + 1, prevm + o.get("wgap", 2) if PH[s] > 1 else lastuseW[(s, h, 3)] + 2 + 8 * eb)
                prevm = m
                L = []
                if h == 0 and eb == 0:
                    if sn: L += [I(f"s_add_u32 s{S_W}, s{S_W}, 32768", cls="Wb"), I(f"s_addc_u32 s{S_W+1}, s{S_W+1}, 0", cls="Wb")]
                    else: L += [I(f"s_sub_u32 s{S_W}, s{S_W}, {11*32768}", cls="Wb"), I(f"s_subb_u32 s{S_W+1}, s{S_W+1}, 0", cls="Wb")]
                L.append(I(f"buffer_load_dwordx4 {Wr(h, eb)}, v{vWOFF}, s[{S_W}:{S_W+3}], s{sROW+h} offen offset:{eb*1024}", "vm", ("W", h, eb), cls=f"W{sn}"))
                fixed[m % NM] += L
    if o.get("pf", 1):
        n = 0
        for r in range(4):
            for half in range(2):
                m = 256 * 5 + 40 + 128 * n; n += 1
                fixed[m].append(I(f"buffer_load_dword v{vLANE}, v{vPF}, s[{S_X}:{S_X+3}], s{sROW + r//2} offen offset:{(r&1)*2048 + half*512}", "vm", None, cls="pf"))
    streams = []
    for u in range(12):
        st = BAR[(u - 2) % 12] + 1; en = BAR[(u - 1) % 12] - 1
        if en < st: en += NM
        streams.append(dict(ops=[(i, st, en) for i in unit_stream(u)], st=st, en=en))
    def extra(opsf, s):
        sn = (s + 1) % 12; add = NM if sn == 0 else 0
        jps = sorted(range(8), key=lambda jp: lastacc[(s, jp)])
        ops = []
        for jp in jps:
            rel, dl = lastacc[(s, jp)] + MARG, firstacc[(sn, jp)] + add - 2
            ops += [(i, rel, dl) for i in opsf(jp)]
        return dict(ops=ops, st=ops[0][1], en=ops[-1][2])
    streams.append(extra(lambda jp: bfly_ops(1, jp), 3))
    streams.append(extra(lambda jp: bfly_ops(2, jp), 7))
    e = extra(epi_ops, 11)
    e["ops"].append((I(f"v_mov_b32 v{vOUT}, v{vOUT2}", cls="epi"), e["ops"][-1][1], e["ops"][-1][2]))
    streams.append(e)
    gaps = [list(fixed[m]) for m in range(NM)]
    flex = [[] for _ in range(NM)]
    load = [sum(icost(i) for i in fixed[m]) for m in range(NM)]
    def caps(st, en, tot):
        lo, hi = 0.0, 1000.0
        for _ in range(50):
            L = (lo + hi) / 2
            if sum(max(0.0, L - load[m % NM]) for m in range(st, en + 1)) < tot: lo = L
            else: hi = L
        return [max(0.0, hi - load[m % NM]) for m in range(st, en + 1)]
    def place(ops, st, en):
        tot = sum(map(icost, ops)); c = caps(st, en, tot)
        k = 0; done = 0.0; tgt = 0.0
        for m in range(st, en + 1):
            tgt += c[m - st]
            while k < len(ops) and (done + icost(ops[k]) / 2 <= tgt or m == en):
                flex[m % NM].append(ops[k]); load[m % NM] += icost(ops[k]); done += icost(ops[k]); k += 1
    for S in streams:
        segs = []
        for i, rel, dl in S["ops"]:
            if not segs or segs[-1][1:] != [rel, dl]: segs.append([[], rel, dl])
            segs[-1][0].append(i)
        start = segs[0][1]
        for n, (ops, rel, dl) in enumerate(segs):
            start = max(start, rel)
            rest = sum(icost(i) for sg in segs[n:] for i in sg[0]); mine = sum(map(icost, ops))
            e = start + int((segs[-1][2] - start) * mine / rest)
            if n + 1 < len(segs): e = max(e, segs[n + 1][1] - 1)
            e = min(e, dl)
            place(ops, start, e)
            start = e
    prog = []
    for s in range(12):
        L = []
        for m in range(256 * s, 256 * (s + 1)):
            L.append(mf[m]); L += gaps[m]; L += flex[m]
        prog.append(L)
    return prog, BAR

def rowbytes(a, vU, vD, vt):
    a(f"v_lshlrev_b32 v{vD}, 1, v{vU}")
    for thr, adj in ((8000, 15999), (16000, 1), (24000, 15999)):
        a(f"v_cmp_le_u32 vcc, {thr}, v{vU}"); a(f"v_mov_b32 v{vt}, {adj}"); a("s_nop 1")
        a(f"v_cndmask_b32 v{vt}, 0, v{vt}, vcc"); a(f"v_sub_u32 v{vD}, v{vD}, v{vt}")
    a(f"v_lshlrev_b32 v{vD}, 10, v{vD}")

def tile_setup_x(a, sTT, vxm, vxh, vpf=None):
    t = POOL
    a(f"s_lshl_b32 s{sT0}, s{sTT}, 8")
    a(f"v_lshrrev_b32 v{t[0]}, 2, v{vLANE}"); a(f"v_lshlrev_b32 v{t[1]}, 4, v{t[0]}"); a(f"v_add_u32 v{t[1]}, s{sT0}, v{t[1]}")
    rowbytes(a, t[1], t[2], t[3])
    a(f"v_lshrrev_b32 v{t[3]}, 5, v{vLANE}"); a(f"v_mul_u32_u24 v{t[3]}, 3, v{t[3]}")
    a(f"v_and_b32 v{t[4]}, 3, v{vLANE}"); a(f"v_xor_b32 v{t[3]}, v{t[3]}, v{t[4]}"); a(f"v_lshlrev_b32 v{t[3]}, 4, v{t[3]}")
    a(f"s_lshl_b32 s{sT1}, s{sWAVE}, 6")
    a(f"v_add3_u32 v{vxm}, v{t[2]}, v{t[3]}, s{sT1}")
    if vpf is not None:
        a(f"v_lshlrev_b32 v{t[4]}, 7, v{t[4]}")
        a(f"s_lshl_b32 s{sT1}, s{sWAVE}, 13"); a(f"s_add_u32 s{sT1}, s{sT1}, 8192")
        a(f"v_add3_u32 v{vpf}, v{t[2]}, v{t[4]}, s{sT1}")
    a(f"v_mov_b32 v{vxh}, v{vxm}"); a(f"v_mov_b32 v{t[4]}, 0x70000000")
    for thr in (0, 8000, 16000, 24000):
        a(f"v_cmp_eq_u32 vcc, {thr}, v{t[1]}"); a("s_nop 1"); a(f"v_cndmask_b32 v{vxh}, v{vxh}, v{t[4]}, vcc")

def tile_setup_o(a, sTT, vout):
    t = POOL
    a(f"s_lshl_b32 s{sT0}, s{sTT}, 8")
    a(f"v_and_b32 v{t[0]}, 15, v{vLANE}"); a(f"v_lshlrev_b32 v{t[1]}, 4, v{t[0]}"); a(f"v_add_u32 v{t[1]}, s{sT0}, v{t[1]}")
    rowbytes(a, t[1], t[2], t[3])
    a(f"v_lshrrev_b32 v{t[3]}, 4, v{vLANE}"); a(f"v_lshlrev_b32 v{t[3]}, 4, v{t[3]}"); a(f"v_add_u32 v{t[2]}, v{t[2]}, v{t[3]}")
    a(f"s_lshl_b32 s{sT1}, s{sET}, 8"); a(f"s_lshl_b32 s{sT2}, s{sWAVE}, 6"); a(f"s_add_u32 s{sT1}, s{sT1}, s{sT2}")
    a(f"v_add_u32 v{vout}, s{sT1}, v{t[2]}")

def unit0_special(a):
    RB = ACCV
    TB = ACCV + 72
    P = [None] * 4; M = [None] * 4
    pool = Pool(list(range(TB, TB + 72, 2)))
    oq = [TB + 72, TB + 76, TB + 80, TB + 84]
    for n in range(9):
        r3, r4 = RB + 8 * n, RB + 8 * n + 4
        t3 = [pool.get() for _ in range(4)]; t4 = [pool.get() for _ in range(4)]
        first = True
        for t, r in ((t3, r3), (t4, r4)):
            for x in range(4):
                a(f"v_lshlrev_b32 v{t[x]}, 16, v{r+x}", needs=[("vm", ("X0", 2*n+1))] if first else ()); first = False
                a(f"v_and_b32 v{t[x]+1}, s{sMASK}, v{r+x}")
        p = [pool.get() for _ in range(4)]
        for x in range(4): a(f"v_pk_fma_f32 {P2(p[x])}, {P2(t3[x])}, s[{sPB}:{sPB+1}], {P2(t4[x])}")
        for x in range(4): a(f"v_pk_fma_f32 {P2(t4[x])}, {P2(t3[x])}, s[{sPB}:{sPB+1}], {P2(t4[x])} neg_lo:[0,1,0] neg_hi:[0,1,0]")
        pool.put(*t3)
        if n:
            qa, qb = oq[2 * (n & 1)], oq[2 * (n & 1) + 1]
            for x in range(4): a(f"v_pk_fma_f32 {P2(P[x])}, {P2(P[x])}, s[{sPK}:{sPK+1}], {P2(p[x])}")
            for x in range(4): a(f"v_pk_fma_f32 {P2(M[x])}, {P2(M[x])}, s[{sPK}:{sPK+1}], {P2(t4[x])}")
            for x in range(4): a(f"v_cvt_pk_bf16_f32 v{qa+x}, v{P[x]}, v{P[x]+1}")
            for x in range(4): a(f"v_cvt_pk_bf16_f32 v{qb+x}, v{M[x]}, v{M[x]+1}")
            a(f"ds_write_b128 v{vTW}, v[{qa}:{qa+3}] offset:{(n-1)*1024}", "lg", "TW")
            a(f"ds_write_b128 v{vTW}, v[{qb}:{qb+3}] offset:{(8+n-1)*1024}", "lg", "TW")
            pool.put(*P); pool.put(*M)
        P = p; M = t4

def gen_main(o):
    K = NAME + "_kernel"
    prog, BAR = build_tile(o)
    pro = []
    def a(s, kind=None, tag=None, needs=()): pro.append(I(s, kind, tag, needs))
    a(f".globl {K}"); a(".p2align 8"); a(f".type {K},@function"); a(K + ":")
    a("s_cmp_ge_u32 s2, 256"); a("s_cbranch_scc1 L_END")
    a("s_load_dwordx8 s[4:11], s[0:1], 0"); a("s_load_dwordx2 s[12:13], s[0:1], 32")
    if o.get("trace"): a("s_memtime s[86:87]"); a("s_memrealtime s[88:89]")
    a("v_lshrrev_b32 v1, 6, v0"); a(f"v_and_b32 v{vLANE}, 63, v0"); a("s_nop 0"); a(f"v_readfirstlane_b32 s{sWAVE}, v1")
    a("s_and_b32 s64, s2, 7"); a("s_lshr_b32 s65, s2, 3"); a("s_and_b32 s66, s64, 1"); a("s_lshl_b32 s66, s66, 1")
    a(f"s_and_b32 s{sET}, s65, 1"); a(f"s_add_u32 s{sET}, s{sET}, s66")
    a("s_lshr_b32 s64, s64, 1"); a("s_lshr_b32 s65, s65, 1"); a("s_mul_i32 s66, s64, 31")
    a("s_cmp_eq_u32 s64, 0"); a("s_cselect_b32 s67, 0, 1"); a("s_add_u32 s66, s66, s67"); a("s_add_u32 s66, s66, s65")
    a("s_sub_u32 s67, 16, s67"); a("s_cmp_lt_u32 s65, s67")
    a(f"s_cselect_b32 s{sNT}, 2, 1"); a("s_cselect_b32 s65, 16, 0"); a("s_add_u32 s65, s66, s65")
    for k in range(10): a(f"s_mov_b32 s{sROW+k}, {k*4096}")
    tile_setup_x(a, 66, vXM, vXH)
    a("s_waitcnt lgkmcnt(0)")
    a(f"s_sub_u32 s{S_X}, s4, 8192"); a(f"s_subb_u32 s{S_X+1}, s5, 0"); a(f"s_and_b32 s{S_X+1}, s{S_X+1}, 0xffff")
    a(f"s_mov_b32 s{S_X+2}, {32768000+8192}"); a(f"s_mov_b32 s{S_X+3}, 0x00020000")
    for k in range(18): pro.append(xload(0, k, dst=ACCV + 4 * k, tag=("X0", k)))
    a(f"v_lshlrev_b32 v{vWOFF}, 4, v{vLANE}")
    a(f"s_lshl_b32 s{sT0}, s{sET}, 2"); a(f"s_add_u32 s{sT0}, s{sT0}, s{sWAVE}"); a(f"s_mul_i32 s{sT0}, s{sT0}, {WSLICE}")
    a(f"s_add_u32 s{S_W}, s12, s{sT0}"); a(f"s_addc_u32 s{S_W+1}, s13, 0"); a(f"s_and_b32 s{S_W+1}, s{S_W+1}, 0xffff")
    a(f"s_mov_b32 s{S_W+2}, 32768"); a(f"s_mov_b32 s{S_W+3}, 0x00020000")
    S11 = prog[11]
    ib = next(n for n, i in enumerate(S11) if i.cls == "bar")
    cp = lambda i: I(i.s, i.kind, i.tag, i.needs, i.cls)
    pro += [cp(i) for i in S11[:ib] if i.cls == "xl1"]
    pro += [cp(i) for i in S11 if i.cls == "W0"]
    a(f"s_mov_b32 s{S_O}, s8"); a(f"s_and_b32 s{S_O+1}, s9, 0xffff"); a(f"s_mov_b32 s{S_O+2}, 32768000"); a(f"s_mov_b32 s{S_O+3}, 0x00020000")
    l2e = math.log2(math.e)
    for r, v in ((sA, A_), (sB, B_), (sM25, -2.5), (sC1, 2 * l2e), (sC2, -l2e), (sC1o, 2 * l2e * A_), (sC2o, -l2e * A_),
                 (sCL, 40.0), (sK1, -0.375), (sK2, -1 / 3), (sPB, B_), (sPB + 1, B_), (sPK, -0.5), (sPK + 1, -0.5)):
        a(f"s_mov_b32 s{r}, {hx(v)}")
    a(f"s_mov_b32 s{sMASK}, 0xffff0000")
    tile_setup_x(a, 65, vXMn, vXHn, vPF)
    tile_setup_o(a, 66, vOUT); tile_setup_o(a, 65, vOUT2)
    t = POOL
    a(f"s_lshl_b32 s{sT0}, s{sWAVE}, 14"); a(f"v_add_u32 v{vTW}, s{sT0}, v{vWOFF}")
    a(f"v_and_b32 v{t[0]}, 15, v{vLANE}"); a(f"v_lshrrev_b32 v{t[1]}, 3, v{t[0]}"); a(f"v_mul_u32_u24 v{t[1]}, 3, v{t[1]}")
    a(f"v_lshrrev_b32 v{t[2]}, 4, v{vLANE}"); a(f"v_xor_b32 v{t[1]}, v{t[1]}, v{t[2]}")
    a(f"v_lshlrev_b32 v{t[0]}, 2, v{t[0]}"); a(f"v_add_u32 v{t[0]}, v{t[0]}, v{t[1]}"); a(f"v_lshlrev_b32 v{t[0]}, 4, v{t[0]}")
    a(f"v_xor_b32 v{vTR}, 0x10000, v{t[0]}")
    TRC = lambda: []
    if o.get("trace"):
        a("s_add_u32 s80, s12, 0x800000"); a("s_addc_u32 s81, s13, 0"); a("s_and_b32 s81, s81, 0xffff")
        a("s_mov_b32 s82, 0x100000"); a("s_mov_b32 s83, 0x00020000")
        a("s_lshl_b32 s90, s2, 2"); a(f"s_add_u32 s90, s90, s{sWAVE}"); a("s_lshl_b32 s90, s90, 9"); a("v_mov_b32 v0, 0")
        TRC = lambda: [I("s_waitcnt lgkmcnt(0)"), I("v_mov_b32 v42, s86"), I("v_mov_b32 v43, s88"),
                       I("buffer_store_dwordx2 v[42:43], v0, s[80:83], s90 offen", "vm"), I("s_add_u32 s90, s90, 8"),
                       I("s_memtime s[86:87]"), I("s_memrealtime s[88:89]")]
    unit0_special(a)
    pro += [cp(i) for i in S11[ib:] if i.cls in ("bar", "T", "p1", "xl1")]
    a("s_nop 1")
    S0n = TRC() + prog[0]
    S0f = TRC() + [cp(i) for i in prog[0] if i.cls != "epi"]
    tail = TRC() + [I("s_nop 7")] + [cp(i) for i in prog[0] if i.cls == "epi"] + [I("DRAIN")]
    mid = []
    for s in range(1, 12): mid += TRC() + prog[s]
    if o.get("looptest"):
        one = TRC() + prog[1]
        resolve(pro + S0f + one + one + one + tail, {"vm": None, "lg": None})
        out = []
        emit(out, pro); emit(out, S0f)
        out += [" s_mov_b32 s45, 11", "L_MID:"]; emit(out, one)
        out += [" s_sub_u32 s45, s45, 1", " s_cmp_eq_u32 s45, 0", " s_cbranch_scc0 L_MID", "L_TAIL:"]
        emit(out, tail)
        emit(out, TRC() + TRC()[:4] + [I("s_waitcnt vmcnt(0)")])
        out += ["L_END:", " s_endpgm"]
        return out
    slack = {"vm": None, "lg": o.get("lgslack")}
    resolve(pro + S0f + mid + S0n + mid + tail, slack)
    resolve(pro + S0f + mid + tail, slack)
    out = []
    emit(out, pro); emit(out, S0f)
    out.append("L_MID:"); emit(out, mid)
    out += [f"    s_sub_u32 s{sNT}, s{sNT}, 1", f"    s_cmp_eq_u32 s{sNT}, 0", "    s_cbranch_scc1 L_TAIL"]
    emit(out, S0n)
    out += ["    s_branch L_MID"]
    out.append("L_TAIL:"); emit(out, tail)
    if o.get("trace"):
        emit(out, TRC() + TRC()[:4] + [I("s_waitcnt vmcnt(0)")])
    out += ["L_END:", "    s_endpgm"]
    return out

def kd(name, vg, sg, acco):
    return [".p2align 6", f".amdhsa_kernel {name}", f"  .amdhsa_next_free_vgpr {vg}", f"  .amdhsa_next_free_sgpr {sg}",
            f"  .amdhsa_accum_offset {acco}", "  .amdhsa_group_segment_fixed_size 0", "  .amdhsa_kernarg_size 40",
            "  .amdhsa_user_sgpr_count 2", "  .amdhsa_user_sgpr_kernarg_segment_ptr 1",
            "  .amdhsa_system_sgpr_workgroup_id_x 1", ".end_amdhsa_kernel"]

def wprep_text(o):
    src = open("gen2.py").read().replace("\nmain()\n", "\n")
    g = {}
    exec(compile(src, "gen2", "exec"), g)
    out = []
    g["emit"](out, g["gen_wprep"](o))
    return out

def main():
    o = {}
    for s in sys.argv[2:]:
        k, _, v = s.partition("=")
        o[k] = eval(v) if v else 1
    CW.update(o.get("cw", {}))
    out = [HEADER, "; @launch kernel=wprep_kernel grid=(256,1,1) block=(128,1,1) lds=0",
           f"; @launch kernel={NAME}_kernel grid=(256,1,1) block=(256,1,1) lds={LDS_BYTES}",
           '.amdgcn_target "amdgcn-amd-amdhsa--gfx950"', ".text"]
    out += gen_main(o)
    out += wprep_text(o)
    out.append('.section .rodata,"a"')
    out += kd(NAME + "_kernel", 512, 96, 256) + kd("wprep_kernel", 128, 40, 128)
    open(sys.argv[1], "w").write("\n".join(out) + "\n")

if __name__ == "__main__":
    main()
```

```python
import re, sys
def regs(op):
    out = set()
    for m in re.finditer(r"\b([va])\[(\d+):(\d+)\]|\b([va])(\d+)\b", op):
        if m.group(1): out |= {(m.group(1), i) for i in range(int(m.group(2)), int(m.group(3)) + 1)}
        else: out.add((m.group(4), int(m.group(5))))
    return out
def parse(line):
    s = line.strip()
    if not s or s.startswith((".", ";")) or s.endswith(":"): return None
    mn, _, rest = s.partition(" ")
    ops = [x.strip() for x in rest.split(",")]
    d, u = set(), set()
    if mn.startswith(("buffer_store", "ds_write")):
        for x in ops: u |= regs(x)
    elif mn.startswith(("v_", "buffer_load", "ds_read")):
        if mn.startswith(("v_cmp", "v_readfirstlane", "v_readlane")):
            for x in ops[1:]: u |= regs(x)
        else:
            d = regs(ops[0])
            for x in ops[1:]: u |= regs(x)
            if mn.startswith(("v_fmac",)): u |= d
    return mn, d, u, s
def check(lines):
    ins = [p for p in map(parse, lines) if p]
    bad = 0
    ws = lambda p: (int(p[3].split()[1]) + 1) if p[0] == "s_nop" else 1
    for i, (mn, d, u, s) in enumerate(ins):
        ismf = mn.startswith("v_mfma"); isv = mn.startswith("v_") and not ismf
        need = None
        for lim, prod, cons in (
            (8, ismf, lambda q: (q[0].startswith("v_") and not q[0].startswith("v_mfma") and (q[1] | q[2]) & d) or (q[0].startswith(("buffer_store", "ds_write")) and q[2] & d) or (q[0].startswith(("buffer_load", "ds_read")) and q[1] & d)),
            (8, ismf, lambda q: q[0].startswith("v_mfma") and (regs(q[3].split(",")[1]) | regs(q[3].split(",")[2])) & d),
            (2, isv, lambda q: q[0].startswith("v_mfma") and q[2] & d),
            (1, mn.startswith(("v_exp", "v_rcp")), lambda q: q[0].startswith("v_") and not q[0].startswith(("v_exp", "v_rcp")) and q[2] & d),
            (2, mn.startswith("buffer_store_dwordx4"), lambda q: q[0].startswith("v_") and q[1] & regs(s.split(",")[0])),
        ):
            if not prod: continue
            dist = 0
            for j in range(i + 1, min(i + 12, len(ins))):
                if dist >= lim: break
                if cons(ins[j]):
                    print(f"HAZARD lim{lim} dist{dist}: {s}  ->  {ins[j][3]}"); bad += 1; break
                dist += ws(ins[j])
    return bad
if __name__ == "__main__":
    L = open(sys.argv[1]).read().split("\n")
    idx = {l[:-1]: n for n, l in enumerate(L) if l.endswith(":")}
    end = idx["L_END"]
    br = next(n for n, l in enumerate(L) if "s_cbranch_scc1 L_TAIL" in l)
    seq = L[:idx["L_TAIL"]] + L[idx["L_MID"]:br] + L[idx["L_TAIL"]:end]
    print("hazards:", check(seq))
```

```python
import sys, math
sys.path.insert(0, "tools")
import gen3 as G
from gen3 import I, icost, resolve, emit, hx, A_, B_, R, P2, NAME, HEADER, WSLICE, LDS_BYTES, kd, Pool, CW

S_X, S_W, S_O = 16, 20, 24
sWAVE, sET, sNT, sSIG, sUN, sXO, sXS = 28, 29, 30, 31, 32, 33, 34
sBE, sNK, sM25, sMASK, sCL, sA = 35, 36, 37, 38, 39, 40
sWI, sWIH, sDX = 41, 42, 43
sT0, sT1, sT2 = 44, 45, 46
sROW = 48
sC1, sC2, sC1o, sC2o, sHALF, sK1, sK2, sM2, sPB, sPK = 60, 62, 64, 66, 68, 70, 72, 74, 76, 78
vWOFF, vXM, vXH, vX2, vXMn, vXHn, vTR, vTW, vOUT, vOUT2, vPF = 1, 2, 3, 4, 5, 6, 7, 8, 9, 10, 11
vLANE = 12
OUTQ = 12; NOUTQ = 2
POOL = list(range(20, 42))
FREE = 12
RAWB = 44; NRAW = 11
ACCV = 88; NVT = 42
def acc(jp, uv, eb):
    pi = jp * 4 + eb
    if pi < NVT // 2:
        if jp < 5: return ("v", ACCV + ((jp * 2 + uv) * 4 + eb) * 4)
        return ("v", ACCV + 160 + uv * 4)
    return ("a", ((pi - NVT // 2) * 2 + uv) * 4)
AW = 88
def Wr(h, eb): return R("a", AW + (h * 4 + eb) * 4)
def Tr(s): return R("a", AW + 128 + s * 4)
def raw(s): return RAWB + 4 * s
def urows(typ): return list(range(0, 20, 2)) + list(range(1, 20, 2)) if typ == "C" else list(range(1, 19))

def xl_own(typ, k, dst=None, tag=None):
    row = urows(typ)[k]; r = raw(k % NRAW) if dst is None else dst
    return I(f"buffer_load_dwordx4 v[{r}:{r+3}], v{vXH if row < 4 else vXM}, s[{S_X}:{S_X+3}], s{sROW+row//2} offen offset:{(row&1)*2048}",
             "vm", ("X", k % NRAW) if tag is None else tag)
def xl_next(k):
    r = raw(k)
    va = vXH if k < 2 else (vX2 if k == 2 else vXM)
    return [I(f"buffer_load_dwordx4 v[{r}:{r+3}], v{va}, s[{S_X}:{S_X+3}], s{sXO} offen", "vm", ("X", k)),
            I(f"s_add_u32 s{sXO}, s{sXO}, s{sXS}")]
NPRE = 10

_l = [0]
def switch_ops():
    _l[0] += 1; L = f"LS{_l[0]}"
    return [I(s) for s in (
        f"s_add_u32 s{sUN}, s{sUN}, 1", f"s_and_b32 s{sT0}, s{sUN}, 3", f"s_cmp_eq_u32 s{sT0}, 0",
        f"s_cselect_b32 s{sDX}, s{sDX+4}, s{sDX+15}",
        f"v_add_u32 v{vXM}, s{sDX}, v{vXM}", f"v_add_u32 v{vXH}, s{sDX}, v{vXH}",
        f"s_cmp_lg_u32 s{sUN}, 12", f"s_cbranch_scc1 {L}_a",
        f"s_mov_b32 s{sUN}, 0", f"v_mov_b32 v{vXM}, v{vXMn}", f"v_mov_b32 v{vXH}, v{vXHn}", f"{L}_a:",
        f"s_cmp_ge_u32 s{sUN}, 8", f"s_cselect_b32 s{sXO}, 0, s{sROW+11}", f"s_cselect_b32 s{sXS}, s{sROW+1}, s{sROW+11}",
        f"v_mov_b32 v{vX2}, v{vXM}", f"s_cbranch_scc1 {L}_b", f"v_mov_b32 v{vX2}, v{vXH}", f"{L}_b:")]

def unit_stream(typ):
    S = []; pool = Pool(POOL); nrows = len(urows(typ)); pend = []
    def op(s, kind=None, tag=None):
        S.append([I(s, kind, tag, needs=pend[:])]); pend.clear()
    freed = set(); ld = [NPRE]; oq = [0]
    def lastocc(slot, before):
        c = [r for r in range(before) if r % NRAW == slot]
        return max(c) if c else None
    def consumed(k):
        if k is not None: freed.add(k)
        while True:
            n = ld[0]
            if n < nrows:
                p = lastocc(n % NRAW, n)
                if p is not None and p not in freed: break
                S.append([xl_own(typ, n)])
            else:
                kk = n - nrows
                if kk >= NPRE or lastocc(kk, nrows) not in freed: break
                if kk == 0: S.append(switch_ops())
                S.append(xl_next(kk))
            ld[0] += 1
    consumed(None)
    def unp(d, s, h): op(f"v_lshlrev_b32 v{d}, 16, v{s}" if h == 0 else f"v_and_b32 v{d}, s{sMASK}, v{s}")
    def newq():
        q = OUTQ + 4 * (oq[0] % NOUTQ); oq[0] += 1; return q
    def tw(q, kk, jp): op(f"ds_write_b128 v{vTW}, v[{q}:{q+3}] offset:{(kk*8+jp)*1024}", "lg", "TW")
    if typ != "C":
        P = [None] * 8; M = [None] * 8
        for n in range(9):
            k3, k4 = 2 * n, 2 * n + 1
            pend.extend([("vm", ("X", k3 % NRAW)), ("vm", ("X", k4 % NRAW))])
            r3, r4 = raw(k3 % NRAW), raw(k4 % NRAW)
            if n: qa, qb = newq(), newq()
            for dw in range(4):
                t3 = [pool.get(), pool.get()]; t4 = [pool.get(), pool.get()]
                for h in range(2): unp(t3[h], r3 + dw, h)
                for h in range(2): unp(t4[h], r4 + dw, h)
                if dw == 3: consumed(k3); consumed(k4)
                p = [pool.get(), pool.get()]
                for h in range(2): op(f"v_fma_f32 v{p[h]}, s{sBE}, v{t3[h]}, v{t4[h]}")
                for h in range(2): op(f"v_fma_f32 v{t4[h]}, -s{sBE}, v{t3[h]}, v{t4[h]}")
                pool.put(*t3)
                if n:
                    for h in range(2): op(f"v_fma_f32 v{P[2*dw+h]}, s{sNK}, v{P[2*dw+h]}, v{p[h]}")
                    for h in range(2): op(f"v_fma_f32 v{M[2*dw+h]}, s{sNK}, v{M[2*dw+h]}, v{t4[h]}")
                    op(f"v_cvt_pk_bf16_f32 v{qa+dw}, v{P[2*dw]}, v{P[2*dw+1]}")
                    op(f"v_cvt_pk_bf16_f32 v{qb+dw}, v{M[2*dw]}, v{M[2*dw+1]}")
                    pool.put(P[2*dw], P[2*dw+1], M[2*dw], M[2*dw+1])
                for h in range(2): P[2*dw+h] = p[h]; M[2*dw+h] = t4[h]
            if n: tw(qa, 0, n - 1); tw(qb, 1, n - 1)
    else:
        for par in range(2):
            Q = [None] * 8; prev = [None] * 8
            for n in range(10):
                k = par * 10 + n
                pend.append(("vm", ("X", k % NRAW)))
                r = raw(k % NRAW)
                if n >= 2: q = newq()
                for d2 in range(2):
                    e = [pool.get() for _ in range(4)]
                    for x in range(4): unp(e[x], r + 2 * d2 + x // 2, x % 2)
                    if d2 == 1: consumed(k)
                    c0 = 4 * d2
                    if n >= 2:
                        for x in range(4): op(f"v_add_f32 v{Q[c0+x]}, v{Q[c0+x]}, v{e[x]}")
                    if 1 <= n <= 8:
                        for x in range(4): op(f"v_fmac_f32 v{prev[c0+x]}, s{sM25}, v{e[x]}")
                    if n >= 2:
                        for x in range(2): op(f"v_cvt_pk_bf16_f32 v{q+2*d2+x}, v{Q[c0+2*x]}, v{Q[c0+2*x+1]}")
                        pool.put(*Q[c0:c0+4])
                    if n == 9: pool.put(*prev[c0:c0+4]); pool.put(*e)
                    else:
                        for x in range(4):
                            if n >= 1: Q[c0+x] = prev[c0+x]
                            prev[c0+x] = e[x]
                if n >= 2: tw(q, par, n - 2)
    return S

BARM = 227
def tread(f):
    f %= 64
    cp, kk, jp = f >> 4, (f >> 3) & 1, f & 7
    return I(f"ds_read_b128 {Tr(f % 8)}, v{vTR} offset:{cp*16384 + (kk*8+jp)*1024}", "lg", ("T", f % 8), cls="T")
def wload(h, eb, fl=""):
    return I(f"buffer_load_dwordx4 {Wr(h, eb)}, v{vWOFF}, s[{S_W}:{S_W+3}], s{sROW+h} offen offset:{eb*1024}{fl}", "vm", ("W", h, eb), cls="W")
def bar_ops():
    return [I("s_barrier", needs=[("lg", "TW")], cls="bar"), I(f"v_xor_b32 v{vTR}, 0x10000, v{vTR}", cls="bar"),
            I(f"v_xor_b32 v{vTW}, 0x10000, v{vTW}", cls="bar")]

def body(typ, first, o):
    fl = o.get("wflag", "")
    fixed = [[] for _ in range(256)]
    fixed[BARM] += bar_ops()
    for f in range(64):
        fixed[((f - 8) * 4 + 3) % 256].append(tread(f))
    for h in range(8):
        for eb in range(4):
            m = (32 * h + 31 + 2 + 8 * eb) % 256
            if h == 0 and eb == 0:
                fixed[m] += [I(f"s_cmp_eq_u32 s{sSIG}, 11"), I(f"s_cselect_b32 s{sWI}, s84, s{sROW+8}"),
                             I(f"s_cselect_b32 s{sWIH}, -1, 0"),
                             I(f"s_add_u32 s{S_W}, s{S_W}, s{sWI}"), I(f"s_addc_u32 s{S_W+1}, s{S_W+1}, s{sWIH}")]
            fixed[m].append(wload(h, eb, fl))
    pre = []
    if typ == "AB":
        pre = [I(f"s_cmp_lt_u32 s{sUN}, 4"), I(f"s_cselect_b32 s{sBE}, s{sPB}, s{sA}"), I(f"s_cselect_b32 s{sNK}, -0.5, -2.0")]
    S = unit_stream(typ)
    c = lambda g: sum(icost(i) for i in g if not i.s.endswith(":"))
    load = [c(fixed[m]) for m in range(256)]
    st, en = 0, BARM - 1 - o.get("endm", 2)
    tot = sum(map(c, S))
    lo, hi = 0.0, 100.0
    for _ in range(50):
        L = (lo + hi) / 2
        if sum(max(0.0, L - load[m]) for m in range(st, en + 1)) < tot: lo = L
        else: hi = L
    out = list(pre); k = 0; done = 0.0; tgt = 0.0
    for m in range(256):
        f, eb = m >> 2, m & 3
        cp, kk, jp = f >> 4, (f >> 3) & 1, f & 7
        t, b = acc(jp, kk, eb)
        needs = []
        if eb == 0: needs.append(("lg", ("T", f % 8 if o.get("tw1") else ((f | 1) % 8))))
        if jp == 0: needs.append(("vm", ("W", cp * 2 + kk, 3)))
        out.append(I(f"v_mfma_f32_16x16x32_bf16 {R(t, b)}, {Wr(cp*2+kk, eb)}, {Tr(f % 8)}, {'0' if first and cp == 0 else R(t, b)}", needs=needs, cls="mfma"))
        out += fixed[m]
        if m <= en:
            tgt += max(0.0, hi - load[m])
            while k < len(S) and (done + c(S[k]) / 2 <= tgt or m == en):
                out += S[k]; done += c(S[k]); k += 1
    return out

def bfly(which, o):
    L = [I("s_nop 7")]; a = lambda s, kind=None: L.append(I(s, kind))
    def two(prs):
        for u, v in prs:
            for x in (0, 2):
                a(f"v_pk_fma_f32 {P2(u+x)}, {P2(v+x)}, s[{sK1}:{sK1+1}], {P2(u+x)}" if which == 1 else f"v_pk_add_f32 {P2(u+x)}, {P2(u+x)}, {P2(v+x)}")
        for u, v in prs:
            for x in (0, 2):
                a(f"v_pk_fma_f32 {P2(v+x)}, {P2(u+x)}, s[{sK2}:{sK2+1}], {P2(v+x)}" if which == 1 else f"v_pk_fma_f32 {P2(v+x)}, {P2(v+x)}, s[{sM2}:{sM2+1}], {P2(u+x)}")
    allp = [(acc(jp, 0, eb), acc(jp, 1, eb)) for jp in range(8) for eb in range(4)]
    vp = [(u[1], v[1]) for u, v in allp if u[0] == "v"]; ap = [(u[1], v[1]) for u, v in allp if u[0] == "a"]
    if which == 2 and o.get("pf", 1):
        for r in range(4):
            for half in range(2):
                a(f"buffer_load_dword v43, v{vPF}, s[{S_X}:{S_X+3}], s{sROW + r//2} offen offset:{(r&1)*2048 + half*512}", "vm")
    for n in range(0, len(vp), 4): two(vp[n:n + 4])
    for n in range(0, len(ap), 3):
        grp = ap[n:n + 3]
        for g, (u, v) in enumerate(grp):
            assert v == u + 4
            for x in range(8): a(f"v_accvgpr_read_b32 v{FREE+8*g+x}, a{u+x}")
        two([(FREE + 8 * g, FREE + 8 * g + 4) for g in range(len(grp))])
        for g, (u, v) in enumerate(grp):
            for x in range(8): a(f"v_accvgpr_write_b32 a{u+x}, v{FREE+8*g+x}")
    a("s_nop 1")
    return L

def epilogue(o):
    L = [I("s_nop 7")]; a = lambda s, kind=None: L.append(I(s, kind))
    for j in range(16):
        jp, uv = j >> 1, j & 1
        regs = []
        for eb in range(4):
            t, b = acc(jp, uv, eb)
            if t == "a":
                nb = FREE + 16 * (j & 1) + 4 * eb
                for r in range(4): a(f"v_accvgpr_read_b32 v{nb+r}, a{b+r}")
                b = nb
            regs.append(b)
        prs = [(regs[h] + 2 * p, regs[2 + h] + 2 * p) for h in range(2) for p in range(2)]
        c1, c2 = (sC1, sC2) if uv == 0 else (sC1o, sC2o)
        for f, g in prs: a(f"v_pk_mul_f32 {P2(f)}, {P2(f)}, s[{c1}:{c1+1}]")
        for f, g in prs: a(f"v_pk_mul_f32 {P2(g)}, {P2(g)}, s[{c2}:{c2+1}]")
        for f, g in prs: a(f"v_min_f32 v{f}, s{sCL}, v{f}"); a(f"v_min_f32 v{f+1}, s{sCL}, v{f+1}")
        for f, g in prs: a(f"v_exp_f32 v{g}, v{g}"); a(f"v_exp_f32 v{g+1}, v{g+1}")
        for f, g in prs: a(f"v_exp_f32 v{f}, v{f}"); a(f"v_exp_f32 v{f+1}, v{f+1}")
        for f, g in prs: a(f"v_pk_fma_f32 {P2(f)}, {P2(f)}, s[{sHALF}:{sHALF+1}], s[{sHALF}:{sHALF+1}]")
        for f, g in prs: a(f"v_pk_fma_f32 {P2(g)}, {P2(f)}, {P2(g)}, {P2(f)}")
        for f, g in prs: a(f"v_rcp_f32 v{g}, v{g}"); a(f"v_rcp_f32 v{g+1}, v{g+1}")
        a("s_nop 0")
        for f, g in prs: a(f"v_pk_fma_f32 {P2(f)}, {P2(f)}, {P2(g)}, {P2(g)} neg_lo:[0,0,1] neg_hi:[0,0,1]")
        oq = regs[2]
        for n in range(4): a(f"v_cvt_pk_bf16_f32 v{oq+n}, v{regs[0]+n}, v{regs[1]+n}")
        a(f"buffer_store_dwordx4 v[{oq}:{oq+3}], v{vOUT}, s[{S_O}:{S_O+3}], s{sROW + j//2} offen offset:{(j&1)*2048}", "vm")
    a(f"v_mov_b32 v{vOUT}, v{vOUT2}")
    return L

def tile_setup_x(a, sTT, vxm, vxh):
    t = POOL
    a(f"s_lshl_b32 s{sT0}, s{sTT}, 8"); a(f"s_and_b32 s{sT1}, s{sWAVE}, 1"); a(f"s_lshl_b32 s{sT2}, s{sT1}, 7"); a(f"s_add_u32 s{sT0}, s{sT0}, s{sT2}")
    a(f"v_lshrrev_b32 v{t[0]}, 3, v{vLANE}"); a(f"v_lshlrev_b32 v{t[1]}, 4, v{t[0]}"); a(f"v_add_u32 v{t[1]}, s{sT0}, v{t[1]}")
    G.rowbytes(a, t[1], t[2], t[3])
    a(f"s_mul_i32 s{sT1}, s{sT1}, 3")
    a(f"v_and_b32 v{t[3]}, 7, v{vLANE}"); a(f"v_xor_b32 v{t[3]}, s{sT1}, v{t[3]}"); a(f"v_lshlrev_b32 v{t[3]}, 4, v{t[3]}")
    a(f"s_lshr_b32 s{sT1}, s{sWAVE}, 1"); a(f"s_lshl_b32 s{sT1}, s{sT1}, 7")
    a(f"v_add3_u32 v{vxm}, v{t[2]}, v{t[3]}, s{sT1}")
    a(f"v_mov_b32 v{vxh}, v{vxm}"); a(f"v_mov_b32 v{t[4]}, 0x70000000")
    for thr in (0, 8000, 16000, 24000):
        a(f"v_cmp_eq_u32 vcc, {thr}, v{t[1]}"); a("s_nop 1"); a(f"v_cndmask_b32 v{vxh}, v{vxh}, v{t[4]}, vcc")

def setup_regs():
    for k in ("sWAVE", "sET", "sT0", "sT1", "sT2", "vLANE", "POOL"): setattr(G, k, globals()[k])

def unit0_special(a, late):
    RB = ACCV; TB = ACCV + 72
    P = [None] * 4; M = [None] * 4
    pool = Pool(list(range(TB, TB + 72, 2)))
    oq = [TB + 72, TB + 76, TB + 80, TB + 84]
    for n in range(9):
        r3, r4 = RB + 8 * n, RB + 8 * n + 4
        t3 = [pool.get() for _ in range(4)]; t4 = [pool.get() for _ in range(4)]
        first = True
        for t, r in ((t3, r3), (t4, r4)):
            for x in range(4):
                a(f"v_lshlrev_b32 v{t[x]}, 16, v{r+x}", needs=[("vm", ("X0", 2*n+1))] if first else ()); first = False
                a(f"v_and_b32 v{t[x]+1}, s{sMASK}, v{r+x}")
        for it in late[n]: a.L.append(it)
        p = [pool.get() for _ in range(4)]
        for x in range(4): a(f"v_pk_fma_f32 {P2(p[x])}, {P2(t3[x])}, s[{sPB}:{sPB+1}], {P2(t4[x])}")
        for x in range(4): a(f"v_pk_fma_f32 {P2(t4[x])}, {P2(t3[x])}, s[{sPB}:{sPB+1}], {P2(t4[x])} neg_lo:[0,1,0] neg_hi:[0,1,0]")
        pool.put(*t3)
        if n:
            qa, qb = oq[2 * (n & 1)], oq[2 * (n & 1) + 1]
            for x in range(4): a(f"v_pk_fma_f32 {P2(P[x])}, {P2(P[x])}, s[{sPK}:{sPK+1}], {P2(p[x])}")
            for x in range(4): a(f"v_pk_fma_f32 {P2(M[x])}, {P2(M[x])}, s[{sPK}:{sPK+1}], {P2(t4[x])}")
            for x in range(4): a(f"v_cvt_pk_bf16_f32 v{qa+x}, v{P[x]}, v{P[x]+1}")
            for x in range(4): a(f"v_cvt_pk_bf16_f32 v{qb+x}, v{M[x]}, v{M[x]+1}")
            a(f"ds_write_b128 v{vTW}, v[{qa}:{qa+3}] offset:{(n-1)*1024}", "lg", "TW")
            a(f"ds_write_b128 v{vTW}, v[{qb}:{qb+3}] offset:{(8+n-1)*1024}", "lg", "TW")
            pool.put(*P); pool.put(*M)
        P = p; M = t4

S_WI, S_WO, S_D = 64, 68, 72
sPDG, sPPART, sMODE, sCNT = 91, 92, 93, 94
def wp_addr(a, vlane):
    p = POOL
    a(f"v_lshrrev_b32 v{p[8]}, 1, v{vlane}"); a(f"v_lshlrev_b32 v{p[8]}, 2, v{p[8]}")
    a(f"v_and_b32 v{p[13]}, 1, v{vlane}"); a(f"v_lshl_add_u32 v{p[8]}, v{p[13]}, 13, v{p[8]}")
    a(f"v_add_u32 v{p[9]}, 4096, v{p[8]}")
    a(f"v_lshrrev_b32 v{p[12]}, 5, v{vlane}"); a(f"v_mul_u32_u24 v{p[12]}, {WSLICE}, v{p[12]}")
    a(f"v_lshl_add_u32 v{p[12]}, v{p[13]}, 3, v{p[12]}")
    a(f"v_bfe_u32 v{p[13]}, v{vlane}, 1, 4"); a(f"v_lshl_add_u32 v{p[12]}, v{p[13]}, 4, v{p[12]}")

def wp_body(a, filler, CS, SB, sfl, WR=160):
    TP = WR + 20; RS = TP + 14; OUT = RS + 24
    vL = [POOL[8], POOL[9]]; vS = POOL[12]
    a(f"s_lshr_b32 s{sT0}, s{sPPART}, 1"); a(f"s_lshl_b32 s{sT1}, s{sT0}, 10"); a(f"s_lshl_b32 s{sT2}, s{sET}, 8")
    a(f"s_add_u32 s{sT1}, s{sT1}, s{sT2}"); a(f"s_and_b32 s{sT2}, s{sPPART}, 1"); a(f"s_lshl_b32 s{sT2}, s{sT2}, 7")
    a(f"s_add_u32 s{sT1}, s{sT1}, s{sT2}"); a(f"s_lshl_b32 s{sT2}, s{sPDG}, 14"); a(f"s_add_u32 s{SB[0]}, s{sT1}, s{sT2}")
    for i in range(1, 5): a(f"s_add_u32 s{SB[i]}, s{SB[0]}, {i*1048576}")
    for m in range(4):
        for i in range(5):
            a(f"buffer_load_dword v{WR+m*5+i}, v{vL[m//2]}, s[{S_WI}:{S_WI+3}], s{SB[i]} offen offset:{(m&1)*2048}")
    filler()
    a(f"s_lshl_b32 s{sT1}, s{sET}, 1"); a(f"s_and_b32 s{sT0}, s{sPPART}, 1"); a(f"s_add_u32 s{sT1}, s{sT1}, s{sT0}")
    a(f"s_mul_i32 s{sT1}, s{sT1}, {2*WSLICE}")
    a(f"s_lshr_b32 s{sT0}, s{sPPART}, 1"); a(f"s_lshl_b32 s{sT0}, s{sT0}, 11"); a(f"s_add_u32 s{sT1}, s{sT1}, s{sT0}")
    a(f"s_lshr_b32 s{sT0}, s{sPDG}, 2"); a(f"s_lshl_b32 s{sT0}, s{sT0}, 13"); a(f"s_add_u32 s{sT1}, s{sT1}, s{sT0}")
    a(f"s_and_b32 s{sT0}, s{sPDG}, 3"); a(f"s_lshl_b32 s{sT0}, s{sT0}, 8"); a(f"s_add_u32 s{SB[0]}, s{sT1}, s{sT0}")
    for k in range(1, 6): a(f"s_add_u32 s{SB[k]}, s{SB[0]}, {(k//2)*131072 + (k%2)*4096}")
    ca = -1 / 1.5; c3 = 1.5 / 6; c4 = (4 / 3) / 6
    for r, v in zip(CS, (0.25, c3, c3 * B_, c4, -c4 * B_, ca, ca * A_, B_)): a(f"s_mov_b32 s{r}, {hx(v)}")
    C = lambda k: f"s[{CS[k]}:{CS[k]+1}]"
    for m in range(4):
        if m % 2 == 0: a(f"s_waitcnt vmcnt({10 - 5*m})")
        g = [TP + 2 * i for i in range(5)]; Ea, Oa = TP + 10, TP + 12
        for i in range(5):
            a(f"v_lshlrev_b32 v{g[i]}, 16, v{WR+m*5+i}"); a(f"v_and_b32 v{g[i]+1}, s{sMASK}, v{WR+m*5+i}")
        W = [RS + 12 * (m & 1) + 2 * k for k in range(6)]
        a(f"v_pk_fma_f32 {P2(Ea)}, {P2(g[2])}, 0.5, {P2(g[0])} op_sel_hi:[1,0,1]")
        a(f"v_pk_fma_f32 {P2(Oa)}, {P2(g[3])}, 0.5, {P2(g[1])} op_sel_hi:[1,0,1]")
        a(f"v_pk_mul_f32 {P2(W[5])}, {P2(g[4])}, {C(7)} op_sel_hi:[1,0]")
        a(f"v_pk_fma_f32 {P2(g[2])}, {P2(g[2])}, 2.0, {P2(g[0])} op_sel_hi:[1,0,1]")
        a(f"v_pk_fma_f32 {P2(g[1])}, {P2(g[3])}, 2.0, {P2(g[1])} op_sel_hi:[1,0,1]")
        a(f"v_pk_fma_f32 {P2(Ea)}, {P2(g[4])}, {C(0)}, {P2(Ea)} op_sel_hi:[1,0,1]")
        a(f"v_pk_mul_f32 {P2(Oa)}, {P2(Oa)}, {C(6)} op_sel_hi:[1,0]")
        a(f"v_pk_fma_f32 {P2(g[2])}, {P2(g[4])}, 4.0, {P2(g[2])} op_sel_hi:[1,0,1]")
        a(f"v_pk_mul_f32 {P2(W[0])}, {P2(g[1])}, {C(2)} op_sel_hi:[1,0]")
        a(f"v_pk_mul_f32 {P2(W[1])}, {P2(g[1])}, {C(4)} op_sel_hi:[1,0]")
        a(f"v_pk_fma_f32 {P2(W[2])}, {P2(Ea)}, {C(5)}, {P2(Oa)} op_sel_hi:[1,0,1]")
        a(f"v_pk_fma_f32 {P2(W[3])}, {P2(Ea)}, {C(5)}, {P2(Oa)} op_sel_hi:[1,0,1] neg_lo:[0,0,1] neg_hi:[0,0,1]")
        a(f"v_pk_fma_f32 {P2(W[0])}, {P2(g[2])}, {C(1)}, {P2(W[0])} op_sel_hi:[1,0,1]")
        a(f"v_pk_fma_f32 {P2(W[1])}, {P2(g[2])}, {C(3)}, {P2(W[1])} op_sel_hi:[1,0,1]")
        a(f"v_mov_b32 v{W[4]}, v{g[0]}"); a(f"v_mov_b32 v{W[4]+1}, v{g[0]+1}")
        if m & 1:
            for k in range(6):
                for col in range(2):
                    a(f"v_cvt_pk_bf16_f32 v{OUT+(k*2+col)*2+m//2}, v{RS+2*k+col}, v{RS+12+2*k+col}")
    for k in range(6):
        for col in range(2):
            q = OUT + (k * 2 + col) * 2
            a(f"buffer_store_dwordx2 v[{q}:{q+1}], v{vS}, s[{S_WO}:{S_WO+3}], s{SB[k]} offen offset:{col*1024}{sfl}")

def wprep_fused(a, x0loads, filler, o, TRC=lambda: [], diag=False):
    a("L_WP:")
    def fill():
        a(f"s_cmp_lg_u32 s{sMODE}, 0"); a("s_cbranch_scc1 L_WP1")
        filler()
        a("L_WP1:")
    CS = [76, 78, 36, 34, 96, 98, 100, 60] if diag else [76, 78, 80, 82, 96, 98, 100, 60]
    wp_body(a, fill, CS, [72, 73, 74, 75, 62, 63], " sc1")
    a(f"s_cmp_eq_u32 s{sMODE}, 0"); a("s_cbranch_scc1 L_WPD")
    a("s_waitcnt vmcnt(0)")
    a(f"s_add_u32 s{sPPART}, s{sPPART}, 1"); a(f"s_cmp_lt_u32 s{sPPART}, 4"); a("s_cbranch_scc1 L_WP")
    a(f"s_mov_b32 s{sPPART}, 0"); a(f"s_add_u32 s{sPDG}, s{sPDG}, 1"); a(f"s_cmp_lt_u32 s{sPDG}, 64"); a("s_cbranch_scc1 L_WP")
    a("s_branch L_GO")
    a("L_WPD:")
    a.L += TRC()
    nx = o.get("x0a", 18)
    a.L += x0loads[:nx]
    a(f"s_waitcnt vmcnt({nx + (1 if diag else 0)})")
    a.L += TRC()
    return x0loads[nx:]

def wprep_kernel_text():
    a = Em()
    a(".globl wprep_kernel"); a(".p2align 8"); a(".type wprep_kernel,@function"); a("wprep_kernel:")
    a("s_cmp_ge_u32 s2, 256"); a("s_cbranch_scc1 WP_END")
    a("s_load_dwordx2 s[6:7], s[0:1], 8"); a("s_load_dwordx2 s[12:13], s[0:1], 32")
    a("v_lshrrev_b32 v1, 6, v0"); a("v_and_b32 v2, 63, v0"); a("s_nop 0"); a(f"v_readfirstlane_b32 s{sPPART}, v1")
    a(f"s_and_b32 s{sET}, s2, 3"); a(f"s_lshr_b32 s{sPDG}, s2, 2"); a(f"s_mov_b32 s{sMASK}, 0xffff0000")
    wp_addr(a, 2)
    a("s_waitcnt lgkmcnt(0)")
    a(f"s_mov_b32 s{S_WI}, s6"); a(f"s_and_b32 s{S_WI+1}, s7, 0xffff"); a(f"s_mov_b32 s{S_WI+2}, 5242880"); a(f"s_mov_b32 s{S_WI+3}, 0x00020000")
    a(f"s_mov_b32 s{S_WO}, s12"); a(f"s_and_b32 s{S_WO+1}, s13, 0xffff"); a(f"s_mov_b32 s{S_WO+2}, {16*WSLICE}"); a(f"s_mov_b32 s{S_WO+3}, 0x00020000")
    wp_body(a, lambda: None, [76, 78, 80, 82, 96, 98, 100, 60], [72, 73, 74, 75, 62, 63], "", WR=40)
    a("s_waitcnt vmcnt(0)"); a("WP_END:"); a("s_endpgm")
    out = []; emit(out, a.L); return out

class Em:
    def __init__(self): self.L = []
    def __call__(self, s, kind=None, tag=None, needs=()): self.L.append(I(s, kind, tag, needs))

def gen_main(o):
    setup_regs()
    K = NAME + "_kernel"; fl = o.get("wflag", "")
    a = Em()
    a(f".globl {K}"); a(".p2align 8"); a(f".type {K},@function"); a(K + ":")
    a("s_cmp_ge_u32 s2, 256"); a("s_cbranch_scc1 L_END")
    a("s_load_dwordx8 s[4:11], s[0:1], 0"); a("s_load_dwordx2 s[12:13], s[0:1], 32")
    if o.get("trace"): a("s_memtime s[86:87]"); a("s_memrealtime s[88:89]")
    a("v_lshrrev_b32 v1, 6, v0"); a(f"v_and_b32 v{vLANE}, 63, v0"); a("s_nop 0"); a(f"v_readfirstlane_b32 s{sWAVE}, v1")
    a("s_and_b32 s80, s2, 7"); a("s_lshr_b32 s81, s2, 3"); a("s_and_b32 s82, s80, 1"); a("s_lshl_b32 s82, s82, 1")
    a(f"s_and_b32 s{sET}, s81, 1"); a(f"s_add_u32 s{sET}, s{sET}, s82")
    a("s_lshr_b32 s80, s80, 1"); a("s_lshr_b32 s81, s81, 1"); a("s_mul_i32 s82, s80, 31")
    fuse = o.get("fuse")
    if fuse:
        a(f"s_lshl_b32 s{sPDG}, s80, 4"); a(f"s_add_u32 s{sPDG}, s{sPDG}, s81"); a(f"s_mov_b32 s{sPPART}, s{sWAVE}")
        a(f"s_mov_b32 s{sMODE}, 0"); a(f"s_mov_b32 s{sCNT}, {o.get('spin', 20000)}")
        a(f"s_lshl_b32 s85, s{sET}, 6"); a(f"s_add_u32 s85, s85, s{sPDG}")
    a("s_cmp_eq_u32 s80, 0"); a("s_cselect_b32 s83, 0, 1"); a("s_add_u32 s82, s82, s83"); a("s_add_u32 s82, s82, s81")
    a("s_sub_u32 s83, 16, s83"); a("s_cmp_lt_u32 s81, s83")
    a(f"s_cselect_b32 s{sNT}, 2, 1"); a("s_cselect_b32 s81, 16, 0"); a("s_add_u32 s81, s82, s81")
    for k in range(10): a(f"s_mov_b32 s{sROW+k}, {k*4096}")
    a("s_mov_b32 s47, -768"); a("s_mov_b32 s58, 256"); a("s_mov_b32 s59, 2048")
    def trace_setup():
        if not o.get("trace"): return lambda: []
        a("s_add_u32 s80, s12, 0x800000"); a("s_addc_u32 s81, s13, 0"); a("s_and_b32 s81, s81, 0xffff")
        a("s_mov_b32 s82, 0x100000"); a("s_mov_b32 s83, 0x00020000")
        a("s_lshl_b32 s90, s2, 2"); a(f"s_add_u32 s90, s90, s{sWAVE}"); a("s_lshl_b32 s90, s90, 9"); a("v_mov_b32 v0, 0")
        return lambda: [I("s_waitcnt lgkmcnt(0)"), I("v_mov_b32 v42, s86"), I("v_mov_b32 v43, s88"),
                       I("buffer_store_dwordx2 v[42:43], v0, s[80:83], s90 offen", "vm"), I("s_add_u32 s90, s90, 8"),
                       I("s_memtime s[86:87]"), I("s_memrealtime s[88:89]")]
    ST = lambda k: a(f"s_memtime s[{92+2*k}:{93+2*k}]") if o.get("fine") else None
    (tile_setup_x if o.get('x128', 1) else G.tile_setup_x)(a, 82, vXM, vXH)
    if fuse:
        p = POOL
        a(f"s_mov_b32 s{sMASK}, 0xffff0000")
        wp_addr(a, vLANE)
        a(f"v_and_b32 v{p[14]}, 15, v{vLANE}"); a(f"v_lshlrev_b32 v{p[14]}, 2, v{p[14]}"); a(f"s_lshl_b32 s{sT0}, s{sET}, 6"); a(f"v_add_u32 v{p[14]}, s{sT0}, v{p[14]}")
    ST(0)
    a("s_waitcnt lgkmcnt(0)")
    ST(1)
    a(f"s_sub_u32 s{S_X}, s4, 8192"); a(f"s_subb_u32 s{S_X+1}, s5, 0"); a(f"s_and_b32 s{S_X+1}, s{S_X+1}, 0xffff")
    a(f"s_mov_b32 s{S_X+2}, {32768000+8192}"); a(f"s_mov_b32 s{S_X+3}, 0x00020000")
    x0 = [xl_own("AB", k, dst=ACCV + 4 * k, tag=("X0", k)) for k in range(18)]
    early = 0 if fuse else o.get("wearly", 2)
    l2e = math.log2(math.e)
    def consts(a):
        for r, v in ((sC1, 2 * l2e), (sC2, -l2e), (sC1o, 2 * l2e * A_), (sC2o, -l2e * A_), (sHALF, 0.5), (sK1, -0.375), (sK2, -1 / 3),
                     (sM2, -2.0), (sPB, B_), (sPK, -0.5)):
            a(f"s_mov_b32 s{r}, {hx(v)}"); a(f"s_mov_b32 s{r+1}, {hx(v)}")
        a(f"s_mov_b32 s{sM25}, {hx(-2.5)}")
    def rest_setup():
        a(f"v_lshlrev_b32 v{vWOFF}, 4, v{vLANE}")
        a(f"s_lshl_b32 s{sT0}, s{sET}, 2"); a(f"s_add_u32 s{sT0}, s{sT0}, s{sWAVE}"); a(f"s_mul_i32 s{sT0}, s{sT0}, {WSLICE}")
        a(f"s_add_u32 s{S_W}, s12, s{sT0}"); a(f"s_addc_u32 s{S_W+1}, s13, 0"); a(f"s_and_b32 s{S_W+1}, s{S_W+1}, 0xffff")
        a(f"s_mov_b32 s{S_W+2}, 32768"); a(f"s_mov_b32 s{S_W+3}, 0x00020000")
        for h in range(early):
            for eb in range(4): a.L.append(wload(h, eb, fl))
        a(f"s_mov_b32 s{S_O}, s8"); a(f"s_and_b32 s{S_O+1}, s9, 0xffff"); a(f"s_mov_b32 s{S_O+2}, 32768000"); a(f"s_mov_b32 s{S_O+3}, 0x00020000")
        a(f"s_mov_b32 s{sA}, {hx(A_)}"); a(f"s_mov_b32 s{sCL}, {hx(40.0)}")
        a(f"s_mov_b32 s{sMASK}, 0xffff0000"); a(f"s_mov_b32 s84, {-11*32768}"); a(f"s_mov_b32 s{sUN}, 0")
        (tile_setup_x if o.get('x128', 1) else G.tile_setup_x)(a, 14, vXMn, vXHn)
        G.tile_setup_o(a, 15, vOUT); G.tile_setup_o(a, 14, vOUT2)
        t = POOL
        if o.get("x128", 1):
            a(f"s_lshr_b32 s{sT0}, s{sWAVE}, 1"); a(f"s_lshl_b32 s{sT0}, s{sT0}, 15"); a(f"s_and_b32 s{sT1}, s{sWAVE}, 1"); a(f"s_lshl_b32 s{sT1}, s{sT1}, 9")
            a(f"s_add_u32 s{sT0}, s{sT0}, s{sT1}")
            a(f"v_bfe_u32 v{t[0]}, v{vLANE}, 2, 1"); a(f"v_lshlrev_b32 v{t[0]}, 14, v{t[0]}")
            a(f"v_lshrrev_b32 v{t[1]}, 3, v{vLANE}"); a(f"v_lshl_add_u32 v{t[0]}, v{t[1]}, 6, v{t[0]}")
            a(f"v_and_b32 v{t[1]}, 3, v{vLANE}"); a(f"v_lshl_add_u32 v{t[0]}, v{t[1]}, 4, v{t[0]}")
            a(f"v_add_u32 v{vTW}, s{sT0}, v{t[0]}")
        else:
            a(f"s_lshl_b32 s{sT0}, s{sWAVE}, 14"); a(f"v_add_u32 v{vTW}, s{sT0}, v{vWOFF}")
        a(f"v_and_b32 v{t[0]}, 15, v{vLANE}"); a(f"v_lshrrev_b32 v{t[1]}, 3, v{t[0]}"); a(f"v_mul_u32_u24 v{t[1]}, 3, v{t[1]}")
        a(f"v_lshrrev_b32 v{t[2]}, 4, v{vLANE}"); a(f"v_xor_b32 v{t[1]}, v{t[1]}, v{t[2]}")
        a(f"v_lshlrev_b32 v{t[0]}, 2, v{t[0]}"); a(f"v_add_u32 v{t[0]}, v{t[0]}, v{t[1]}"); a(f"v_lshlrev_b32 v{t[0]}, 4, v{t[0]}")
        a(f"v_xor_b32 v{vTR}, 0x10000, v{t[0]}")
    a("s_mov_b32 s14, s81"); a("s_mov_b32 s15, s82")
    if fuse:
        a(f"s_mov_b32 s{S_WI}, s6"); a(f"s_and_b32 s{S_WI+1}, s7, 0xffff"); a(f"s_mov_b32 s{S_WI+2}, 5242880"); a(f"s_mov_b32 s{S_WI+3}, 0x00020000")
        a(f"s_mov_b32 s{S_WO}, s12"); a(f"s_and_b32 s{S_WO+1}, s13, 0xffff"); a(f"s_mov_b32 s{S_WO+2}, {16*WSLICE}"); a(f"s_mov_b32 s{S_WO+3}, 0x00020000")
        a("s_mov_b32 s4, s10"); a("s_and_b32 s5, s11, 0xffff"); a("s_mov_b32 s6, 256"); a("s_mov_b32 s7, 0x00020000")
        if o.get("touch"):
            a(f"v_mul_u32_u24 v{POOL[16]}, 98304, v{vLANE}")
            a(f"buffer_load_dword v{POOL[17]}, v{POOL[16]}, s[{S_WO}:{S_WO+3}], 0 offen sc1")
            a(f"buffer_load_dword v{POOL[18]}, v{vXM}, s[{S_X}:{S_X+3}], s{sROW+2} offen")
            a(f"buffer_load_dword v{POOL[19]}, v{POOL[14]}, s[4:7], 0 offen sc1")
        if o.get("trace") == 3:
            TRC = trace_setup(); x0r = wprep_fused(a, x0, rest_setup, o, TRC, True)
        else: x0r = wprep_fused(a, x0, rest_setup, o)
        a("s_barrier")
        a(f"s_cmp_lg_u32 s{sWAVE}, 0"); a("s_cbranch_scc1 L_NF")
        a(f"v_mov_b32 v{POOL[0]}, s85"); a(f"v_mov_b32 v{POOL[1]}, 1")
        if not o.get("nofl"): a(f"buffer_store_byte v{POOL[1]}, v{POOL[0]}, s[4:7], 0 offen sc1")
        a("L_NF:")
        a.L += x0r
    else:
        a.L += x0
        ST(2)
        rest_setup()
    consts(a)
    if o.get('trace') != 3: TRC = trace_setup()
    late = [[] for _ in range(9)]
    rest = switch_ops() + [i for k in range(NPRE) for i in xl_next(k)] + ([] if fuse else [wload(h, eb, fl) for h in range(early, 7) for eb in range(4)])
    l0 = o.get("late0", 0)
    nsw = len(switch_ops())
    late[l0] += rest[:nsw]; rest = rest[nsw:]
    per = -(-len(rest) // (9 - l0))
    for n in range(l0, 9): late[n] += rest[(n - l0) * per:(n - l0 + 1) * per]
    if o.get("trace") == 2: a.L += TRC()
    if o.get("fine"):
        ST(3); a("s_waitcnt vmcnt(%d)" % (16 + 4 * early)); ST(4); a("s_mov_b32 s85, s86")
    unit0_special(a, late)
    if o.get("trace") in (2, 3): a.L += TRC()
    if fuse:
        a(f"s_cmp_lg_u32 s{sWAVE}, 0"); a("s_cbranch_scc1 L_GO2")
        a("L_POLL:")
        a(f"buffer_load_dword v{POOL[15]}, v{POOL[14]}, s[4:7], 0 offen sc1")
        a("s_waitcnt vmcnt(0)")
        a(f"v_cmp_ne_u32 vcc, 0x01010101, v{POOL[15]}"); a("s_nop 1")
        a("s_cmp_eq_u64 vcc, 0"); a("s_cbranch_scc1 L_GO2")
        a(f"s_sleep {o.get('slp', 4)}"); a(f"s_sub_u32 s{sCNT}, s{sCNT}, 1"); a(f"s_cmp_lg_u32 s{sCNT}, 0"); a("s_cbranch_scc1 L_POLL")
        a("s_load_dwordx2 s[96:97], s[0:1], 8"); a("s_waitcnt lgkmcnt(0)")
        a(f"s_mov_b32 s{S_WI}, s96"); a(f"s_and_b32 s{S_WI+1}, s97, 0xffff"); a(f"s_mov_b32 s{S_WI+2}, 5242880"); a(f"s_mov_b32 s{S_WI+3}, 0x00020000")
        a(f"s_mov_b32 s{S_WO}, s12"); a(f"s_and_b32 s{S_WO+1}, s13, 0xffff"); a(f"s_mov_b32 s{S_WO+2}, {16*WSLICE}"); a(f"s_mov_b32 s{S_WO+3}, 0x00020000")
        a(f"s_mov_b32 s{sMODE}, 1"); a(f"s_mov_b32 s{sPDG}, 0"); a(f"s_mov_b32 s{sPPART}, 0"); a("s_branch L_WP")
        a("L_GO:")
        consts(a)
        a("L_GO2:")
        a.L += bar_ops()
        if o.get("trace") == 3: a.L += TRC()
        for h in range(7):
            for eb in range(4): a.L.append(wload(h, eb, fl))
            if h == 0: a.L += [tread(f) for f in range(8)]
    else:
        a.L += bar_ops() + [tread(f) for f in range(8)]
    a("s_nop 1")
    pro = a.L
    Bf, Bab, Bc = TRC() + body("AB", True, o), TRC() + body("AB", False, o), TRC() + body("C", False, o)
    B1, B2, EP = bfly(1, o), bfly(2, o), epilogue(o)
    seq = list(pro)
    for tile in range(3):
        for s in range(12):
            seq += Bf if s == 0 else (Bc if 7 <= s <= 10 else Bab)
            if s == 3: seq += B1
            if s == 7: seq += B2
            if s == 11: seq += EP
    resolve(seq, {"vm": None, "lg": None})
    out = []
    emit(out, pro)
    out += ["L_TILE:", f" s_mov_b32 s{sSIG}, 0"]
    emit(out, Bf)
    out += [f" s_mov_b32 s{sSIG}, 1", " s_branch L_AB", ".p2align 6", "L_C:"]
    emit(out, Bc)
    out += [f" s_add_u32 s{sSIG}, s{sSIG}, 1", f" s_cmp_eq_u32 s{sSIG}, 11", " s_cbranch_scc1 L_AB",
            f" s_cmp_lg_u32 s{sSIG}, 8", " s_cbranch_scc1 L_C"]
    emit(out, B2)
    out += [" s_branch L_C", ".p2align 6", "L_AB:"]
    emit(out, Bab)
    out += [f" s_add_u32 s{sSIG}, s{sSIG}, 1", f" s_cmp_eq_u32 s{sSIG}, 7", " s_cbranch_scc1 L_C",
            f" s_cmp_eq_u32 s{sSIG}, 12", " s_cbranch_scc1 L_EPI", f" s_cmp_lg_u32 s{sSIG}, 4", " s_cbranch_scc1 L_AB"]
    emit(out, B1)
    out += [" s_branch L_AB", "L_EPI:"]
    emit(out, EP)
    out += [f" s_sub_u32 s{sNT}, s{sNT}, 1", f" s_cmp_lg_u32 s{sNT}, 0", " s_cbranch_scc1 L_TILE", " s_waitcnt vmcnt(0) lgkmcnt(0)"]
    if o.get("trace"): emit(out, TRC() + TRC()[:4] + [I("s_waitcnt vmcnt(0)")])
    if o.get("fine"):
        out += [" s_lshl_b32 s90, s2, 2", f" s_add_u32 s90, s90, s{sWAVE}", " s_lshl_b32 s90, s90, 9"]
        for k in range(5):
            out += [f" s_sub_u32 s84, s{92+2*k}, s85", " v_mov_b32 v42, s84", f" buffer_store_dword v42, v0, s[80:83], s90 offen offset:{400+8*k}"]
        out += [" s_waitcnt vmcnt(0)"]
    out += ["L_END:", " s_endpgm"]
    if o.get("haz"):
        import hazchk
        lin = []; emit(lin, seq[:len(pro) + 3 * (len(Bf) + 2000) + 40000]); print("hazards", hazchk.check(lin))
    return out

def main():
    o = {}
    for s in sys.argv[2:]:
        k, _, v = s.partition("=")
        o[k] = eval(v) if v else 1
    CW.update(o.get("cw", {}))
    if o.get("fuse"):
        o["wflag"] = " sc1"
        out = [HEADER, f"; @launch grid=(256,1,1) block=(256,1,1) lds={LDS_BYTES}", '.amdgcn_target "amdgcn-amd-amdhsa--gfx950"', ".text"]
        out += gen_main(o)
        out.append('.section .rodata,"a"')
        out += kd(NAME + "_kernel", 504, 102, 256)
    else:
        out = [HEADER, "; @launch kernel=wprep_kernel grid=(256,1,1) block=(256,1,1) lds=0",
               f"; @launch kernel={NAME}_kernel grid=(256,1,1) block=(256,1,1) lds={LDS_BYTES}",
               '.amdgcn_target "amdgcn-amd-amdhsa--gfx950"', ".text"]
        out += gen_main(o)
        out += wprep_kernel_text()
        out.append('.section .rodata,"a"')
        out += kd(NAME + "_kernel", 504, 102, 256) + kd("wprep_kernel", 128, 102, 128)
    open(sys.argv[1], "w").write("\n".join(out) + "\n")

if __name__ == "__main__":
    main()
```

```python
import sys, math
sys.path.insert(0, "tools")
import gen3 as G
from gen3 import I, icost, resolve, emit, hx, R, P2, NAME, kd, Pool, CW

HEADER = """; Kernarg layout for this problem (40 bytes, ptrs only, base s[0:1]):
; Launch 2: persistent kernel: input transform (VALU) -> LDS -> MFMA, output transform, tanh*sigmoid."""
WSLICE = 2 * 16 * 16 * 1024
LDS_BYTES = 131072
S_X, S_W, S_O = 16, 20, 24
sWAVE, sET, sNT, sSIG, sUN, sXO = 28, 29, 30, 31, 32, 33
sMASK, sCL, sWI, sWIH, sDX = 34, 35, 36, 37, 38
sK425, sK5, sK525, sK125, sKQ = 39, 40, 41, 42, 43
sT0, sT1, sT2 = 44, 45, 46
sM768, sROW, s256, s2048, sWNEG = 47, 48, 58, 59, 84
sC = 60
sHALF, sP01, sP02, sM4, sP6, sP43 = 72, 74, 76, 78, 80, 82
sPDG, sPPART = 91, 92
S_WI, S_WO = 64, 68
vWOFF, vXM, vXH, vX2, vXMn, vXHn, vTR, vTW, vOUT, vOUT2 = 1, 2, 3, 4, 5, 6, 7, 8, 9, 10
vLANE = 11
CFG = dict(NOUTQ=4, NPOOL=40, NRAW=10, NT=4)
def layout():
    global OUTQ, POOL, FREE, NFREE, RAWB, NRAW, ACCV, NVG, AW, NTR
    OUTQ = 12; n = OUTQ + 4 * CFG["NOUTQ"]
    POOL = list(range(n, n + CFG["NPOOL"])); n += CFG["NPOOL"]
    FREE = 12; NFREE = n - 12
    RAWB = n; NRAW = CFG["NRAW"]; n += 4 * NRAW
    NVG = (256 - n) // 16; ACCV = 256 - 16 * NVG
    AW = 16 * (16 - NVG); NTR = CFG["NT"]
    assert AW + 128 + 4 * NTR <= 256, (AW, NVG)
    for k in ("sWAVE", "sET", "sT0", "sT1", "sT2", "vLANE", "POOL"): setattr(G, k, globals()[k])
def acc(jq, kk, eb):
    g = jq * 4 + eb
    return ("v", ACCV + g * 16 + kk * 4) if g < NVG else ("a", (g - NVG) * 16 + kk * 4)
def Wr(n, eb): return R("a", AW + ((n % 8) * 4 + eb) * 4)
def Tr(s): return R("a", AW + 128 + s * 4)
def raw(s): return RAWB + 4 * s
def urows(typ): return list(range(1, 19)) if typ == 1 else list(range(20))
NPRE = lambda: min(NRAW, 10)

def xl_own(typ, k, dst=None, tag=None):
    row = urows(typ)[k]; r = raw(k % NRAW) if dst is None else dst
    return I(f"buffer_load_dwordx4 v[{r}:{r+3}], v{vXH if row < 4 else vXM}, s[{S_X}:{S_X+3}], s{sROW+row//2} offen offset:{(row&1)*2048}",
             "vm", ("X", k % NRAW) if tag is None else tag)
def xl_next(k):
    r = raw(k); va = vXH if k < 3 else (vX2 if k == 3 else vXM)
    L = [I(f"buffer_load_dwordx4 v[{r}:{r+3}], v{va}, s[{S_X}:{S_X+3}], s{sXO} offen offset:{(k&1)*2048}", "vm", ("X", k))]
    if k & 1: L.append(I(f"s_add_u32 s{sXO}, s{sXO}, 4096"))
    return L
_l = [0]
def switch_ops():
    _l[0] += 1; L = f"LS{_l[0]}"
    return [I(s) for s in (
        f"s_add_u32 s{sUN}, s{sUN}, 1", f"s_and_b32 s{sT0}, s{sUN}, 3", f"s_cmp_eq_u32 s{sT0}, 0",
        f"s_cselect_b32 s{sDX}, s{sM768}, s{s256}",
        f"v_add_u32 v{vXM}, s{sDX}, v{vXM}", f"v_add_u32 v{vXH}, s{sDX}, v{vXH}",
        f"s_cmp_lg_u32 s{sUN}, 8", f"s_cbranch_scc1 {L}_a",
        f"s_mov_b32 s{sUN}, 0", f"v_mov_b32 v{vXM}, v{vXMn}", f"v_mov_b32 v{vXH}, v{vXHn}", f"{L}_a:",
        f"s_cmp_lt_u32 s{sUN}, 4", f"s_cselect_b32 s{sXO}, s{s2048}, 0",
        f"v_mov_b32 v{vX2}, v{vXM}", f"s_cbranch_scc1 {L}_b", f"v_mov_b32 v{vX2}, v{vXH}", f"{L}_b:")]

def unit_stream(typ):
    S = []; pool = Pool(POOL); nrows = len(urows(typ)); pend = []; hi = [0]
    def op(s, kind=None, tag=None):
        S.append([I(s, kind, tag, needs=pend[:])]); pend.clear()
    def get(n=1):
        r = [pool.get() for _ in range(n)]; hi[0] = max(hi[0], len(POOL) - len(pool.free)); return r
    freed = set(); ld = [NPRE()]
    def lastocc(slot, before):
        c = [r for r in range(before) if r % NRAW == slot]
        return max(c) if c else None
    def consumed(*ks):
        freed.update(ks)
        while True:
            n = ld[0]
            if n < nrows:
                p = lastocc(n % NRAW, n)
                if p is not None and p not in freed: break
                S.append([xl_own(typ, n)])
            else:
                kk = n - nrows
                if kk >= NPRE() or lastocc(kk, nrows) not in freed: break
                if kk == 0: S.append(switch_ops())
                S.append(xl_next(kk))
            ld[0] += 1
    consumed()
    def unp(k, dw):
        d = get(2); s = raw(k % NRAW) + dw
        op(f"v_lshlrev_b32 v{d[0]}, 16, v{s}"); op(f"v_and_b32 v{d[1]}, s{sMASK}, v{s}")
        return d
    def need(*ks): pend.extend(("vm", ("X", k % NRAW)) for k in ks)
    def each(f):
        for h in range(2): op(f(h))
    def tw(jq):
        for kk in range(4):
            q = OUTQ + 4 * (kk % CFG["NOUTQ"])
            op(f"ds_write_b128 v{vTW}, v[{q}:{q+3}] offset:{(kk*4+jq)*1024}", "lg", "TW")
    cv = lambda kk, dw, r: op(f"v_cvt_pk_bf16_f32 v{OUTQ+4*kk+dw}, v{r[0]}, v{r[1]}")
    if typ == 1:
        c1 = [None] * 4; c2 = [None] * 4
        need(0, 1)
        for dw in range(4):
            c1[dw] = unp(0, dw); c2[dw] = unp(1, dw)
        consumed(0, 1)
        for jq in range(4):
            k = 2 + 4 * jq
            need(k, k + 1, k + 2, k + 3)
            for dw in range(4):
                d3, d4, d5, d6 = [unp(k + i, dw) for i in range(4)]
                if dw == 3: consumed(k, k + 1, k + 2, k + 3)
                d1, d2 = c1[dw], c2[dw]
                e1 = get(2); o1 = get(2)
                each(lambda h: f"v_fma_f32 v{e1[h]}, s{sK425}, v{d4[h]}, v{d6[h]}")
                each(lambda h: f"v_fma_f32 v{o1[h]}, s{sK425}, v{d3[h]}, v{d5[h]}")
                each(lambda h: f"v_fma_f32 v{d4[h]}, s{sK5}, v{d4[h]}, v{d6[h]}")
                each(lambda h: f"v_fma_f32 v{d3[h]}, s{sK5}, v{d3[h]}, v{d5[h]}")
                each(lambda h: f"v_add_f32 v{e1[h]}, v{e1[h]}, v{d2[h]}")
                each(lambda h: f"v_add_f32 v{o1[h]}, v{o1[h]}, v{d1[h]}")
                each(lambda h: f"v_fmac_f32 v{d4[h]}, 4.0, v{d2[h]}")
                each(lambda h: f"v_fmac_f32 v{d3[h]}, 4.0, v{d1[h]}")
                each(lambda h: f"v_add_f32 v{d1[h]}, v{e1[h]}, v{o1[h]}")
                each(lambda h: f"v_sub_f32 v{e1[h]}, v{e1[h]}, v{o1[h]}")
                each(lambda h: f"v_fma_f32 v{d2[h]}, 0.5, v{d3[h]}, v{d4[h]}")
                each(lambda h: f"v_fma_f32 v{d4[h]}, -0.5, v{d3[h]}, v{d4[h]}")
                cv(0, dw, d1); cv(1, dw, e1); cv(2, dw, d2); cv(3, dw, d4)
                pool.put(*d1, *d2, *e1, *o1, *d3, *d4)
                c1[dw], c2[dw] = d5, d6
            tw(jq)
        for dw in range(4): pool.put(*c1[dw], *c2[dw])
    else:
        A0 = [None] * 4; A7 = [None] * 4; C2 = [None] * 4; B3 = [None] * 4
        def carries(dw, d4, d5, d6, d7):
            each(lambda h: f"v_fmac_f32 v{d5[h]}, s{sK5}, v{d7[h]}")
            each(lambda h: f"v_fma_f32 v{d4[h]}, -s{sK525}, v{d6[h]}, v{d4[h]}")
            each(lambda h: f"v_fma_f32 v{d7[h]}, s{sKQ}, v{d7[h]}, -v{d5[h]}")
            A0[dw], A7[dw], C2[dw], B3[dw] = d4, d7, d6, d5
        need(0, 1, 2, 3)
        for dw in range(4):
            d = [unp(i, dw) for i in range(4)]
            if dw == 3: consumed(0, 1, 2, 3)
            carries(dw, *d)
        for jq in range(4):
            k = 4 + 4 * jq
            need(k, k + 1, k + 2, k + 3)
            for dw in range(4):
                d4, d5, d6, d7 = [unp(k + i, dw) for i in range(4)]
                if dw == 3: consumed(k, k + 1, k + 2, k + 3)
                a0, a7, c2, b3 = A0[dw], A7[dw], C2[dw], B3[dw]
                each(lambda h: f"v_fma_f32 v{c2[h]}, s{sKQ}, v{c2[h]}, v{d6[h]}")
                each(lambda h: f"v_fma_f32 v{b3[h]}, s{sKQ}, v{b3[h]}, v{d5[h]}")
                each(lambda h: f"v_fmac_f32 v{a0[h]}, s{sK525}, v{d4[h]}")
                each(lambda h: f"v_fma_f32 v{a7[h]}, -s{sK525}, v{d5[h]}, v{a7[h]}")
                each(lambda h: f"v_fmac_f32 v{c2[h]}, s{sK125}, v{d4[h]}")
                each(lambda h: f"v_sub_f32 v{a0[h]}, v{a0[h]}, v{d6[h]}")
                each(lambda h: f"v_add_f32 v{a7[h]}, v{a7[h]}, v{d7[h]}")
                each(lambda h: f"v_fma_f32 v{b3[h]}, 2.0, v{b3[h]}, v{c2[h]}")
                cv(2, dw, a0); cv(3, dw, a7)
                each(lambda h: f"v_fma_f32 v{c2[h]}, 2.0, v{c2[h]}, -v{b3[h]}")
                cv(0, dw, b3); cv(1, dw, c2)
                pool.put(*a0, *a7, *c2, *b3)
                if jq < 3: carries(dw, d4, d5, d6, d7)
                else: pool.put(*d4, *d5, *d6, *d7)
            tw(jq)
    assert len(pool.free) == len(POOL)
    return S, hi[0]

def tread(f):
    f %= 64
    return I(f"ds_read_b128 {Tr(f % NTR)}, v{vTR} offset:{f*1024}", "lg", ("T", f % NTR), cls="T")
def wload(n, eb):
    return I(f"buffer_load_dwordx4 {Wr(n, eb)}, v{vWOFF}, s[{S_W}:{S_W+3}], s{sROW + n % 8} offen offset:{eb*1024}", "vm", ("W", n % 8, eb), cls="W")
def bar_ops():
    return [I("s_barrier", needs=[("lg", "TW")]), I(f"v_xor_b32 v{vTR}, 0x10000, v{vTR}"), I(f"v_xor_b32 v{vTW}, 0x10000, v{vTW}")]

def body(typ, first, o):
    BARM = 256 - 4 * NTR + 3
    fixed = [[] for _ in range(256)]
    fixed[BARM] += bar_ops()
    for f in range(64): fixed[((f - NTR) * 4 + 3) % 256].append(tread(f))
    wp = o.get("wpos", (1, 5, 9, 13))
    for n in range(16):
        for eb in range(4):
            m = (16 * n + 16 + wp[eb]) % 256
            if n % 8 == 0 and eb == 0:
                if n == 8:
                    fixed[m] += [I(f"s_cmp_eq_u32 s{sSIG}, 7"), I(f"s_cselect_b32 s{sWI}, s{sWNEG}, s{sROW+8}"), I(f"s_cselect_b32 s{sWIH}, -1, 0"),
                                 I(f"s_add_u32 s{S_W}, s{S_W}, s{sWI}"), I(f"s_addc_u32 s{S_W+1}, s{S_W+1}, s{sWIH}")]
                else:
                    fixed[m] += [I(f"s_add_u32 s{S_W}, s{S_W}, 32768"), I(f"s_addc_u32 s{S_W+1}, s{S_W+1}, 0")]
            fixed[m].append(wload(n, eb))
    S, _ = unit_stream(typ)
    c = lambda g: sum(icost(i) for i in g if not i.s.endswith(":"))
    load = [c(fixed[m]) for m in range(256)]
    st, en = 0, BARM - 1 - o.get("endm", 2)
    tot = sum(map(c, S)); lo, hi = 0.0, 100.0
    for _ in range(50):
        L = (lo + hi) / 2
        if sum(max(0.0, L - load[m]) for m in range(st, en + 1)) < tot: lo = L
        else: hi = L
    out = []; k = 0; done = 0.0; tgt = 0.0
    for m in range(256):
        f, eb = m >> 2, m & 3
        cp, kk, jq = f >> 4, (f >> 2) & 3, f & 3
        n = f >> 2
        t, b = acc(jq, kk, eb)
        needs = []
        if eb == 0: needs.append(("lg", ("T", f % NTR)))
        if jq == 0 and eb == 0: needs.append(("vm", ("W", n % 8, 3)))
        out.append(I(f"v_mfma_f32_16x16x32_bf16 {R(t, b)}, {Wr(n, eb)}, {Tr(f % NTR)}, {'0' if first and cp == 0 else R(t, b)}", needs=needs))
        out += fixed[m]
        if m <= en:
            tgt += max(0.0, hi - load[m])
            while k < len(S) and (done + c(S[k]) / 2 <= tgt or m == en):
                out += S[k]; done += c(S[k]); k += 1
    return out

PKC = lambda r: f"s[{r}:{r+1}]"
def mid(o):
    L = [I("s_nop 7")]; a = lambda s: L.append(I(s))
    def tr(groups):
        W = [(b + x, b + 4 + x, b + 8 + x, b + 12 + x, t + x, t + 4 + x) for b, t in groups for x in (0, 2)]
        for z0, z1, z2, z3, t0, t1 in W: a(f"v_pk_add_f32 {P2(t0)}, {P2(z0)}, {P2(z1)}")
        for z0, z1, z2, z3, t0, t1 in W: a(f"v_pk_add_f32 {P2(t1)}, {P2(z2)}, {P2(z3)}")
        for z0, z1, z2, z3, t0, t1 in W: a(f"v_pk_add_f32 {P2(z0)}, {P2(z0)}, {P2(z1)} neg_lo:[0,1] neg_hi:[0,1]")
        for z0, z1, z2, z3, t0, t1 in W: a(f"v_pk_add_f32 {P2(z1)}, {P2(z2)}, {P2(z3)} neg_lo:[0,1] neg_hi:[0,1]")
        for z0, z1, z2, z3, t0, t1 in W: a(f"v_pk_fma_f32 {P2(z2)}, {P2(t1)}, {PKC(sHALF)}, {P2(t0)} op_sel_hi:[1,0,1]")
        for z0, z1, z2, z3, t0, t1 in W: a(f"v_pk_fma_f32 {P2(z3)}, {P2(z0)}, {PKC(sM4)}, {P2(z1)} op_sel_hi:[1,0,1] neg_lo:[0,0,1] neg_hi:[0,0,1]")
        for z0, z1, z2, z3, t0, t1 in W: a(f"v_pk_fma_f32 {P2(t0)}, {P2(t1)}, {PKC(sP01)}, {P2(t0)} op_sel_hi:[1,0,1]")
        for z0, z1, z2, z3, t0, t1 in W: a(f"v_pk_fma_f32 {P2(t1)}, {P2(z1)}, {PKC(sP02)}, {P2(z0)} op_sel_hi:[1,0,1]")
        for z0, z1, z2, z3, t0, t1 in W: a(f"v_pk_fma_f32 {P2(z0)}, {P2(t1)}, 2.0, {P2(t0)} op_sel_hi:[1,0,1]")
        for z0, z1, z2, z3, t0, t1 in W: a(f"v_pk_fma_f32 {P2(z1)}, {P2(t1)}, -2.0, {P2(t0)} op_sel_hi:[1,0,1]")
    vg = [ACCV + 16 * g for g in range(NVG)]
    for n in range(0, NVG, 3): tr([(b, FREE + 8 * i) for i, b in enumerate(vg[n:n + 3])])
    ag = [16 * g for g in range(16 - NVG)]
    for n in range(0, len(ag), 2):
        grp = ag[n:n + 2]
        for i, b in enumerate(grp):
            for x in range(16): a(f"v_accvgpr_read_b32 v{FREE+24*i+x}, a{b+x}")
        tr([(FREE + 24 * i, FREE + 24 * i + 16) for i in range(len(grp))])
        for i, b in enumerate(grp):
            for x in range(16): a(f"v_accvgpr_write_b32 a{b+x}, v{FREE+24*i+x}")
    a("s_nop 1")
    return L

def epilogue(o):
    L = [I("s_nop 7")]; a = lambda s, kind=None: L.append(I(s, kind))
    for jq in range(4):
        base = []
        for eb in range(4):
            t, b = acc(jq, 0, eb)
            if t == "a":
                nb = acc(jq - 2, 0, eb)[1]
                for x in range(16): a(f"v_accvgpr_read_b32 v{nb+x}, a{b+x}")
                b = nb
            base.append(b)
        W = [(b + x, b + 4 + x, b + 8 + x, b + 12 + x) for b in base for x in (0, 2)]
        for z0, z1, z2, z3 in W: a(f"v_pk_add_f32 {P2(z0)}, {P2(z0)}, {P2(z1)}")
        for z0, z1, z2, z3 in W: a(f"v_pk_fma_f32 {P2(z1)}, {P2(z1)}, -2.0, {P2(z0)} op_sel_hi:[1,0,1]")
        for z0, z1, z2, z3 in W: a(f"v_pk_fma_f32 {P2(z2)}, {P2(z0)}, {PKC(sP6)}, {P2(z2)} op_sel_hi:[1,0,1]")
        for z0, z1, z2, z3 in W: a(f"v_pk_fma_f32 {P2(z3)}, {P2(z1)}, {PKC(sP43)}, {P2(z3)} op_sel_hi:[1,0,1]")
        for oidx, (kk, cs) in enumerate(((2, 0), (1, 1), (0, 2), (3, 0))):
            j = 4 * jq + oidx
            regs = [b + 4 * kk for b in base]
            prs = [(regs[h] + 2 * p, regs[2 + h] + 2 * p) for h in range(2) for p in range(2)]
            c1, c2 = sC + 4 * cs, sC + 4 * cs + 2
            for f, g in prs: a(f"v_pk_mul_f32 {P2(f)}, {P2(f)}, {PKC(c1)} op_sel_hi:[1,0]")
            for f, g in prs: a(f"v_pk_mul_f32 {P2(g)}, {P2(g)}, {PKC(c2)} op_sel_hi:[1,0]")
            for f, g in prs: a(f"v_min_f32 v{f}, s{sCL}, v{f}"); a(f"v_min_f32 v{f+1}, s{sCL}, v{f+1}")
            for f, g in prs: a(f"v_exp_f32 v{g}, v{g}"); a(f"v_exp_f32 v{g+1}, v{g+1}")
            for f, g in prs: a(f"v_exp_f32 v{f}, v{f}"); a(f"v_exp_f32 v{f+1}, v{f+1}")
            for f, g in prs: a(f"v_pk_fma_f32 {P2(f)}, {P2(f)}, {PKC(sHALF)}, {PKC(sHALF)} op_sel_hi:[1,0,0]")
            for f, g in prs: a(f"v_pk_fma_f32 {P2(g)}, {P2(f)}, {P2(g)}, {P2(f)}")
            for f, g in prs: a(f"v_rcp_f32 v{g}, v{g}"); a(f"v_rcp_f32 v{g+1}, v{g+1}")
            a("s_nop 0")
            for f, g in prs: a(f"v_pk_fma_f32 {P2(f)}, {P2(f)}, {P2(g)}, {P2(g)} neg_lo:[0,0,1] neg_hi:[0,0,1]")
            oq = regs[2]
            for n in range(4): a(f"v_cvt_pk_bf16_f32 v{oq+n}, v{regs[0]+n}, v{regs[1]+n}")
            a(f"buffer_store_dwordx4 v[{oq}:{oq+3}], v{vOUT}, s[{S_O}:{S_O+3}], s{sROW + j//2} offen offset:{(j&1)*2048}{o.get('stflag', ' nt')}", "vm")
    a(f"v_mov_b32 v{vOUT}, v{vOUT2}")
    return L

class Em:
    def __init__(self): self.L = []
    def __call__(self, s, kind=None, tag=None, needs=()): self.L.append(I(s, kind, tag, needs))

def tile_setup_x(a, sTT, vxm, vxh):
    t = POOL
    a(f"s_lshl_b32 s{sT0}, s{sTT}, 8"); a(f"s_and_b32 s{sT1}, s{sWAVE}, 1"); a(f"s_lshl_b32 s{sT2}, s{sT1}, 7"); a(f"s_add_u32 s{sT0}, s{sT0}, s{sT2}")
    a(f"v_lshrrev_b32 v{t[0]}, 3, v{vLANE}"); a(f"v_lshlrev_b32 v{t[1]}, 4, v{t[0]}"); a(f"v_add_u32 v{t[1]}, s{sT0}, v{t[1]}")
    G.rowbytes(a, t[1], t[2], t[3])
    a(f"s_mul_i32 s{sT1}, s{sT1}, 3")
    a(f"v_and_b32 v{t[3]}, 7, v{vLANE}"); a(f"v_xor_b32 v{t[3]}, s{sT1}, v{t[3]}"); a(f"v_lshlrev_b32 v{t[3]}, 4, v{t[3]}")
    a(f"s_lshr_b32 s{sT1}, s{sWAVE}, 1"); a(f"s_lshl_b32 s{sT1}, s{sT1}, 7")
    a(f"v_add3_u32 v{vxm}, v{t[2]}, v{t[3]}, s{sT1}")
    a(f"v_mov_b32 v{vxh}, v{vxm}"); a(f"v_mov_b32 v{t[4]}, 0x70000000")
    for thr in (0, 8000, 16000, 24000):
        a(f"v_cmp_eq_u32 vcc, {thr}, v{t[1]}"); a("s_nop 1"); a(f"v_cndmask_b32 v{vxh}, v{vxh}, v{t[4]}, vcc")

def unit0_special(a, late):
    RB = ACCV
    pool = Pool(list(range(ACCV + 72, 256, 2)) + list(range(POOL[0], POOL[-1], 2)))
    K425, K5 = sP01, sP02
    a(f"s_mov_b32 s{K425}, {hx(-4.25)}"); a(f"s_mov_b32 s{K5}, {hx(-5.0)}")
    def unp(k, nd=()):
        d = [pool.get() for _ in range(4)]
        for x in range(4):
            a(f"v_lshlrev_b32 v{d[x]}, 16, v{RB+4*k+x}", needs=nd if x == 0 else ()); a(f"v_and_b32 v{d[x]+1}, s{sMASK}, v{RB+4*k+x}")
        return d
    pk = lambda f: [a(f(x)) for x in range(4)]
    d1 = unp(0, [("vm", ("X0", 1))]); d2 = unp(1)
    a.L += late[0]
    for jq in range(4):
        k = 2 + 4 * jq
        d3 = unp(k, [("vm", ("X0", k + 1))]); d4 = unp(k + 1); d5 = unp(k + 2, [("vm", ("X0", k + 3))]); d6 = unp(k + 3)
        a.L += late[jq + 1]
        e1 = [pool.get() for _ in range(4)]; o1 = [pool.get() for _ in range(4)]
        pk(lambda x: f"v_pk_fma_f32 {P2(e1[x])}, {P2(d4[x])}, {PKC(K425)}, {P2(d6[x])} op_sel_hi:[1,0,1]")
        pk(lambda x: f"v_pk_fma_f32 {P2(o1[x])}, {P2(d3[x])}, {PKC(K425)}, {P2(d5[x])} op_sel_hi:[1,0,1]")
        pk(lambda x: f"v_pk_fma_f32 {P2(d4[x])}, {P2(d4[x])}, {PKC(K5)}, {P2(d6[x])} op_sel_hi:[1,0,1]")
        pk(lambda x: f"v_pk_fma_f32 {P2(d3[x])}, {P2(d3[x])}, {PKC(K5)}, {P2(d5[x])} op_sel_hi:[1,0,1]")
        pk(lambda x: f"v_pk_add_f32 {P2(e1[x])}, {P2(e1[x])}, {P2(d2[x])}")
        pk(lambda x: f"v_pk_add_f32 {P2(o1[x])}, {P2(o1[x])}, {P2(d1[x])}")
        pk(lambda x: f"v_pk_fma_f32 {P2(d4[x])}, {P2(d2[x])}, 4.0, {P2(d4[x])} op_sel_hi:[1,0,1]")
        pk(lambda x: f"v_pk_fma_f32 {P2(d3[x])}, {P2(d1[x])}, 4.0, {P2(d3[x])} op_sel_hi:[1,0,1]")
        pk(lambda x: f"v_pk_add_f32 {P2(d1[x])}, {P2(e1[x])}, {P2(o1[x])}")
        pk(lambda x: f"v_pk_add_f32 {P2(e1[x])}, {P2(e1[x])}, {P2(o1[x])} neg_lo:[0,1] neg_hi:[0,1]")
        pk(lambda x: f"v_pk_fma_f32 {P2(d2[x])}, {P2(d3[x])}, 0.5, {P2(d4[x])} op_sel_hi:[1,0,1]")
        pk(lambda x: f"v_pk_fma_f32 {P2(d4[x])}, {P2(d3[x])}, -0.5, {P2(d4[x])} op_sel_hi:[1,0,1]")
        for kk, r in enumerate((d1, e1, d2, d4)):
            q = OUTQ + 4 * kk
            pk(lambda x: f"v_cvt_pk_bf16_f32 v{q+x}, v{r[x]}, v{r[x]+1}")
            a(f"ds_write_b128 v{vTW}, v[{q}:{q+3}] offset:{(kk*4+jq)*1024}", "lg", "TW")
        pool.put(*d1, *d2, *e1, *o1, *d3, *d4)
        d1, d2 = d5, d6

def wprep_kernel_text():
    a = Em(); p = [4, 5, 6, 7]
    a(".globl wprep_kernel"); a(".p2align 8"); a(".type wprep_kernel,@function"); a("wprep_kernel:")
    a("s_cmp_ge_u32 s2, 256"); a("s_cbranch_scc1 WP_END")
    a("s_load_dwordx2 s[6:7], s[0:1], 8"); a("s_load_dwordx2 s[12:13], s[0:1], 32")
    a("v_lshrrev_b32 v1, 6, v0"); a("v_and_b32 v2, 63, v0"); a("s_nop 0"); a(f"v_readfirstlane_b32 s{sPPART}, v1")
    a(f"s_and_b32 s{sET}, s2, 3"); a(f"s_lshr_b32 s{sPDG}, s2, 2"); a(f"s_mov_b32 s{sMASK}, 0xffff0000")
    a(f"v_lshrrev_b32 v{p[0]}, 1, v2"); a(f"v_lshlrev_b32 v{p[0]}, 2, v{p[0]}"); a(f"v_and_b32 v{p[3]}, 1, v2")
    a(f"v_lshl_add_u32 v{p[0]}, v{p[3]}, 13, v{p[0]}"); a(f"v_add_u32 v{p[1]}, 4096, v{p[0]}")
    a(f"v_lshrrev_b32 v{p[2]}, 5, v2"); a(f"v_lshlrev_b32 v{p[2]}, 19, v{p[2]}"); a(f"v_lshl_add_u32 v{p[2]}, v{p[3]}, 3, v{p[2]}")
    a(f"v_bfe_u32 v{p[3]}, v2, 1, 4"); a(f"v_lshl_add_u32 v{p[2]}, v{p[3]}, 4, v{p[2]}")
    SB = list(range(72, 80))
    a(f"s_lshr_b32 s{sT0}, s{sPPART}, 1"); a(f"s_lshl_b32 s{sT1}, s{sT0}, 10"); a(f"s_lshl_b32 s{sT2}, s{sET}, 8")
    a(f"s_add_u32 s{sT1}, s{sT1}, s{sT2}"); a(f"s_and_b32 s{sT2}, s{sPPART}, 1"); a(f"s_lshl_b32 s{sT2}, s{sT2}, 7")
    a(f"s_add_u32 s{sT1}, s{sT1}, s{sT2}"); a(f"s_lshl_b32 s{sT2}, s{sPDG}, 14"); a(f"s_add_u32 s{SB[0]}, s{sT1}, s{sT2}")
    for i in range(1, 5): a(f"s_add_u32 s{SB[i]}, s{SB[0]}, {i*1048576}")
    a("s_waitcnt lgkmcnt(0)")
    a(f"s_mov_b32 s{S_WI}, s6"); a(f"s_and_b32 s{S_WI+1}, s7, 0xffff"); a(f"s_mov_b32 s{S_WI+2}, 5242880"); a(f"s_mov_b32 s{S_WI+3}, 0x00020000")
    a(f"s_mov_b32 s{S_WO}, s12"); a(f"s_and_b32 s{S_WO+1}, s13, 0xffff"); a(f"s_mov_b32 s{S_WO+2}, {16*WSLICE}"); a(f"s_mov_b32 s{S_WO+3}, 0x00020000")
    WR = 8; TP = 28; RS = 52; OUT = 76
    for m in range(4):
        for i in range(5):
            a(f"buffer_load_dword v{WR+m*5+i}, v{p[m//2]}, s[{S_WI}:{S_WI+3}], s{SB[i]} offen offset:{(m&1)*2048}")
    a(f"s_lshl_b32 s{sT1}, s{sET}, 1"); a(f"s_and_b32 s{sT0}, s{sPPART}, 1"); a(f"s_add_u32 s{sT1}, s{sT1}, s{sT0}"); a(f"s_lshl_b32 s{sT1}, s{sT1}, 20")
    a(f"s_lshr_b32 s{sT0}, s{sPPART}, 1"); a(f"s_lshl_b32 s{sT0}, s{sT0}, 11"); a(f"s_add_u32 s{sT1}, s{sT1}, s{sT0}")
    a(f"s_lshr_b32 s{sT0}, s{sPDG}, 2"); a(f"s_lshl_b32 s{sT0}, s{sT0}, 14"); a(f"s_add_u32 s{sT1}, s{sT1}, s{sT0}")
    a(f"s_and_b32 s{sT0}, s{sPDG}, 3"); a(f"s_lshl_b32 s{sT0}, s{sT0}, 8"); a(f"s_add_u32 s48, s{sT1}, s{sT0}")
    for k in range(1, 8): a(f"s_add_u32 s{48+k}, s48, {(k//4)*262144 + (k%4)*4096}")
    CS = dict(q=80, s16=82, m6=84, f43=86, f23=88, f15=90, f215=92, x16=94)
    for k, v in dict(q=0.25, s16=1 / 16, m6=-1 / 6, f43=4 / 3, f23=2 / 3, f15=1 / 15, f215=2 / 15, x16=16.0).items(): a(f"s_mov_b32 s{CS[k]}, {hx(v)}")
    a("s_mov_b32 s96, 0x05040100"); a("s_mov_b32 s97, 0x07060302")
    C = lambda k: PKC(CS[k])
    for m in range(4):
        if m % 2 == 0: a(f"s_waitcnt vmcnt({10 - 5*m})")
        g = [TP + 2 * i for i in range(5)]; E1, O1, Eh, Oh, E2, O2 = [TP + 10 + 2 * i for i in range(6)]
        for i in range(5):
            a(f"v_lshlrev_b32 v{g[i]}, 16, v{WR+m*5+i}"); a(f"v_and_b32 v{g[i]+1}, s{sMASK}, v{WR+m*5+i}")
        W = [RS + 12 * (m & 1) + 2 * k for k in range(6)]
        h1 = "op_sel_hi:[1,0,1]"; ng = " neg_lo:[0,0,1] neg_hi:[0,0,1]"
        a(f"v_pk_add_f32 {P2(E1)}, {P2(g[0])}, {P2(g[2])}"); a(f"v_pk_add_f32 {P2(O1)}, {P2(g[1])}, {P2(g[3])}")
        a(f"v_pk_fma_f32 {P2(Eh)}, {P2(g[2])}, {C('q')}, {P2(g[0])} {h1}"); a(f"v_pk_fma_f32 {P2(Oh)}, {P2(g[3])}, {C('q')}, {P2(g[1])} {h1}")
        a(f"v_pk_fma_f32 {P2(E2)}, {P2(g[2])}, 4.0, {P2(g[0])} {h1}"); a(f"v_pk_fma_f32 {P2(O2)}, {P2(g[3])}, 4.0, {P2(g[1])} {h1}")
        a(f"v_pk_add_f32 {P2(E1)}, {P2(E1)}, {P2(g[4])}"); a(f"v_pk_mul_f32 {P2(O1)}, {P2(O1)}, {C('m6')} op_sel_hi:[1,0]")
        a(f"v_pk_fma_f32 {P2(Eh)}, {P2(g[4])}, {C('s16')}, {P2(Eh)} {h1}"); a(f"v_pk_mul_f32 {P2(Oh)}, {P2(Oh)}, {C('f23')} op_sel_hi:[1,0]")
        a(f"v_pk_fma_f32 {P2(E2)}, {P2(g[4])}, {C('x16')}, {P2(E2)} {h1}"); a(f"v_pk_mul_f32 {P2(O2)}, {P2(O2)}, {C('f215')} op_sel_hi:[1,0]")
        for k, (E, O, c) in enumerate(((E1, O1, 'm6'), (Eh, Oh, 'f43'), (E2, O2, 'f15'))):
            a(f"v_pk_fma_f32 {P2(W[2*k])}, {P2(E)}, {C(c)}, {P2(O)} {h1}"); a(f"v_pk_fma_f32 {P2(W[2*k+1])}, {P2(E)}, {C(c)}, {P2(O)} {h1}{ng}")
        if m & 1:
            for col in range(2):
                for k in range(6): a(f"v_cvt_pk_bf16_f32 v{OUT+(k*2+col)*2+m//2}, v{RS+2*k+col}, v{RS+12+2*k+col}")
                for k, i in ((6, 0), (7, 4)): a(f"v_perm_b32 v{OUT+(k*2+col)*2+m//2}, v{WR+m*5+i}, v{WR+(m-1)*5+i}, s{96+col}")
    for k in range(8):
        for col in range(2):
            q = OUT + (k * 2 + col) * 2
            a(f"buffer_store_dwordx2 v[{q}:{q+1}], v{p[2]}, s[{S_WO}:{S_WO+3}], s{48+k} offen offset:{col*1024}")
    a("s_waitcnt vmcnt(0)"); a("WP_END:"); a("s_endpgm")
    out = []; emit(out, a.L); return out

def gen_main(o):
    K = NAME + "_kernel"
    a = Em()
    a(f".globl {K}"); a(".p2align 8"); a(f".type {K},@function"); a(K + ":")
    a("s_cmp_ge_u32 s2, 256"); a("s_cbranch_scc1 L_END")
    a("s_load_dwordx8 s[4:11], s[0:1], 0"); a("s_load_dwordx2 s[12:13], s[0:1], 32")
    if o.get("trace"): a("s_memtime s[86:87]"); a("s_memrealtime s[88:89]")
    a("v_lshrrev_b32 v1, 6, v0"); a(f"v_and_b32 v{vLANE}, 63, v0"); a("s_nop 0"); a(f"v_readfirstlane_b32 s{sWAVE}, v1")
    a("s_and_b32 s80, s2, 7"); a("s_lshr_b32 s81, s2, 3"); a("s_and_b32 s82, s80, 1"); a("s_lshl_b32 s82, s82, 1")
    a(f"s_and_b32 s{sET}, s81, 1"); a(f"s_add_u32 s{sET}, s{sET}, s82")
    a("s_lshr_b32 s80, s80, 1"); a("s_lshr_b32 s81, s81, 1"); a("s_mul_i32 s82, s80, 31")
    a("s_cmp_eq_u32 s80, 0"); a("s_cselect_b32 s83, 0, 1"); a("s_add_u32 s82, s82, s83"); a("s_add_u32 s15, s82, s81")
    a("s_sub_u32 s83, 16, s83"); a("s_cmp_lt_u32 s81, s83")
    a(f"s_cselect_b32 s{sNT}, 2, 1"); a("s_cselect_b32 s81, 16, 0"); a("s_add_u32 s14, s15, s81")
    for k in range(10): a(f"s_mov_b32 s{sROW+k}, {k*4096}")
    a(f"s_mov_b32 s{sM768}, -768"); a(f"s_mov_b32 s{s256}, 256"); a(f"s_mov_b32 s{s2048}, 2048")
    tile_setup_x(a, 15, vXM, vXH)
    a("s_waitcnt lgkmcnt(0)")
    a(f"s_sub_u32 s{S_X}, s4, 8192"); a(f"s_subb_u32 s{S_X+1}, s5, 0"); a(f"s_and_b32 s{S_X+1}, s{S_X+1}, 0xffff")
    a(f"s_mov_b32 s{S_X+2}, {32768000+8192}"); a(f"s_mov_b32 s{S_X+3}, 0x00020000")
    for k in range(18): a.L.append(xl_own(1, k, dst=ACCV + 4 * k, tag=("X0", k)))
    a(f"v_lshlrev_b32 v{vWOFF}, 4, v{vLANE}")
    a(f"s_lshl_b32 s{sT0}, s{sET}, 2"); a(f"s_add_u32 s{sT0}, s{sT0}, s{sWAVE}"); a(f"s_lshl_b32 s{sT0}, s{sT0}, 19")
    a(f"s_add_u32 s{S_W}, s12, s{sT0}"); a(f"s_addc_u32 s{S_W+1}, s13, 0"); a(f"s_and_b32 s{S_W+1}, s{S_W+1}, 0xffff")
    a(f"s_mov_b32 s{S_W+2}, 32768"); a(f"s_mov_b32 s{S_W+3}, 0x00020000")
    early = o.get("wearly", 2)
    for n in range(early):
        for eb in range(4): a.L.append(wload(n, eb))
    a(f"s_mov_b32 s{S_O}, s8"); a(f"s_and_b32 s{S_O+1}, s9, 0xffff"); a(f"s_mov_b32 s{S_O+2}, 32768000"); a(f"s_mov_b32 s{S_O+3}, 0x00020000")
    l2e = math.log2(math.e)
    for n, sc in enumerate((1, 1 / 3, 2 / 3)):
        a(f"s_mov_b32 s{sC+4*n}, {hx(2*l2e*sc)}"); a(f"s_mov_b32 s{sC+4*n+2}, {hx(-l2e*sc)}")
    for r, v in ((sHALF, 0.5), (sM4, -4.0), (sP6, 1 / 6), (sP43, 4 / 3), (sK425, -4.25), (sK5, -5.0), (sK525, 5.25), (sK125, -1.25), (sKQ, 0.25), (sCL, 40.0)):
        a(f"s_mov_b32 s{r}, {hx(v)}")
    a(f"s_mov_b32 s{sMASK}, 0xffff0000"); a(f"s_mov_b32 s{sWNEG}, {-15*32768}"); a(f"s_mov_b32 s{sUN}, 0")
    tile_setup_x(a, 14, vXMn, vXHn)
    G.tile_setup_o(a, 15, vOUT); G.tile_setup_o(a, 14, vOUT2)
    t = POOL
    a(f"s_lshr_b32 s{sT0}, s{sWAVE}, 1"); a(f"s_lshl_b32 s{sT0}, s{sT0}, 15"); a(f"s_and_b32 s{sT1}, s{sWAVE}, 1"); a(f"s_lshl_b32 s{sT1}, s{sT1}, 9")
    a(f"s_add_u32 s{sT0}, s{sT0}, s{sT1}")
    a(f"v_bfe_u32 v{t[0]}, v{vLANE}, 2, 1"); a(f"v_lshlrev_b32 v{t[0]}, 14, v{t[0]}")
    a(f"v_lshrrev_b32 v{t[1]}, 3, v{vLANE}"); a(f"v_lshl_add_u32 v{t[0]}, v{t[1]}, 6, v{t[0]}")
    a(f"v_and_b32 v{t[1]}, 3, v{vLANE}"); a(f"v_lshl_add_u32 v{t[0]}, v{t[1]}, 4, v{t[0]}"); a(f"v_add_u32 v{vTW}, s{sT0}, v{t[0]}")
    a(f"v_and_b32 v{t[0]}, 15, v{vLANE}"); a(f"v_lshrrev_b32 v{t[1]}, 3, v{t[0]}"); a(f"v_mul_u32_u24 v{t[1]}, 3, v{t[1]}")
    a(f"v_lshrrev_b32 v{t[2]}, 4, v{vLANE}"); a(f"v_xor_b32 v{t[1]}, v{t[1]}, v{t[2]}")
    a(f"v_lshlrev_b32 v{t[0]}, 2, v{t[0]}"); a(f"v_add_u32 v{t[0]}, v{t[0]}, v{t[1]}"); a(f"v_lshlrev_b32 v{t[0]}, 4, v{t[0]}")
    a(f"v_xor_b32 v{vTR}, 0x10000, v{t[0]}")
    TRC = lambda: []
    if o.get("trace"):
        a("s_add_u32 s92, s12, 0x1000000"); a("s_addc_u32 s93, s13, 0"); a("s_and_b32 s93, s93, 0xffff")
        a("s_mov_b32 s94, 0x100000"); a("s_mov_b32 s95, 0x00020000")
        a("s_lshl_b32 s90, s2, 2"); a(f"s_add_u32 s90, s90, s{sWAVE}"); a("s_lshl_b32 s90, s90, 9"); a("v_mov_b32 v0, 0")
        TRC = lambda: [I("s_waitcnt lgkmcnt(0)"), I(f"v_mov_b32 v{OUTQ}, s86"), I(f"v_mov_b32 v{OUTQ+1}, s88"),
                       I(f"buffer_store_dwordx2 v[{OUTQ}:{OUTQ+1}], v0, s[92:95], s90 offen", "vm"), I("s_add_u32 s90, s90, 8"),
                       I("s_memtime s[86:87]"), I("s_memrealtime s[88:89]")]
    rest = [i for k in range(NPRE()) for i in xl_next(k)] + [wload(n, eb) for n in range(early, 7) for eb in range(4)]
    late = [switch_ops()] + [rest[i * len(rest) // 4:(i + 1) * len(rest) // 4] for i in range(4)]
    unit0_special(a, late)
    a(f"s_mov_b32 s{sP01}, {hx(0.1)}"); a(f"s_mov_b32 s{sP02}, {hx(0.2)}")
    a.L += bar_ops() + [tread(f) for f in range(NTR)]
    a("s_nop 1")
    pro = a.L
    Bf, B1, B2 = TRC() + body(1, True, o), TRC() + body(1, False, o), TRC() + body(2, False, o)
    MID, EP = mid(o), epilogue(o)
    seq = list(pro)
    for tile in range(3):
        for s in range(8):
            seq += Bf if s == 0 else (B2 if 3 <= s <= 6 else B1)
            if s == 3: seq += MID
            if s == 7: seq += EP
    resolve(seq, {"vm": None, "lg": None})
    out = []
    emit(out, pro)
    out += ["L_TILE:", f" s_mov_b32 s{sSIG}, 0"]
    emit(out, Bf)
    out += [f" s_mov_b32 s{sSIG}, 1", " s_branch L_B1", ".p2align 6", "L_B2:"]
    emit(out, B2)
    out += [f" s_add_u32 s{sSIG}, s{sSIG}, 1", f" s_cmp_eq_u32 s{sSIG}, 7", " s_cbranch_scc1 L_B1", f" s_cmp_lg_u32 s{sSIG}, 4", " s_cbranch_scc1 L_B2"]
    emit(out, MID)
    out += [" s_branch L_B2", ".p2align 6", "L_B1:"]
    emit(out, B1)
    out += [f" s_add_u32 s{sSIG}, s{sSIG}, 1", f" s_cmp_eq_u32 s{sSIG}, 3", " s_cbranch_scc1 L_B2", f" s_cmp_lg_u32 s{sSIG}, 8", " s_cbranch_scc1 L_B1"]
    emit(out, EP)
    out += [f" s_sub_u32 s{sNT}, s{sNT}, 1", f" s_cmp_lg_u32 s{sNT}, 0", " s_cbranch_scc1 L_TILE", " s_waitcnt vmcnt(0) lgkmcnt(0)"]
    if o.get("trace"): emit(out, TRC() + TRC()[:4] + [I("s_waitcnt vmcnt(0)")])
    out += ["L_END:", " s_endpgm"]
    if o.get("haz"):
        import hazchk
        lin = []; emit(lin, seq[:30000]); print("hazards", hazchk.check(lin), "pool hi", unit_stream(1)[1], unit_stream(2)[1], "NVG", NVG, "ACCV", ACCV)
    return out

def main():
    o = {}
    for s in sys.argv[2:]:
        k, _, v = s.partition("=")
        o[k] = eval(v) if v else 1
    CW.update(o.get("cw", {})); CFG.update(o.get("cfg", {}))
    layout()
    out = [HEADER, "; @launch kernel=wprep_kernel grid=(256,1,1) block=(256,1,1) lds=0",
           f"; @launch kernel={NAME}_kernel grid=(256,1,1) block=(256,1,1) lds={LDS_BYTES}",
           '.amdgcn_target "amdgcn-amd-amdhsa--gfx950"', ".text"]
    out += gen_main(o)
    out += wprep_kernel_text()
    out.append('.section .rodata,"a"')
    out += kd(NAME + "_kernel", 512, 102, 256) + kd("wprep_kernel", 112, 102, 112)
    open(sys.argv[1], "w").write("\n".join(out) + "\n")

if __name__ == "__main__":
    main()
```

```python
import sys, math, struct, re
sys.path.insert(0, "tools")

NAME = "standalone__autoregressive_conv_wavernn__speech"
HEADER = """; Kernarg layout for this problem (40 bytes, ptrs only, base s[0:1]):
; Launch 2: persistent kernel: input transform (VALU) -> LDS -> MFMA, output transform, tanh*sigmoid."""
A_ = math.sqrt(0.5); B_ = math.sqrt(2.0)
def f32(v): return struct.unpack("<I", struct.pack("<f", v))[0]
def hx(v): return f"{f32(v):#x}"

class I:
    __slots__ = ("s", "kind", "tag", "needs", "cls", "w")
    def __init__(self, s, kind=None, tag=None, needs=(), cls=None):
        self.s, self.kind, self.tag, self.needs, self.cls = s, kind, tag, tuple(needs), cls
        self.w = {}
    def wait_text(self):
        p = []
        if "vm" in self.w: p.append(f"vmcnt({min(self.w['vm'], 63)})")
        if "lg" in self.w: p.append(f"lgkmcnt({min(self.w['lg'], 15)})")
        return "s_waitcnt " + " ".join(p) if p else None

CW = {"dsw": 4, "dsr": 1, "vm": 2, "s": 0.75, "trans": 2}
def icost(i):
    s = i.s
    if s.startswith("ds_write"): return CW["dsw"]
    if s.startswith("ds_read"): return CW["dsr"]
    if s.startswith("buffer_"): return CW["vm"]
    if s.startswith("s_"): return CW["s"]
    if s.startswith(("v_exp", "v_rcp")): return CW["trans"]
    return 1

def resolve(seq, slack):
    cnt = {"vm": 0, "lg": 0}; mark = {"vm": 0, "lg": 0}; last = {}
    cap = {"vm": 63, "lg": 15}; used = {}
    for it in seq:
        need = {}
        for k, t in it.needs:
            if (k, t) not in last: raise RuntimeError(f"{t} never issued before {it.s}")
            need[k] = max(need.get(k, 0), last[(k, t)])
            if isinstance(t, tuple) and t[0] == "X":
                if used.get(t) == last[(k, t)]: raise RuntimeError(f"stale x load consumed twice: {t} at {it.s}")
                used[t] = last[(k, t)]
        for k, idx in need.items():
            if k in it.w: pass
            if idx > mark[k] and (k not in it.w or cnt[k] - min(it.w[k], cap[k]) < idx):
                n = cnt[k] - idx
                if slack.get(k) is not None: n = min(n, max(slack[k], 0)) if n > slack[k] else n
                it.w[k] = min(it.w.get(k, 99), n)
        for k, n in it.w.items():
            mark[k] = max(mark[k], cnt[k] - min(n, cap[k]))
        if it.s == "DRAIN":
            mark = dict(cnt)
        if it.kind:
            cnt[it.kind] += 1
            if it.tag is not None: last[(it.kind, it.tag)] = cnt[it.kind]

def emit(out, L):
    for it in L:
        w = it.wait_text()
        if w: out.append(" " + w)
        if it.s == "DRAIN": out.append("    s_waitcnt vmcnt(0) lgkmcnt(0)")
        elif it.s == "NOP": pass
        elif it.s.endswith(":") or it.s.startswith("."): out.append(it.s)
        else: out.append(" " + it.s)

WSLICE = 3 * 16 * 2 * 4 * 1024
LDS_BYTES = 131072
S_X, S_W, S_O = 16, 20, 24
sWAVE, sET, sNT = 28, 29, 30
sA, sB, sM25, sMASK, sC1, sC2, sC1o, sC2o, sCL, sK1, sK2 = 31, 32, 33, 34, 35, 36, 37, 38, 39, 40, 41
sT0, sT1, sT2 = 42, 43, 44
sROW = 48
sPB, sPK = 60, 62
vWOFF, vXM, vXH, vXMn, vXHn, vTR, vTW, vOUT, vOUT2, vPF = 1, 2, 3, 4, 5, 6, 7, 8, 9, 10
vLANE = 11
OUTQ = 12; NOUTQ = 2
POOL = list(range(20, 42))
TMP = 44
TMPO = 52
RAWB = 56; NRAW = 10
ACCV = 96
def acc(jp, uv, eb):
    idx = (jp * 2 + uv) * 4 + eb
    return ("v", ACCV + idx * 4) if idx < 40 else ("a", (idx - 40) * 4)
def R(t, b, n=4): return f"{t}[{b}:{b+n-1}]"
def Wr(h, eb): return R("a", 96 + (h * 4 + eb) * 4)
def Tr(s): return R("a", 224 + s * 4)
def raw(slot): return RAWB + slot * 4
P2 = lambda r: f"v[{r}:{r+1}]"
def utype(u): return "ABC"[(u % 12) // 4]
def urows(u): return list(range(0, 20, 2)) + list(range(1, 20, 2)) if utype(u) == "C" else list(range(1, 19))

def xload(u, k, dst=None, tag=None):
    row = urows(u)[k]
    r = raw(k % NRAW) if dst is None else dst
    va = vXH if row < 4 else vXM
    off = (row & 1) * 2048 + ((4 * u) & 15) * 64
    return I(f"buffer_load_dwordx4 v[{r}:{r+3}], v{va}, s[{S_X}:{S_X+3}], s{sROW + row//2} offen offset:{off}", "vm",
             ("X", k % NRAW) if tag is None else tag, cls=f"xl{u % 12}")

class Pool:
    def __init__(self, regs): self.free = list(regs)
    def get(self): return self.free.pop(0)
    def put(self, *rs): self.free.extend(rs)

def unit_stream(u):
    S = []; pool = Pool(POOL); cls = f"p{u}"
    typ = utype(u); nrows = len(urows(u)); un = (u + 1) % 12
    pend = []
    def op(s, kind=None, tag=None):
        S.append(I(s, kind, tag, needs=pend[:], cls=cls)); pend.clear()
    freed = set(); ld = [0]; oq = [0]
    def consumed(k):
        freed.add(k)
        while True:
            n = ld[0] + NRAW
            if n < nrows:
                if n - NRAW not in freed: break
                S.append(xload(u, n))
            else:
                kk = n - nrows
                if kk >= NRAW or max(r for r in range(nrows) if r % NRAW == kk) not in freed: break
                if kk == 0 and un == 0:
                    S.append(I(f"v_mov_b32 v{vXM}, v{vXMn}", cls="xsw")); S.append(I(f"v_mov_b32 v{vXH}, v{vXHn}", cls="xsw"))
                S.append(xload(un, kk))
            ld[0] += 1
    def unp(d, s, h): op(f"v_lshlrev_b32 v{d}, 16, v{s}" if h == 0 else f"v_and_b32 v{d}, s{sMASK}, v{s}")
    def newq():
        q = OUTQ + 4 * (oq[0] % NOUTQ); oq[0] += 1; return q
    def tw(q, kk, jp): op(f"ds_write_b128 v{vTW}, v[{q}:{q+3}] offset:{(kk*8+jp)*1024}", "lg", "TW")
    if typ != "C":
        sb = sB if typ == "A" else sA
        nk = "-0.5" if typ == "A" else "-2.0"
        P = [None] * 8; M = [None] * 8
        for n in range(9):
            k3, k4 = 2 * n, 2 * n + 1
            pend.extend([("vm", ("X", k3 % NRAW)), ("vm", ("X", k4 % NRAW))])
            r3, r4 = raw(k3 % NRAW), raw(k4 % NRAW)
            if n: qa, qb = newq(), newq()
            for dw in range(4):
                t3 = [pool.get(), pool.get()]; t4 = [pool.get(), pool.get()]
                for h in range(2): unp(t3[h], r3 + dw, h)
                for h in range(2): unp(t4[h], r4 + dw, h)
                if dw == 3: consumed(k3); consumed(k4)
                p = [pool.get(), pool.get()]
                for h in range(2): op(f"v_fma_f32 v{p[h]}, s{sb}, v{t3[h]}, v{t4[h]}")
                for h in range(2): op(f"v_fma_f32 v{t4[h]}, -s{sb}, v{t3[h]}, v{t4[h]}")
                pool.put(*t3)
                if n:
                    for h in range(2): op(f"v_fma_f32 v{P[2*dw+h]}, {nk}, v{P[2*dw+h]}, v{p[h]}")
                    for h in range(2): op(f"v_fma_f32 v{M[2*dw+h]}, {nk}, v{M[2*dw+h]}, v{t4[h]}")
                    op(f"v_cvt_pk_bf16_f32 v{qa+dw}, v{P[2*dw]}, v{P[2*dw+1]}")
                    op(f"v_cvt_pk_bf16_f32 v{qb+dw}, v{M[2*dw]}, v{M[2*dw+1]}")
                    pool.put(P[2*dw], P[2*dw+1], M[2*dw], M[2*dw+1])
                for h in range(2): P[2*dw+h] = p[h]; M[2*dw+h] = t4[h]
            if n: tw(qa, 0, n - 1); tw(qb, 1, n - 1)
    else:
        for par in range(2):
            Q = [None] * 8; prev = [None] * 8
            for n in range(10):
                k = par * 10 + n
                pend.append(("vm", ("X", k % NRAW)))
                r = raw(k % NRAW)
                if n >= 2: q = newq()
                for d2 in range(2):
                    e = [pool.get() for _ in range(4)]
                    for x in range(4): unp(e[x], r + 2 * d2 + x // 2, x % 2)
                    if d2 == 1: consumed(k)
                    c0 = 4 * d2
                    if n >= 2:
                        for x in range(4): op(f"v_add_f32 v{Q[c0+x]}, v{Q[c0+x]}, v{e[x]}")
                    if 1 <= n <= 8:
                        for x in range(4): op(f"v_fmac_f32 v{prev[c0+x]}, s{sM25}, v{e[x]}")
                    if n >= 2:
                        for x in range(2): op(f"v_cvt_pk_bf16_f32 v{q+2*d2+x}, v{Q[c0+2*x]}, v{Q[c0+2*x+1]}")
                        pool.put(*Q[c0:c0+4])
                    if n == 9: pool.put(*prev[c0:c0+4]); pool.put(*e)
                    else:
                        for x in range(4):
                            if n >= 1: Q[c0+x] = prev[c0+x]
                            prev[c0+x] = e[x]
                if n >= 2: tw(q, par, n - 2)
    return S

def mf_order(P):
    L = []; per = 8 // P
    for ph in range(P):
        for cp in range(4):
            for kk in range(2):
                for jp in range(ph * per, (ph + 1) * per):
                    L.append((cp, kk, jp))
    return L

def bfly_ops(which, jp):
    L = []; cls = "bf"
    a = lambda s: L.append(I(s, cls=cls))
    for eb in range(4):
        (t, U), (_, V) = acc(jp, 0, eb), acc(jp, 1, eb)
        u, v = U, V
        if t == "a":
            u, v = TMP, TMP + 4
            for x in range(4): a(f"v_accvgpr_read_b32 v{u+x}, a{U+x}")
            for x in range(4): a(f"v_accvgpr_read_b32 v{v+x}, a{V+x}")
        for x in range(4): a(f"v_fmac_f32 v{u+x}, s{sK1}, v{v+x}" if which == 1 else f"v_add_f32 v{u+x}, v{u+x}, v{v+x}")
        for x in range(4): a(f"v_fmac_f32 v{v+x}, s{sK2}, v{u+x}" if which == 1 else f"v_fma_f32 v{v+x}, -2.0, v{v+x}, v{u+x}")
        if t == "a":
            for x in range(4): a(f"v_accvgpr_write_b32 a{U+x}, v{u+x}")
            for x in range(4): a(f"v_accvgpr_write_b32 a{V+x}, v{v+x}")
    return L

def epi_ops(jp):
    L = []; cls = "epi"
    a = lambda s, kind=None: L.append(I(s, kind, cls=cls))
    for uv in range(2):
        j = 2 * jp + uv
        c1, c2 = (sC1, sC2) if uv == 0 else (sC1o, sC2o)
        isa = acc(jp, uv, 0)[0] == "a"
        dst = TMPO if isa else acc(jp, uv, 0)[1]
        for h in range(2):
            F, G = acc(jp, uv, h)[1], acc(jp, uv, 2 + h)[1]
            if isa:
                for x in range(4): a(f"v_accvgpr_read_b32 v{TMP+x}, a{F+x}")
                for x in range(4): a(f"v_accvgpr_read_b32 v{TMP+4+x}, a{G+x}")
                F, G = TMP, TMP + 4
            for x in range(4): a(f"v_mul_f32 v{F+x}, s{c1}, v{F+x}")
            for x in range(4): a(f"v_mul_f32 v{G+x}, s{c2}, v{G+x}")
            for x in range(4): a(f"v_min_f32 v{F+x}, s{sCL}, v{F+x}")
            for x in range(4): a(f"v_exp_f32 v{G+x}, v{G+x}")
            for x in range(4): a(f"v_exp_f32 v{F+x}, v{F+x}")
            for x in range(4): a(f"v_fma_f32 v{F+x}, 0.5, v{F+x}, 0.5")
            for x in range(4): a(f"v_fma_f32 v{G+x}, v{F+x}, v{G+x}, v{F+x}")
            for x in range(4): a(f"v_rcp_f32 v{G+x}, v{G+x}")
            a("s_nop 0")
            for x in range(4): a(f"v_fma_f32 v{F+x}, v{F+x}, v{G+x}, -v{G+x}")
            for x in range(2): a(f"v_cvt_pk_bf16_f32 v{dst+2*h+x}, v{F+2*x}, v{F+2*x+1}")
        a(f"buffer_store_dwordx4 v[{dst}:{dst+3}], v{vOUT}, s[{S_O}:{S_O+3}], s{sROW + j//2} offen offset:{(j&1)*2048}", "vm")
    return L

NM = 3072
def build_tile(o):
    PH = o.get("ph", [4, 1, 1, 2, 2, 1, 1, 2, 2, 1, 1, 4])
    MARG = o.get("marg", 4)
    frags = [mf_order(PH[s]) for s in range(12)]
    mf = []; firsts = set()
    lastuseW = {}; firstacc = {}; lastacc = {}
    for s in range(12):
        for f, (cp, kk, jp) in enumerate(frags[s]):
            for eb in range(4):
                m = s * 256 + f * 4 + eb
                t, b = acc(jp, kk, eb)
                c = "0" if (s == 0 and cp == 0) else R(t, b)
                needs = []
                if eb == 0: needs.append(("lg", ("T", f % 8)))
                if (s, cp * 2 + kk, eb) not in lastuseW: needs.append(("vm", ("W", cp * 2 + kk, eb)))
                lastuseW[(s, cp * 2 + kk, eb)] = m
                firstacc.setdefault((s, jp), m); lastacc[(s, jp)] = m
                mf.append(I(f"v_mfma_f32_16x16x32_bf16 {R(t, b)}, {Wr(cp*2+kk, eb)}, {Tr(f % 8)}, {c}", needs=needs, cls="mfma"))
    fixed = [[] for _ in range(NM)]
    BAR = [256 * (s + 1) - 29 for s in range(12)]
    for s in range(12):
        fixed[BAR[s]] += [I("s_barrier", needs=[("lg", "TW")], cls="bar"),
                          I(f"v_xor_b32 v{vTR}, 0x10000, v{vTR}", cls="bar"), I(f"v_xor_b32 v{vTW}, 0x10000, v{vTW}", cls="bar")]
    for s in range(12):
        for f, (cp, kk, jp) in enumerate(frags[s]):
            m = (s * 256 + (f - 8) * 4 + 3) % NM
            fixed[m].append(I(f"ds_read_b128 {Tr(f % 8)}, v{vTR} offset:{cp*16384 + (kk*8+jp)*1024}", "lg", ("T", f % 8), cls="T"))
        sn = (s + 1) % 12
        prevm = -1
        for h in range(8):
            for eb in range(4):
                m = max(lastuseW[(s, h, eb)] + 1, prevm + o.get("wgap", 2) if PH[s] > 1 else lastuseW[(s, h, 3)] + 2 + 8 * eb)
                prevm = m
                L = []
                if h == 0 and eb == 0:
                    if sn: L += [I(f"s_add_u32 s{S_W}, s{S_W}, 32768", cls="Wb"), I(f"s_addc_u32 s{S_W+1}, s{S_W+1}, 0", cls="Wb")]
                    else: L += [I(f"s_sub_u32 s{S_W}, s{S_W}, {11*32768}", cls="Wb"), I(f"s_subb_u32 s{S_W+1}, s{S_W+1}, 0", cls="Wb")]
                L.append(I(f"buffer_load_dwordx4 {Wr(h, eb)}, v{vWOFF}, s[{S_W}:{S_W+3}], s{sROW+h} offen offset:{eb*1024}", "vm", ("W", h, eb), cls=f"W{sn}"))
                fixed[m % NM] += L
    if o.get("pf", 1):
        n = 0
        for r in range(4):
            for half in range(2):
                m = 256 * 5 + 40 + 128 * n; n += 1
                fixed[m].append(I(f"buffer_load_dword v{vLANE}, v{vPF}, s[{S_X}:{S_X+3}], s{sROW + r//2} offen offset:{(r&1)*2048 + half*512}", "vm", None, cls="pf"))
    streams = []
    for u in range(12):
        st = BAR[(u - 2) % 12] + 1; en = BAR[(u - 1) % 12] - 1
        if en < st: en += NM
        streams.append(dict(ops=[(i, st, en) for i in unit_stream(u)], st=st, en=en))
    def extra(opsf, s):
        sn = (s + 1) % 12; add = NM if sn == 0 else 0
        jps = sorted(range(8), key=lambda jp: lastacc[(s, jp)])
        ops = []
        for jp in jps:
            rel, dl = lastacc[(s, jp)] + MARG, firstacc[(sn, jp)] + add - 2
            ops += [(i, rel, dl) for i in opsf(jp)]
        return dict(ops=ops, st=ops[0][1], en=ops[-1][2])
    streams.append(extra(lambda jp: bfly_ops(1, jp), 3))
    streams.append(extra(lambda jp: bfly_ops(2, jp), 7))
    e = extra(epi_ops, 11)
    e["ops"].append((I(f"v_mov_b32 v{vOUT}, v{vOUT2}", cls="epi"), e["ops"][-1][1], e["ops"][-1][2]))
    streams.append(e)
    gaps = [list(fixed[m]) for m in range(NM)]
    flex = [[] for _ in range(NM)]
    load = [sum(icost(i) for i in fixed[m]) for m in range(NM)]
    def caps(st, en, tot):
        lo, hi = 0.0, 1000.0
        for _ in range(50):
            L = (lo + hi) / 2
            if sum(max(0.0, L - load[m % NM]) for m in range(st, en + 1)) < tot: lo = L
            else: hi = L
        return [max(0.0, hi - load[m % NM]) for m in range(st, en + 1)]
    def place(ops, st, en):
        tot = sum(map(icost, ops)); c = caps(st, en, tot)
        k = 0; done = 0.0; tgt = 0.0
        for m in range(st, en + 1):
            tgt += c[m - st]
            while k < len(ops) and (done + icost(ops[k]) / 2 <= tgt or m == en):
                flex[m % NM].append(ops[k]); load[m % NM] += icost(ops[k]); done += icost(ops[k]); k += 1
    for S in streams:
        segs = []
        for i, rel, dl in S["ops"]:
            if not segs or segs[-1][1:] != [rel, dl]: segs.append([[], rel, dl])
            segs[-1][0].append(i)
        start = segs[0][1]
        for n, (ops, rel, dl) in enumerate(segs):
            start = max(start, rel)
            rest = sum(icost(i) for sg in segs[n:] for i in sg[0]); mine = sum(map(icost, ops))
            e = start + int((segs[-1][2] - start) * mine / rest)
            if n + 1 < len(segs): e = max(e, segs[n + 1][1] - 1)
            e = min(e, dl)
            place(ops, start, e)
            start = e
    prog = []
    for s in range(12):
        L = []
        for m in range(256 * s, 256 * (s + 1)):
            L.append(mf[m]); L += gaps[m]; L += flex[m]
        prog.append(L)
    return prog, BAR

def rowbytes(a, vU, vD, vt):
    a(f"v_lshlrev_b32 v{vD}, 1, v{vU}")
    for thr, adj in ((8000, 15999), (16000, 1), (24000, 15999)):
        a(f"v_cmp_le_u32 vcc, {thr}, v{vU}"); a(f"v_mov_b32 v{vt}, {adj}"); a("s_nop 1")
        a(f"v_cndmask_b32 v{vt}, 0, v{vt}, vcc"); a(f"v_sub_u32 v{vD}, v{vD}, v{vt}")
    a(f"v_lshlrev_b32 v{vD}, 10, v{vD}")

def tile_setup_x(a, sTT, vxm, vxh, vpf=None):
    t = POOL
    a(f"s_lshl_b32 s{sT0}, s{sTT}, 8")
    a(f"v_lshrrev_b32 v{t[0]}, 2, v{vLANE}"); a(f"v_lshlrev_b32 v{t[1]}, 4, v{t[0]}"); a(f"v_add_u32 v{t[1]}, s{sT0}, v{t[1]}")
    rowbytes(a, t[1], t[2], t[3])
    a(f"v_lshrrev_b32 v{t[3]}, 5, v{vLANE}"); a(f"v_mul_u32_u24 v{t[3]}, 3, v{t[3]}")
    a(f"v_and_b32 v{t[4]}, 3, v{vLANE}"); a(f"v_xor_b32 v{t[3]}, v{t[3]}, v{t[4]}"); a(f"v_lshlrev_b32 v{t[3]}, 4, v{t[3]}")
    a(f"s_lshl_b32 s{sT1}, s{sWAVE}, 6")
    a(f"v_add3_u32 v{vxm}, v{t[2]}, v{t[3]}, s{sT1}")
    if vpf is not None:
        a(f"v_lshlrev_b32 v{t[4]}, 7, v{t[4]}")
        a(f"s_lshl_b32 s{sT1}, s{sWAVE}, 13"); a(f"s_add_u32 s{sT1}, s{sT1}, 8192")
        a(f"v_add3_u32 v{vpf}, v{t[2]}, v{t[4]}, s{sT1}")
    a(f"v_mov_b32 v{vxh}, v{vxm}"); a(f"v_mov_b32 v{t[4]}, 0x70000000")
    for thr in (0, 8000, 16000, 24000):
        a(f"v_cmp_eq_u32 vcc, {thr}, v{t[1]}"); a("s_nop 1"); a(f"v_cndmask_b32 v{vxh}, v{vxh}, v{t[4]}, vcc")

def tile_setup_o(a, sTT, vout):
    t = POOL
    a(f"s_lshl_b32 s{sT0}, s{sTT}, 8")
    a(f"v_and_b32 v{t[0]}, 15, v{vLANE}"); a(f"v_lshlrev_b32 v{t[1]}, 4, v{t[0]}"); a(f"v_add_u32 v{t[1]}, s{sT0}, v{t[1]}")
    rowbytes(a, t[1], t[2], t[3])
    a(f"v_lshrrev_b32 v{t[3]}, 4, v{vLANE}"); a(f"v_lshlrev_b32 v{t[3]}, 4, v{t[3]}"); a(f"v_add_u32 v{t[2]}, v{t[2]}, v{t[3]}")
    a(f"s_lshl_b32 s{sT1}, s{sET}, 8"); a(f"s_lshl_b32 s{sT2}, s{sWAVE}, 6"); a(f"s_add_u32 s{sT1}, s{sT1}, s{sT2}")
    a(f"v_add_u32 v{vout}, s{sT1}, v{t[2]}")

def unit0_special(a):
    RB = ACCV
    TB = ACCV + 72
    P = [None] * 4; M = [None] * 4
    pool = Pool(list(range(TB, TB + 72, 2)))
    oq = [TB + 72, TB + 76, TB + 80, TB + 84]
    for n in range(9):
        r3, r4 = RB + 8 * n, RB + 8 * n + 4
        t3 = [pool.get() for _ in range(4)]; t4 = [pool.get() for _ in range(4)]
        first = True
        for t, r in ((t3, r3), (t4, r4)):
            for x in range(4):
                a(f"v_lshlrev_b32 v{t[x]}, 16, v{r+x}", needs=[("vm", ("X0", 2*n+1))] if first else ()); first = False
                a(f"v_and_b32 v{t[x]+1}, s{sMASK}, v{r+x}")
        p = [pool.get() for _ in range(4)]
        for x in range(4): a(f"v_pk_fma_f32 {P2(p[x])}, {P2(t3[x])}, s[{sPB}:{sPB+1}], {P2(t4[x])}")
        for x in range(4): a(f"v_pk_fma_f32 {P2(t4[x])}, {P2(t3[x])}, s[{sPB}:{sPB+1}], {P2(t4[x])} neg_lo:[0,1,0] neg_hi:[0,1,0]")
        pool.put(*t3)
        if n:
            qa, qb = oq[2 * (n & 1)], oq[2 * (n & 1) + 1]
            for x in range(4): a(f"v_pk_fma_f32 {P2(P[x])}, {P2(P[x])}, s[{sPK}:{sPK+1}], {P2(p[x])}")
            for x in range(4): a(f"v_pk_fma_f32 {P2(M[x])}, {P2(M[x])}, s[{sPK}:{sPK+1}], {P2(t4[x])}")
            for x in range(4): a(f"v_cvt_pk_bf16_f32 v{qa+x}, v{P[x]}, v{P[x]+1}")
            for x in range(4): a(f"v_cvt_pk_bf16_f32 v{qb+x}, v{M[x]}, v{M[x]+1}")
            a(f"ds_write_b128 v{vTW}, v[{qa}:{qa+3}] offset:{(n-1)*1024}", "lg", "TW")
            a(f"ds_write_b128 v{vTW}, v[{qb}:{qb+3}] offset:{(8+n-1)*1024}", "lg", "TW")
            pool.put(*P); pool.put(*M)
        P = p; M = t4

def gen_main(o):
    K = NAME + "_kernel"
    prog, BAR = build_tile(o)
    pro = []
    def a(s, kind=None, tag=None, needs=()): pro.append(I(s, kind, tag, needs))
    a(f".globl {K}"); a(".p2align 8"); a(f".type {K},@function"); a(K + ":")
    a("s_cmp_ge_u32 s2, 256"); a("s_cbranch_scc1 L_END")
    a("s_load_dwordx8 s[4:11], s[0:1], 0"); a("s_load_dwordx2 s[12:13], s[0:1], 32")
    if o.get("trace"): a("s_memtime s[86:87]"); a("s_memrealtime s[88:89]")
    a("v_lshrrev_b32 v1, 6, v0"); a(f"v_and_b32 v{vLANE}, 63, v0"); a("s_nop 0"); a(f"v_readfirstlane_b32 s{sWAVE}, v1")
    a("s_and_b32 s64, s2, 7"); a("s_lshr_b32 s65, s2, 3"); a("s_and_b32 s66, s64, 1"); a("s_lshl_b32 s66, s66, 1")
    a(f"s_and_b32 s{sET}, s65, 1"); a(f"s_add_u32 s{sET}, s{sET}, s66")
    a("s_lshr_b32 s64, s64, 1"); a("s_lshr_b32 s65, s65, 1"); a("s_mul_i32 s66, s64, 31")
    a("s_cmp_eq_u32 s64, 0"); a("s_cselect_b32 s67, 0, 1"); a("s_add_u32 s66, s66, s67"); a("s_add_u32 s66, s66, s65")
    a("s_sub_u32 s67, 16, s67"); a("s_cmp_lt_u32 s65, s67")
    a(f"s_cselect_b32 s{sNT}, 2, 1"); a("s_cselect_b32 s65, 16, 0"); a("s_add_u32 s65, s66, s65")
    for k in range(10): a(f"s_mov_b32 s{sROW+k}, {k*4096}")
    tile_setup_x(a, 66, vXM, vXH)
    a("s_waitcnt lgkmcnt(0)")
    a(f"s_sub_u32 s{S_X}, s4, 8192"); a(f"s_subb_u32 s{S_X+1}, s5, 0"); a(f"s_and_b32 s{S_X+1}, s{S_X+1}, 0xffff")
    a(f"s_mov_b32 s{S_X+2}, {32768000+8192}"); a(f"s_mov_b32 s{S_X+3}, 0x00020000")
    for k in range(18): pro.append(xload(0, k, dst=ACCV + 4 * k, tag=("X0", k)))
    a(f"v_lshlrev_b32 v{vWOFF}, 4, v{vLANE}")
    a(f"s_lshl_b32 s{sT0}, s{sET}, 2"); a(f"s_add_u32 s{sT0}, s{sT0}, s{sWAVE}"); a(f"s_mul_i32 s{sT0}, s{sT0}, {WSLICE}")
    a(f"s_add_u32 s{S_W}, s12, s{sT0}"); a(f"s_addc_u32 s{S_W+1}, s13, 0"); a(f"s_and_b32 s{S_W+1}, s{S_W+1}, 0xffff")
    a(f"s_mov_b32 s{S_W+2}, 32768"); a(f"s_mov_b32 s{S_W+3}, 0x00020000")
    S11 = prog[11]
    ib = next(n for n, i in enumerate(S11) if i.cls == "bar")
    cp = lambda i: I(i.s, i.kind, i.tag, i.needs, i.cls)
    pro += [cp(i) for i in S11[:ib] if i.cls == "xl1"]
    pro += [cp(i) for i in S11 if i.cls == "W0"]
    a(f"s_mov_b32 s{S_O}, s8"); a(f"s_and_b32 s{S_O+1}, s9, 0xffff"); a(f"s_mov_b32 s{S_O+2}, 32768000"); a(f"s_mov_b32 s{S_O+3}, 0x00020000")
    l2e = math.log2(math.e)
    for r, v in ((sA, A_), (sB, B_), (sM25, -2.5), (sC1, 2 * l2e), (sC2, -l2e), (sC1o, 2 * l2e * A_), (sC2o, -l2e * A_),
                 (sCL, 40.0), (sK1, -0.375), (sK2, -1 / 3), (sPB, B_), (sPB + 1, B_), (sPK, -0.5), (sPK + 1, -0.5)):
        a(f"s_mov_b32 s{r}, {hx(v)}")
    a(f"s_mov_b32 s{sMASK}, 0xffff0000")
    tile_setup_x(a, 65, vXMn, vXHn, vPF)
    tile_setup_o(a, 66, vOUT); tile_setup_o(a, 65, vOUT2)
    t = POOL
    a(f"s_lshl_b32 s{sT0}, s{sWAVE}, 14"); a(f"v_add_u32 v{vTW}, s{sT0}, v{vWOFF}")
    a(f"v_and_b32 v{t[0]}, 15, v{vLANE}"); a(f"v_lshrrev_b32 v{t[1]}, 3, v{t[0]}"); a(f"v_mul_u32_u24 v{t[1]}, 3, v{t[1]}")
    a(f"v_lshrrev_b32 v{t[2]}, 4, v{vLANE}"); a(f"v_xor_b32 v{t[1]}, v{t[1]}, v{t[2]}")
    a(f"v_lshlrev_b32 v{t[0]}, 2, v{t[0]}"); a(f"v_add_u32 v{t[0]}, v{t[0]}, v{t[1]}"); a(f"v_lshlrev_b32 v{t[0]}, 4, v{t[0]}")
    a(f"v_xor_b32 v{vTR}, 0x10000, v{t[0]}")
    TRC = lambda: []
    if o.get("trace"):
        a("s_add_u32 s80, s12, 0x800000"); a("s_addc_u32 s81, s13, 0"); a("s_and_b32 s81, s81, 0xffff")
        a("s_mov_b32 s82, 0x100000"); a("s_mov_b32 s83, 0x00020000")
        a("s_lshl_b32 s90, s2, 2"); a(f"s_add_u32 s90, s90, s{sWAVE}"); a("s_lshl_b32 s90, s90, 9"); a("v_mov_b32 v0, 0")
        TRC = lambda: [I("s_waitcnt lgkmcnt(0)"), I("v_mov_b32 v42, s86"), I("v_mov_b32 v43, s88"),
                       I("buffer_store_dwordx2 v[42:43], v0, s[80:83], s90 offen", "vm"), I("s_add_u32 s90, s90, 8"),
                       I("s_memtime s[86:87]"), I("s_memrealtime s[88:89]")]
    unit0_special(a)
    pro += [cp(i) for i in S11[ib:] if i.cls in ("bar", "T", "p1", "xl1")]
    a("s_nop 1")
    S0n = TRC() + prog[0]
    S0f = TRC() + [cp(i) for i in prog[0] if i.cls != "epi"]
    tail = TRC() + [I("s_nop 7")] + [cp(i) for i in prog[0] if i.cls == "epi"] + [I("DRAIN")]
    mid = []
    for s in range(1, 12): mid += TRC() + prog[s]
    if o.get("looptest"):
        one = TRC() + prog[1]
        resolve(pro + S0f + one + one + one + tail, {"vm": None, "lg": None})
        out = []
        emit(out, pro); emit(out, S0f)
        out += [" s_mov_b32 s45, 11", "L_MID:"]; emit(out, one)
        out += [" s_sub_u32 s45, s45, 1", " s_cmp_eq_u32 s45, 0", " s_cbranch_scc0 L_MID", "L_TAIL:"]
        emit(out, tail)
        emit(out, TRC() + TRC()[:4] + [I("s_waitcnt vmcnt(0)")])
        out += ["L_END:", " s_endpgm"]
        return out
    slack = {"vm": None, "lg": o.get("lgslack")}
    resolve(pro + S0f + mid + S0n + mid + tail, slack)
    resolve(pro + S0f + mid + tail, slack)
    out = []
    emit(out, pro); emit(out, S0f)
    out.append("L_MID:"); emit(out, mid)
    out += [f"    s_sub_u32 s{sNT}, s{sNT}, 1", f"    s_cmp_eq_u32 s{sNT}, 0", "    s_cbranch_scc1 L_TAIL"]
    emit(out, S0n)
    out += ["    s_branch L_MID"]
    out.append("L_TAIL:"); emit(out, tail)
    if o.get("trace"):
        emit(out, TRC() + TRC()[:4] + [I("s_waitcnt vmcnt(0)")])
    out += ["L_END:", "    s_endpgm"]
    return out

def kd(name, vg, sg, acco):
    return [".p2align 6", f".amdhsa_kernel {name}", f"  .amdhsa_next_free_vgpr {vg}", f"  .amdhsa_next_free_sgpr {sg}",
            f"  .amdhsa_accum_offset {acco}", "  .amdhsa_group_segment_fixed_size 0", "  .amdhsa_kernarg_size 40",
            "  .amdhsa_user_sgpr_count 2", "  .amdhsa_user_sgpr_kernarg_segment_ptr 1",
            "  .amdhsa_system_sgpr_workgroup_id_x 1", ".end_amdhsa_kernel"]

def wprep_text(o):
    src = open("gen2.py").read().replace("\nmain()\n", "\n")
    g = {}
    exec(compile(src, "gen2", "exec"), g)
    out = []
    g["emit"](out, g["gen_wprep"](o))
    return out

def main():
    o = {}
    for s in sys.argv[2:]:
        k, _, v = s.partition("=")
        o[k] = eval(v) if v else 1
    CW.update(o.get("cw", {}))
    out = [HEADER, "; @launch kernel=wprep_kernel grid=(256,1,1) block=(128,1,1) lds=0",
           f"; @launch kernel={NAME}_kernel grid=(256,1,1) block=(256,1,1) lds={LDS_BYTES}",
           '.amdgcn_target "amdgcn-amd-amdhsa--gfx950"', ".text"]
    out += gen_main(o)
    out += wprep_text(o)
    out.append('.section .rodata,"a"')
    out += kd(NAME + "_kernel", 512, 96, 256) + kd("wprep_kernel", 128, 40, 128)
    open(sys.argv[1], "w").write("\n".join(out) + "\n")

if __name__ == "__main__":
    main()
```

```python
import sys, math
sys.path.insert(0, "tools")
import gen3 as G
from gen3 import I, icost, resolve, emit, hx, R, P2, NAME, kd, Pool, CW

HEADER = """; Kernarg layout for this problem (40 bytes, ptrs only, base s[0:1]):
; Launch 2: persistent kernel: input transform (VALU) -> LDS -> MFMA, output transform, tanh*sigmoid."""
WSLICE = 2 * 16 * 16 * 1024
LDS_BYTES = 131072
S_X, S_W, S_O = 16, 20, 24
sWAVE, sET, sNT, sSIG, sUN, sXO = 28, 29, 30, 31, 32, 33
sMASK, sCL, sWI, sWIH, sDX = 34, 35, 36, 37, 38
sK425, sK5, sK525, sK125, sKQ = 39, 40, 41, 42, 43
sT0, sT1, sT2 = 44, 45, 46
sM768, sROW, s256, s2048, sWNEG = 47, 48, 58, 59, 84
sC = 60
sHALF, sP01, sP02, sM4, sP6, sP43 = 72, 74, 76, 78, 80, 82
sPDG, sPPART = 91, 92
sPFO = 85
vPF, vJ = 108, 109
S_WI, S_WO = 64, 68
vWOFF, vXM, vXH, vX2, vXMn, vXHn, vTR, vTW, vOUT, vOUT2 = 1, 2, 3, 4, 5, 6, 7, 8, 9, 10
vLANE = 11
CFG = dict(NOUTQ=4, NPOOL=40, NRAW=10, NT=4)
def layout():
    global OUTQ, POOL, FREE, NFREE, RAWB, NRAW, ACCV, NVG, AW, NTR
    OUTQ = 12; n = OUTQ + 4 * CFG["NOUTQ"]
    POOL = list(range(n, n + CFG["NPOOL"])); n += CFG["NPOOL"]
    FREE = 12; NFREE = n - 12
    RAWB = n; NRAW = CFG["NRAW"]; n += 4 * NRAW
    NVG = (256 - n) // 16; ACCV = 256 - 16 * NVG
    AW = 16 * (16 - NVG); NTR = CFG["NT"]
    assert AW + 128 + 4 * NTR <= 256, (AW, NVG)
    for k in ("sWAVE", "sET", "sT0", "sT1", "sT2", "vLANE", "POOL"): setattr(G, k, globals()[k])
def acc(jq, kk, eb):
    g = jq * 4 + eb
    return ("v", ACCV + g * 16 + kk * 4) if g < NVG else ("a", (g - NVG) * 16 + kk * 4)
def Wr(n, eb): return R("a", AW + ((n % 8) * 4 + eb) * 4)
def Tr(s): return R("a", AW + 128 + s * 4)
def raw(s): return RAWB + 4 * s
def urows(typ): return list(range(1, 19)) if typ == 1 else list(range(20))
NPRE = lambda: min(NRAW, 10)

def xl_own(typ, k, dst=None, tag=None):
    row = urows(typ)[k]; r = raw(k % NRAW) if dst is None else dst
    return I(f"buffer_load_dwordx4 v[{r}:{r+3}], v{vXH if row < 4 else vXM}, s[{S_X}:{S_X+3}], s{sROW+row//2} offen offset:{(row&1)*2048}",
             "vm", ("X", k % NRAW) if tag is None else tag)
def xl_next(k):
    r = raw(k); va = vXH if k < 3 else (vX2 if k == 3 else vXM)
    L = [I(f"buffer_load_dwordx4 v[{r}:{r+3}], v{va}, s[{S_X}:{S_X+3}], s{sXO} offen offset:{(k&1)*2048}", "vm", ("X", k))]
    if k & 1: L.append(I(f"s_add_u32 s{sXO}, s{sXO}, 4096"))
    return L
_l = [0]
def switch_ops():
    _l[0] += 1; L = f"LS{_l[0]}"
    return [I(s) for s in (
        f"s_add_u32 s{sUN}, s{sUN}, 1", f"s_and_b32 s{sT0}, s{sUN}, 3", f"s_cmp_eq_u32 s{sT0}, 0",
        f"s_cselect_b32 s{sDX}, s{sM768}, s{s256}",
        f"v_add_u32 v{vXM}, s{sDX}, v{vXM}", f"v_add_u32 v{vXH}, s{sDX}, v{vXH}",
        f"s_cmp_lg_u32 s{sUN}, 8", f"s_cbranch_scc1 {L}_a",
        f"s_mov_b32 s{sUN}, 0", f"v_mov_b32 v{vXM}, v{vXMn}", f"v_mov_b32 v{vXH}, v{vXHn}", f"{L}_a:",
        f"s_cmp_lt_u32 s{sUN}, 4", f"s_cselect_b32 s{sXO}, s{s2048}, 0",
        f"v_mov_b32 v{vX2}, v{vXM}", f"s_cbranch_scc1 {L}_b", f"v_mov_b32 v{vX2}, v{vXH}", f"{L}_b:")]

def unit_stream(typ):
    S = []; pool = Pool(POOL); nrows = len(urows(typ)); pend = []; hi = [0]
    def op(s, kind=None, tag=None):
        S.append([I(s, kind, tag, needs=pend[:])]); pend.clear()
    def get(n=1):
        r = [pool.get() for _ in range(n)]; hi[0] = max(hi[0], len(POOL) - len(pool.free)); return r
    freed = set(); ld = [NPRE()]
    def lastocc(slot, before):
        c = [r for r in range(before) if r % NRAW == slot]
        return max(c) if c else None
    def consumed(*ks):
        freed.update(ks)
        while True:
            n = ld[0]
            if n < nrows:
                p = lastocc(n % NRAW, n)
                if p is not None and p not in freed: break
                S.append([xl_own(typ, n)])
            else:
                kk = n - nrows
                if kk >= NPRE() or lastocc(kk, nrows) not in freed: break
                if kk == 0: S.append(switch_ops())
                S.append(xl_next(kk))
            ld[0] += 1
    consumed()
    def unp(k, dw):
        d = get(2); s = raw(k % NRAW) + dw
        op(f"v_lshlrev_b32 v{d[0]}, 16, v{s}"); op(f"v_and_b32 v{d[1]}, s{sMASK}, v{s}")
        return d
    def need(*ks): pend.extend(("vm", ("X", k % NRAW)) for k in ks)
    def each(f):
        for h in range(2): op(f(h))
    pendw = []
    def tw(jq, flush=False):
        for kk in range(4):
            q = OUTQ + 4 * (kk % CFG["NOUTQ"])
            pendw.append(f"ds_write_b128 v{vTW}, v[{q}:{q+3}] offset:{(kk*4+jq)*1024}")
        if flush or not CFG.get("spreadw", 1):
            while pendw: S.append([I(pendw.pop(0), "lg", "TW")])
    _op = op; cnt = [0]
    def op(s, kind=None, tag=None):
        if pendw and s.startswith("v_cvt"):
            while pendw: S.append([I(pendw.pop(0), "lg", "TW")])
        _op(s, kind, tag); cnt[0] += 1
        if pendw and cnt[0] % CFG.get("wsp", 7) == 0: S.append([I(pendw.pop(0), "lg", "TW")])
    cv = lambda kk, dw, r: op(f"v_cvt_pk_bf16_f32 v{OUTQ+4*kk+dw}, v{r[0]}, v{r[1]}")
    if typ == 1:
        c1 = [None] * 4; c2 = [None] * 4
        need(0, 1)
        for dw in range(4):
            c1[dw] = unp(0, dw); c2[dw] = unp(1, dw)
        consumed(0, 1)
        for jq in range(4):
            k = 2 + 4 * jq
            need(k, k + 1, k + 2, k + 3)
            for dw in range(4):
                d3, d4, d5, d6 = [unp(k + i, dw) for i in range(4)]
                if dw == 3: consumed(k, k + 1, k + 2, k + 3)
                d1, d2 = c1[dw], c2[dw]
                e1 = get(2); o1 = get(2)
                each(lambda h: f"v_fma_f32 v{e1[h]}, s{sK425}, v{d4[h]}, v{d6[h]}")
                each(lambda h: f"v_fma_f32 v{o1[h]}, s{sK425}, v{d3[h]}, v{d5[h]}")
                each(lambda h: f"v_fma_f32 v{d4[h]}, s{sK5}, v{d4[h]}, v{d6[h]}")
                each(lambda h: f"v_fma_f32 v{d3[h]}, s{sK5}, v{d3[h]}, v{d5[h]}")
                each(lambda h: f"v_add_f32 v{e1[h]}, v{e1[h]}, v{d2[h]}")
                each(lambda h: f"v_add_f32 v{o1[h]}, v{o1[h]}, v{d1[h]}")
                each(lambda h: f"v_fmac_f32 v{d4[h]}, 4.0, v{d2[h]}")
                each(lambda h: f"v_fmac_f32 v{d3[h]}, 4.0, v{d1[h]}")
                each(lambda h: f"v_add_f32 v{d1[h]}, v{e1[h]}, v{o1[h]}")
                each(lambda h: f"v_sub_f32 v{e1[h]}, v{e1[h]}, v{o1[h]}")
                each(lambda h: f"v_fma_f32 v{d2[h]}, 0.5, v{d3[h]}, v{d4[h]}")
                each(lambda h: f"v_fma_f32 v{d4[h]}, -0.5, v{d3[h]}, v{d4[h]}")
                cv(0, dw, d1); cv(1, dw, e1); cv(2, dw, d2); cv(3, dw, d4)
                pool.put(*d1, *d2, *e1, *o1, *d3, *d4)
                c1[dw], c2[dw] = d5, d6
            tw(jq, jq == 3)
        for dw in range(4): pool.put(*c1[dw], *c2[dw])
    else:
        A0 = [None] * 4; A7 = [None] * 4; C2 = [None] * 4; B3 = [None] * 4
        def carries(dw, d4, d5, d6, d7):
            each(lambda h: f"v_fmac_f32 v{d5[h]}, s{sK5}, v{d7[h]}")
            each(lambda h: f"v_fma_f32 v{d4[h]}, -s{sK525}, v{d6[h]}, v{d4[h]}")
            each(lambda h: f"v_fma_f32 v{d7[h]}, s{sKQ}, v{d7[h]}, -v{d5[h]}")
            A0[dw], A7[dw], C2[dw], B3[dw] = d4, d7, d6, d5
        need(0, 1, 2, 3)
        for dw in range(4):
            d = [unp(i, dw) for i in range(4)]
            if dw == 3: consumed(0, 1, 2, 3)
            carries(dw, *d)
        for jq in range(4):
            k = 4 + 4 * jq
            need(k, k + 1, k + 2, k + 3)
            for dw in range(4):
                d4, d5, d6, d7 = [unp(k + i, dw) for i in range(4)]
                if dw == 3: consumed(k, k + 1, k + 2, k + 3)
                a0, a7, c2, b3 = A0[dw], A7[dw], C2[dw], B3[dw]
                each(lambda h: f"v_fma_f32 v{c2[h]}, s{sKQ}, v{c2[h]}, v{d6[h]}")
                each(lambda h: f"v_fma_f32 v{b3[h]}, s{sKQ}, v{b3[h]}, v{d5[h]}")
                each(lambda h: f"v_fmac_f32 v{a0[h]}, s{sK525}, v{d4[h]}")
                each(lambda h: f"v_fma_f32 v{a7[h]}, -s{sK525}, v{d5[h]}, v{a7[h]}")
                each(lambda h: f"v_fmac_f32 v{c2[h]}, s{sK125}, v{d4[h]}")
                each(lambda h: f"v_sub_f32 v{a0[h]}, v{a0[h]}, v{d6[h]}")
                each(lambda h: f"v_add_f32 v{a7[h]}, v{a7[h]}, v{d7[h]}")
                each(lambda h: f"v_fma_f32 v{b3[h]}, 2.0, v{b3[h]}, v{c2[h]}")
                cv(2, dw, a0); cv(3, dw, a7)
                each(lambda h: f"v_fma_f32 v{c2[h]}, 2.0, v{c2[h]}, -v{b3[h]}")
                cv(0, dw, b3); cv(1, dw, c2)
                pool.put(*a0, *a7, *c2, *b3)
                if jq < 3: carries(dw, d4, d5, d6, d7)
                else: pool.put(*d4, *d5, *d6, *d7)
            tw(jq, jq == 3)
    assert len(pool.free) == len(POOL)
    return S, hi[0]

def tread(f):
    f %= 64
    return I(f"ds_read_b128 {Tr(f % NTR)}, v{vTR} offset:{f*1024}", "lg", ("T", f % NTR), cls="T")
def wload(n, eb):
    return I(f"buffer_load_dwordx4 {Wr(n, eb)}, v{vWOFF}, s[{S_W}:{S_W+3}], s{sROW + n % 8} offen offset:{eb*1024}", "vm", ("W", n % 8, eb), cls="W")
def bar_ops():
    return [I("s_barrier", needs=[("lg", "TW")]), I(f"v_xor_b32 v{vTR}, 0x10000, v{vTR}"), I(f"v_xor_b32 v{vTW}, 0x10000, v{vTW}")]

def body(typ, first, o):
    BARM = 256 - 4 * NTR + 3
    fixed = [[] for _ in range(256)]
    fixed[BARM] += bar_ops()
    for f in range(64): fixed[((f - NTR) * 4 + 3) % 256].append(tread(f))
    wp = o.get("wpos", (1, 5, 9, 13))
    for n in range(16):
        for eb in range(4):
            m = (16 * n + 16 + wp[eb]) % 256
            if n % 8 == 0 and eb == 0:
                if n == 8:
                    fixed[m] += [I(f"s_cmp_eq_u32 s{sSIG}, 7"), I(f"s_cselect_b32 s{sWI}, s{sWNEG}, s{sROW+8}"), I(f"s_cselect_b32 s{sWIH}, -1, 0"),
                                 I(f"s_add_u32 s{S_W}, s{S_W}, s{sWI}"), I(f"s_addc_u32 s{S_W+1}, s{S_W+1}, s{sWIH}")]
                else:
                    fixed[m] += [I(f"s_add_u32 s{S_W}, s{S_W}, 32768"), I(f"s_addc_u32 s{S_W+1}, s{S_W+1}, 0")]
            fixed[m].append(wload(n, eb))
    if typ == 2 and o.get("pf", 1):
        fixed[o.get("pfm", 62)] += [I(f"buffer_load_dword v{vJ}, v{vPF}, s[{S_X}:{S_X+3}], s{sPFO} offen", "vm"), I(f"s_add_u32 s{sPFO}, s{sPFO}, 2048")]
    S, _ = unit_stream(typ)
    c = lambda g: sum(icost(i) for i in g if not i.s.endswith(":"))
    load = [c(fixed[m]) for m in range(256)]
    st, en = 0, BARM - 1 - o.get("endm", 2)
    tot = sum(map(c, S)); lo, hi = 0.0, 100.0
    for _ in range(50):
        L = (lo + hi) / 2
        if sum(max(0.0, L - load[m]) for m in range(st, en + 1)) < tot: lo = L
        else: hi = L
    out = []; k = 0; done = 0.0; tgt = 0.0
    XG = o.get("xg", 8); xq = []; lastx = -99
    isx = lambda g: g[0].s.startswith("buffer_load") or g[0].s.startswith(f"s_add_u32 s{sUN}")
    for m in range(256):
        f, eb = m >> 2, m & 3
        cp, kk, jq = f >> 4, (f >> 2) & 3, f & 3
        n = f >> 2
        t, b = acc(jq, kk, eb)
        needs = []
        if eb == 0: needs.append(("lg", ("T", f % NTR)))
        if jq == 0 and eb == 0: needs.append(("vm", ("W", n % 8, 3)))
        out.append(I(f"v_mfma_f32_16x16x32_bf16 {R(t, b)}, {Wr(n, eb)}, {Tr(f % NTR)}, {'0' if first and cp == 0 else R(t, b)}", needs=needs))
        out += fixed[m]
        if xq and ((m % 4 == o.get("xph", 3) and m - lastx >= XG) or m == 255):
            out += xq.pop(0); lastx = m
            if m == 255:
                while xq: out += xq.pop(0)
        if m <= en:
            tgt += max(0.0, hi - load[m])
            while k < len(S) and (done + c(S[k]) / 2 <= tgt or m == en):
                if XG and isx(S[k]): xq.append(S[k])
                else: out += S[k]
                done += c(S[k]); k += 1
    if o.get("drop"):
        for i in out:
            if any(i.s.startswith(d) for d in o["drop"]): i.s = "NOP"
    return out

PKC = lambda r: f"s[{r}:{r+1}]"
def mid(o):
    L = [I("s_nop 7")]; a = lambda s: L.append(I(s))
    def tr(groups):
        W = [(b + x, b + 4 + x, b + 8 + x, b + 12 + x, t + x, t + 4 + x) for b, t in groups for x in (0, 2)]
        for z0, z1, z2, z3, t0, t1 in W: a(f"v_pk_add_f32 {P2(t0)}, {P2(z0)}, {P2(z1)}")
        for z0, z1, z2, z3, t0, t1 in W: a(f"v_pk_add_f32 {P2(t1)}, {P2(z2)}, {P2(z3)}")
        for z0, z1, z2, z3, t0, t1 in W: a(f"v_pk_add_f32 {P2(z0)}, {P2(z0)}, {P2(z1)} neg_lo:[0,1] neg_hi:[0,1]")
        for z0, z1, z2, z3, t0, t1 in W: a(f"v_pk_add_f32 {P2(z1)}, {P2(z2)}, {P2(z3)} neg_lo:[0,1] neg_hi:[0,1]")
        for z0, z1, z2, z3, t0, t1 in W: a(f"v_pk_fma_f32 {P2(z2)}, {P2(t1)}, {PKC(sHALF)}, {P2(t0)} op_sel_hi:[1,0,1]")
        for z0, z1, z2, z3, t0, t1 in W: a(f"v_pk_fma_f32 {P2(z3)}, {P2(z0)}, {PKC(sM4)}, {P2(z1)} op_sel_hi:[1,0,1] neg_lo:[0,0,1] neg_hi:[0,0,1]")
        for z0, z1, z2, z3, t0, t1 in W: a(f"v_pk_fma_f32 {P2(t0)}, {P2(t1)}, {PKC(sP01)}, {P2(t0)} op_sel_hi:[1,0,1]")
        for z0, z1, z2, z3, t0, t1 in W: a(f"v_pk_fma_f32 {P2(t1)}, {P2(z1)}, {PKC(sP02)}, {P2(z0)} op_sel_hi:[1,0,1]")
        for z0, z1, z2, z3, t0, t1 in W: a(f"v_pk_fma_f32 {P2(z0)}, {P2(t1)}, 2.0, {P2(t0)} op_sel_hi:[1,0,1]")
        for z0, z1, z2, z3, t0, t1 in W: a(f"v_pk_fma_f32 {P2(z1)}, {P2(t1)}, -2.0, {P2(t0)} op_sel_hi:[1,0,1]")
    vg = [ACCV + 16 * g for g in range(NVG)]
    for n in range(0, NVG, 3): tr([(b, FREE + 8 * i) for i, b in enumerate(vg[n:n + 3])])
    ag = [16 * g for g in range(16 - NVG)]
    for n in range(0, len(ag), 2):
        grp = ag[n:n + 2]
        for i, b in enumerate(grp):
            for x in range(16): a(f"v_accvgpr_read_b32 v{FREE+24*i+x}, a{b+x}")
        tr([(FREE + 24 * i, FREE + 24 * i + 16) for i in range(len(grp))])
        for i, b in enumerate(grp):
            for x in range(16): a(f"v_accvgpr_write_b32 a{b+x}, v{FREE+24*i+x}")
    a("s_nop 1")
    return L

def epilogue(o):
    L = [I("s_nop 7")]; a = lambda s, kind=None: L.append(I(s, kind))
    for jq in range(4):
        base = []
        for eb in range(4):
            t, b = acc(jq, 0, eb)
            if t == "a":
                nb = acc(jq - 2, 0, eb)[1]
                for x in range(16): a(f"v_accvgpr_read_b32 v{nb+x}, a{b+x}")
                b = nb
            base.append(b)
        W = [(b + x, b + 4 + x, b + 8 + x, b + 12 + x) for b in base for x in (0, 2)]
        for z0, z1, z2, z3 in W: a(f"v_pk_add_f32 {P2(z0)}, {P2(z0)}, {P2(z1)}")
        for z0, z1, z2, z3 in W: a(f"v_pk_fma_f32 {P2(z1)}, {P2(z1)}, -2.0, {P2(z0)} op_sel_hi:[1,0,1]")
        for z0, z1, z2, z3 in W: a(f"v_pk_fma_f32 {P2(z2)}, {P2(z0)}, {PKC(sP6)}, {P2(z2)} op_sel_hi:[1,0,1]")
        for z0, z1, z2, z3 in W: a(f"v_pk_fma_f32 {P2(z3)}, {P2(z1)}, {PKC(sP43)}, {P2(z3)} op_sel_hi:[1,0,1]")
        for oidx, (kk, cs) in enumerate(((2, 0), (1, 1), (0, 2), (3, 0))):
            j = 4 * jq + oidx
            regs = [b + 4 * kk for b in base]
            prs = [(regs[h] + 2 * p, regs[2 + h] + 2 * p) for h in range(2) for p in range(2)]
            c1, c2 = sC + 4 * cs, sC + 4 * cs + 2
            for f, g in prs: a(f"v_pk_mul_f32 {P2(f)}, {P2(f)}, {PKC(c1)} op_sel_hi:[1,0]")
            for f, g in prs: a(f"v_pk_mul_f32 {P2(g)}, {P2(g)}, {PKC(c2)} op_sel_hi:[1,0]")
            for f, g in prs: a(f"v_min_f32 v{f}, s{sCL}, v{f}"); a(f"v_min_f32 v{f+1}, s{sCL}, v{f+1}")
            for f, g in prs: a(f"v_exp_f32 v{g}, v{g}"); a(f"v_exp_f32 v{g+1}, v{g+1}")
            for f, g in prs: a(f"v_exp_f32 v{f}, v{f}"); a(f"v_exp_f32 v{f+1}, v{f+1}")
            for f, g in prs: a(f"v_pk_fma_f32 {P2(f)}, {P2(f)}, {PKC(sHALF)}, {PKC(sHALF)} op_sel_hi:[1,0,0]")
            for f, g in prs: a(f"v_pk_fma_f32 {P2(g)}, {P2(f)}, {P2(g)}, {P2(f)}")
            for f, g in prs: a(f"v_rcp_f32 v{g}, v{g}"); a(f"v_rcp_f32 v{g+1}, v{g+1}")
            a("s_nop 0")
            for f, g in prs: a(f"v_pk_fma_f32 {P2(f)}, {P2(f)}, {P2(g)}, {P2(g)} neg_lo:[0,0,1] neg_hi:[0,0,1]")
            oq = regs[2]
            for n in range(4): a(f"v_cvt_pk_bf16_f32 v{oq+n}, v{regs[0]+n}, v{regs[1]+n}")
            if not o.get("nost"): a(f"buffer_store_dwordx4 v[{oq}:{oq+3}], v{vOUT}, s[{S_O}:{S_O+3}], s{sROW + j//2} offen offset:{(j&1)*2048}{o.get('stflag', '')}", "vm")
    a(f"v_mov_b32 v{vOUT}, v{vOUT2}")
    return L

class Em:
    def __init__(self): self.L = []
    def __call__(self, s, kind=None, tag=None, needs=()): self.L.append(I(s, kind, tag, needs))

def tile_setup_x(a, sTT, vxm, vxh):
    t = POOL
    a(f"s_lshl_b32 s{sT0}, s{sTT}, 8"); a(f"s_and_b32 s{sT1}, s{sWAVE}, 1"); a(f"s_lshl_b32 s{sT2}, s{sT1}, 7"); a(f"s_add_u32 s{sT0}, s{sT0}, s{sT2}")
    a(f"v_lshrrev_b32 v{t[0]}, 3, v{vLANE}"); a(f"v_lshlrev_b32 v{t[1]}, 4, v{t[0]}"); a(f"v_add_u32 v{t[1]}, s{sT0}, v{t[1]}")
    G.rowbytes(a, t[1], t[2], t[3])
    a(f"s_mul_i32 s{sT1}, s{sT1}, 3")
    a(f"v_and_b32 v{t[3]}, 7, v{vLANE}"); a(f"v_xor_b32 v{t[3]}, s{sT1}, v{t[3]}"); a(f"v_lshlrev_b32 v{t[3]}, 4, v{t[3]}")
    a(f"s_lshr_b32 s{sT1}, s{sWAVE}, 1"); a(f"s_lshl_b32 s{sT1}, s{sT1}, 7")
    a(f"v_add3_u32 v{vxm}, v{t[2]}, v{t[3]}, s{sT1}")
    a(f"v_mov_b32 v{vxh}, v{vxm}"); a(f"v_mov_b32 v{t[4]}, 0x70000000")
    for thr in (0, 8000, 16000, 24000):
        a(f"v_cmp_eq_u32 vcc, {thr}, v{t[1]}"); a("s_nop 1"); a(f"v_cndmask_b32 v{vxh}, v{vxh}, v{t[4]}, vcc")

def unit0_special(a, late):
    RB = ACCV
    pool = Pool(list(range(ACCV + 72, 256, 2)) + list(range(POOL[0], POOL[-1], 2)))
    K425, K5 = sP01, sP02
    a(f"s_mov_b32 s{K425}, {hx(-4.25)}"); a(f"s_mov_b32 s{K5}, {hx(-5.0)}")
    def unp(k, nd=()):
        d = [pool.get() for _ in range(4)]
        for x in range(4):
            a(f"v_lshlrev_b32 v{d[x]}, 16, v{RB+4*k+x}", needs=nd if x == 0 else ()); a(f"v_and_b32 v{d[x]+1}, s{sMASK}, v{RB+4*k+x}")
        return d
    pk = lambda f: [a(f(x)) for x in range(4)]
    d1 = unp(0, [("vm", ("X0", 1))]); d2 = unp(1)
    a.L += late[0]
    for jq in range(4):
        k = 2 + 4 * jq
        d3 = unp(k, [("vm", ("X0", k + 1))]); d4 = unp(k + 1); d5 = unp(k + 2, [("vm", ("X0", k + 3))]); d6 = unp(k + 3)
        a.L += late[jq + 1]
        e1 = [pool.get() for _ in range(4)]; o1 = [pool.get() for _ in range(4)]
        pk(lambda x: f"v_pk_fma_f32 {P2(e1[x])}, {P2(d4[x])}, {PKC(K425)}, {P2(d6[x])} op_sel_hi:[1,0,1]")
        pk(lambda x: f"v_pk_fma_f32 {P2(o1[x])}, {P2(d3[x])}, {PKC(K425)}, {P2(d5[x])} op_sel_hi:[1,0,1]")
        pk(lambda x: f"v_pk_fma_f32 {P2(d4[x])}, {P2(d4[x])}, {PKC(K5)}, {P2(d6[x])} op_sel_hi:[1,0,1]")
        pk(lambda x: f"v_pk_fma_f32 {P2(d3[x])}, {P2(d3[x])}, {PKC(K5)}, {P2(d5[x])} op_sel_hi:[1,0,1]")
        pk(lambda x: f"v_pk_add_f32 {P2(e1[x])}, {P2(e1[x])}, {P2(d2[x])}")
        pk(lambda x: f"v_pk_add_f32 {P2(o1[x])}, {P2(o1[x])}, {P2(d1[x])}")
        pk(lambda x: f"v_pk_fma_f32 {P2(d4[x])}, {P2(d2[x])}, 4.0, {P2(d4[x])} op_sel_hi:[1,0,1]")
        pk(lambda x: f"v_pk_fma_f32 {P2(d3[x])}, {P2(d1[x])}, 4.0, {P2(d3[x])} op_sel_hi:[1,0,1]")
        pk(lambda x: f"v_pk_add_f32 {P2(d1[x])}, {P2(e1[x])}, {P2(o1[x])}")
        pk(lambda x: f"v_pk_add_f32 {P2(e1[x])}, {P2(e1[x])}, {P2(o1[x])} neg_lo:[0,1] neg_hi:[0,1]")
        pk(lambda x: f"v_pk_fma_f32 {P2(d2[x])}, {P2(d3[x])}, 0.5, {P2(d4[x])} op_sel_hi:[1,0,1]")
        pk(lambda x: f"v_pk_fma_f32 {P2(d4[x])}, {P2(d3[x])}, -0.5, {P2(d4[x])} op_sel_hi:[1,0,1]")
        for kk, r in enumerate((d1, e1, d2, d4)):
            q = OUTQ + 4 * kk
            pk(lambda x: f"v_cvt_pk_bf16_f32 v{q+x}, v{r[x]}, v{r[x]+1}")
            a(f"ds_write_b128 v{vTW}, v[{q}:{q+3}] offset:{(kk*4+jq)*1024}", "lg", "TW")
        pool.put(*d1, *d2, *e1, *o1, *d3, *d4)
        d1, d2 = d5, d6

def wprep_kernel_text():
    a = Em(); p = [4, 5, 6, 7]
    a(".globl wprep_kernel"); a(".p2align 8"); a(".type wprep_kernel,@function"); a("wprep_kernel:")
    a("s_cmp_ge_u32 s2, 256"); a("s_cbranch_scc1 WP_END")
    a("s_load_dwordx2 s[6:7], s[0:1], 8"); a("s_load_dwordx2 s[12:13], s[0:1], 32")
    a("v_lshrrev_b32 v1, 6, v0"); a("v_and_b32 v2, 63, v0"); a("s_nop 0"); a(f"v_readfirstlane_b32 s{sPPART}, v1")
    a(f"s_and_b32 s{sET}, s2, 3"); a(f"s_lshr_b32 s{sPDG}, s2, 2"); a(f"s_mov_b32 s{sMASK}, 0xffff0000")
    a(f"v_lshrrev_b32 v{p[0]}, 1, v2"); a(f"v_lshlrev_b32 v{p[0]}, 2, v{p[0]}"); a(f"v_and_b32 v{p[3]}, 1, v2")
    a(f"v_lshl_add_u32 v{p[0]}, v{p[3]}, 13, v{p[0]}"); a(f"v_add_u32 v{p[1]}, 4096, v{p[0]}")
    a(f"v_lshrrev_b32 v{p[2]}, 5, v2"); a(f"v_lshlrev_b32 v{p[2]}, 19, v{p[2]}"); a(f"v_lshl_add_u32 v{p[2]}, v{p[3]}, 3, v{p[2]}")
    a(f"v_bfe_u32 v{p[3]}, v2, 1, 4"); a(f"v_lshl_add_u32 v{p[2]}, v{p[3]}, 4, v{p[2]}")
    SB = list(range(72, 80))
    a(f"s_lshr_b32 s{sT0}, s{sPPART}, 1"); a(f"s_lshl_b32 s{sT1}, s{sT0}, 10"); a(f"s_lshl_b32 s{sT2}, s{sET}, 8")
    a(f"s_add_u32 s{sT1}, s{sT1}, s{sT2}"); a(f"s_and_b32 s{sT2}, s{sPPART}, 1"); a(f"s_lshl_b32 s{sT2}, s{sT2}, 7")
    a(f"s_add_u32 s{sT1}, s{sT1}, s{sT2}"); a(f"s_lshl_b32 s{sT2}, s{sPDG}, 14"); a(f"s_add_u32 s{SB[0]}, s{sT1}, s{sT2}")
    for i in range(1, 5): a(f"s_add_u32 s{SB[i]}, s{SB[0]}, {i*1048576}")
    a("s_waitcnt lgkmcnt(0)")
    a(f"s_mov_b32 s{S_WI}, s6"); a(f"s_and_b32 s{S_WI+1}, s7, 0xffff"); a(f"s_mov_b32 s{S_WI+2}, 5242880"); a(f"s_mov_b32 s{S_WI+3}, 0x00020000")
    a(f"s_mov_b32 s{S_WO}, s12"); a(f"s_and_b32 s{S_WO+1}, s13, 0xffff"); a(f"s_mov_b32 s{S_WO+2}, {16*WSLICE}"); a(f"s_mov_b32 s{S_WO+3}, 0x00020000")
    WR = 8; TP = 28; RS = 52; OUT = 76
    for m in range(4):
        for i in range(5):
            a(f"buffer_load_dword v{WR+m*5+i}, v{p[m//2]}, s[{S_WI}:{S_WI+3}], s{SB[i]} offen offset:{(m&1)*2048}")
    a(f"s_lshl_b32 s{sT1}, s{sET}, 1"); a(f"s_and_b32 s{sT0}, s{sPPART}, 1"); a(f"s_add_u32 s{sT1}, s{sT1}, s{sT0}"); a(f"s_lshl_b32 s{sT1}, s{sT1}, 20")
    a(f"s_lshr_b32 s{sT0}, s{sPPART}, 1"); a(f"s_lshl_b32 s{sT0}, s{sT0}, 11"); a(f"s_add_u32 s{sT1}, s{sT1}, s{sT0}")
    a(f"s_lshr_b32 s{sT0}, s{sPDG}, 2"); a(f"s_lshl_b32 s{sT0}, s{sT0}, 14"); a(f"s_add_u32 s{sT1}, s{sT1}, s{sT0}")
    a(f"s_and_b32 s{sT0}, s{sPDG}, 3"); a(f"s_lshl_b32 s{sT0}, s{sT0}, 8"); a(f"s_add_u32 s48, s{sT1}, s{sT0}")
    for k in range(1, 8): a(f"s_add_u32 s{48+k}, s48, {(k//4)*262144 + (k%4)*4096}")
    CS = dict(q=80, s16=82, m6=84, f43=86, f23=88, f15=90, f215=92, x16=94)
    for k, v in dict(q=0.25, s16=1 / 16, m6=-1 / 6, f43=4 / 3, f23=2 / 3, f15=1 / 15, f215=2 / 15, x16=16.0).items(): a(f"s_mov_b32 s{CS[k]}, {hx(v)}")
    a("s_mov_b32 s96, 0x05040100"); a("s_mov_b32 s97, 0x07060302")
    C = lambda k: PKC(CS[k])
    for m in range(4):
        if m % 2 == 0: a(f"s_waitcnt vmcnt({10 - 5*m})")
        g = [TP + 2 * i for i in range(5)]; E1, O1, Eh, Oh, E2, O2 = [TP + 10 + 2 * i for i in range(6)]
        for i in range(5):
            a(f"v_lshlrev_b32 v{g[i]}, 16, v{WR+m*5+i}"); a(f"v_and_b32 v{g[i]+1}, s{sMASK}, v{WR+m*5+i}")
        W = [RS + 12 * (m & 1) + 2 * k for k in range(6)]
        h1 = "op_sel_hi:[1,0,1]"; ng = " neg_lo:[0,0,1] neg_hi:[0,0,1]"
        a(f"v_pk_add_f32 {P2(E1)}, {P2(g[0])}, {P2(g[2])}"); a(f"v_pk_add_f32 {P2(O1)}, {P2(g[1])}, {P2(g[3])}")
        a(f"v_pk_fma_f32 {P2(Eh)}, {P2(g[2])}, {C('q')}, {P2(g[0])} {h1}"); a(f"v_pk_fma_f32 {P2(Oh)}, {P2(g[3])}, {C('q')}, {P2(g[1])} {h1}")
        a(f"v_pk_fma_f32 {P2(E2)}, {P2(g[2])}, 4.0, {P2(g[0])} {h1}"); a(f"v_pk_fma_f32 {P2(O2)}, {P2(g[3])}, 4.0, {P2(g[1])} {h1}")
        a(f"v_pk_add_f32 {P2(E1)}, {P2(E1)}, {P2(g[4])}"); a(f"v_pk_mul_f32 {P2(O1)}, {P2(O1)}, {C('m6')} op_sel_hi:[1,0]")
        a(f"v_pk_fma_f32 {P2(Eh)}, {P2(g[4])}, {C('s16')}, {P2(Eh)} {h1}"); a(f"v_pk_mul_f32 {P2(Oh)}, {P2(Oh)}, {C('f23')} op_sel_hi:[1,0]")
        a(f"v_pk_fma_f32 {P2(E2)}, {P2(g[4])}, {C('x16')}, {P2(E2)} {h1}"); a(f"v_pk_mul_f32 {P2(O2)}, {P2(O2)}, {C('f215')} op_sel_hi:[1,0]")
        for k, (E, O, c) in enumerate(((E1, O1, 'm6'), (Eh, Oh, 'f43'), (E2, O2, 'f15'))):
            a(f"v_pk_fma_f32 {P2(W[2*k])}, {P2(E)}, {C(c)}, {P2(O)} {h1}"); a(f"v_pk_fma_f32 {P2(W[2*k+1])}, {P2(E)}, {C(c)}, {P2(O)} {h1}{ng}")
        if m & 1:
            for col in range(2):
                for k in range(6): a(f"v_cvt_pk_bf16_f32 v{OUT+(k*2+col)*2+m//2}, v{RS+2*k+col}, v{RS+12+2*k+col}")
                for k, i in ((6, 0), (7, 4)): a(f"v_perm_b32 v{OUT+(k*2+col)*2+m//2}, v{WR+m*5+i}, v{WR+(m-1)*5+i}, s{96+col}")
    for k in range(8):
        for col in range(2):
            q = OUT + (k * 2 + col) * 2
            a(f"buffer_store_dwordx2 v[{q}:{q+1}], v{p[2]}, s[{S_WO}:{S_WO+3}], s{48+k} offen offset:{col*1024}")
    a("s_waitcnt vmcnt(0)"); a("WP_END:"); a("s_endpgm")
    out = []; emit(out, a.L); return out

def gen_main(o):
    K = NAME + "_kernel"
    a = Em()
    a(f".globl {K}"); a(".p2align 8"); a(f".type {K},@function"); a(K + ":")
    a("s_cmp_ge_u32 s2, 256"); a("s_cbranch_scc1 L_END")
    a("s_load_dwordx8 s[4:11], s[0:1], 0"); a("s_load_dwordx2 s[12:13], s[0:1], 32")
    if o.get("trace"): a("s_memtime s[86:87]"); a("s_memrealtime s[88:89]")
    a("v_lshrrev_b32 v1, 6, v0"); a(f"v_and_b32 v{vLANE}, 63, v0"); a("s_nop 0"); a(f"v_readfirstlane_b32 s{sWAVE}, v1")
    a("s_and_b32 s80, s2, 7"); a("s_lshr_b32 s81, s2, 3"); a("s_and_b32 s82, s80, 1"); a("s_lshl_b32 s82, s82, 1")
    a(f"s_and_b32 s{sET}, s81, 1"); a(f"s_add_u32 s{sET}, s{sET}, s82")
    a("s_lshr_b32 s80, s80, 1"); a("s_lshr_b32 s81, s81, 1"); a("s_mul_i32 s82, s80, 31")
    a("s_cmp_eq_u32 s80, 0"); a("s_cselect_b32 s83, 0, 1"); a("s_add_u32 s82, s82, s83"); a("s_add_u32 s15, s82, s81")
    a("s_sub_u32 s83, 16, s83"); a("s_cmp_lt_u32 s81, s83")
    a(f"s_cselect_b32 s{sNT}, 2, 1"); a("s_cselect_b32 s81, 16, 0"); a("s_add_u32 s14, s15, s81")
    for k in range(10): a(f"s_mov_b32 s{sROW+k}, {k*4096}")
    a(f"s_mov_b32 s{sM768}, -768"); a(f"s_mov_b32 s{s256}, 256"); a(f"s_mov_b32 s{s2048}, 2048")
    tile_setup_x(a, 15, vXM, vXH)
    a("s_waitcnt lgkmcnt(0)")
    a(f"s_sub_u32 s{S_X}, s4, 8192"); a(f"s_subb_u32 s{S_X+1}, s5, 0"); a(f"s_and_b32 s{S_X+1}, s{S_X+1}, 0xffff")
    a(f"s_mov_b32 s{S_X+2}, {32768000+8192}"); a(f"s_mov_b32 s{S_X+3}, 0x00020000")
    for k in range(18): a.L.append(xl_own(1, k, dst=ACCV + 4 * k, tag=("X0", k)))
    a(f"v_lshlrev_b32 v{vWOFF}, 4, v{vLANE}")
    a(f"s_lshl_b32 s{sT0}, s{sET}, 2"); a(f"s_and_b32 s{sT1}, s{sWAVE}, {o.get('wshare', 3)}"); a(f"s_add_u32 s{sT0}, s{sT0}, s{sT1}"); a(f"s_lshl_b32 s{sT0}, s{sT0}, 19")
    a(f"s_add_u32 s{S_W}, s12, s{sT0}"); a(f"s_addc_u32 s{S_W+1}, s13, 0"); a(f"s_and_b32 s{S_W+1}, s{S_W+1}, 0xffff")
    a(f"s_mov_b32 s{S_W+2}, 32768"); a(f"s_mov_b32 s{S_W+3}, 0x00020000")
    early = o.get("wearly", 2)
    for n in range(early):
        for eb in range(4): a.L.append(wload(n, eb))
    a(f"s_mov_b32 s{S_O}, s8"); a(f"s_and_b32 s{S_O+1}, s9, 0xffff"); a(f"s_mov_b32 s{S_O+2}, 32768000"); a(f"s_mov_b32 s{S_O+3}, 0x00020000")
    l2e = math.log2(math.e)
    for n, sc in enumerate((1, 1 / 3, 2 / 3)):
        a(f"s_mov_b32 s{sC+4*n}, {hx(2*l2e*sc)}"); a(f"s_mov_b32 s{sC+4*n+2}, {hx(-l2e*sc)}")
    for r, v in ((sHALF, 0.5), (sM4, -4.0), (sP6, 1 / 6), (sP43, 4 / 3), (sK425, -4.25), (sK5, -5.0), (sK525, 5.25), (sK125, -1.25), (sKQ, 0.25), (sCL, 40.0)):
        a(f"s_mov_b32 s{r}, {hx(v)}")
    a(f"s_mov_b32 s{sMASK}, 0xffff0000"); a(f"s_mov_b32 s{sWNEG}, {-15*32768}"); a(f"s_mov_b32 s{sUN}, 0")
    tile_setup_x(a, 14, vXMn, vXHn)
    G.tile_setup_o(a, 15, vOUT); G.tile_setup_o(a, 14, vOUT2)
    t = POOL
    a(f"s_lshl_b32 s{sT0}, s14, 8"); a(f"v_and_b32 v{t[0]}, 15, v{vLANE}"); a(f"v_lshlrev_b32 v{t[1]}, 4, v{t[0]}"); a(f"v_add_u32 v{t[1]}, s{sT0}, v{t[1]}")
    G.rowbytes(a, t[1], t[2], t[3])
    a(f"s_lshl_b32 s{sT0}, s{sWAVE}, 13"); a(f"s_lshl_b32 s{sT1}, s{sET}, 8"); a(f"s_add_u32 s{sT0}, s{sT0}, s{sT1}"); a(f"s_add_u32 s{sT0}, s{sT0}, 8192")
    a(f"v_lshrrev_b32 v{t[0]}, 4, v{vLANE}"); a(f"v_lshlrev_b32 v{t[0]}, 7, v{t[0]}"); a(f"v_add3_u32 v{vPF}, v{t[2]}, v{t[0]}, s{sT0}")
    a(f"v_mov_b32 v{t[0]}, 0x70000000"); a(f"v_cmp_gt_u32 vcc, 32, v{vLANE}"); a("s_nop 1"); a(f"v_cndmask_b32 v{vPF}, v{t[0]}, v{vPF}, vcc")
    a(f"s_lshr_b32 s{sT0}, s{sWAVE}, 1"); a(f"s_lshl_b32 s{sT0}, s{sT0}, 15"); a(f"s_and_b32 s{sT1}, s{sWAVE}, 1"); a(f"s_lshl_b32 s{sT1}, s{sT1}, 9")
    a(f"s_add_u32 s{sT0}, s{sT0}, s{sT1}")
    a(f"v_bfe_u32 v{t[0]}, v{vLANE}, 2, 1"); a(f"v_lshlrev_b32 v{t[0]}, 14, v{t[0]}")
    a(f"v_lshrrev_b32 v{t[1]}, 3, v{vLANE}"); a(f"v_lshl_add_u32 v{t[0]}, v{t[1]}, 6, v{t[0]}")
    a(f"v_and_b32 v{t[1]}, 3, v{vLANE}"); a(f"v_lshl_add_u32 v{t[0]}, v{t[1]}, 4, v{t[0]}"); a(f"v_add_u32 v{vTW}, s{sT0}, v{t[0]}")
    a(f"v_and_b32 v{t[0]}, 15, v{vLANE}"); a(f"v_lshrrev_b32 v{t[1]}, 3, v{t[0]}"); a(f"v_mul_u32_u24 v{t[1]}, 3, v{t[1]}")
    a(f"v_lshrrev_b32 v{t[2]}, 4, v{vLANE}"); a(f"v_xor_b32 v{t[1]}, v{t[1]}, v{t[2]}")
    a(f"v_lshlrev_b32 v{t[0]}, 2, v{t[0]}"); a(f"v_add_u32 v{t[0]}, v{t[0]}, v{t[1]}"); a(f"v_lshlrev_b32 v{t[0]}, 4, v{t[0]}")
    a(f"v_xor_b32 v{vTR}, 0x10000, v{t[0]}")
    TRC = lambda: []
    if o.get("trace"):
        a("s_add_u32 s92, s12, 0x1000000"); a("s_addc_u32 s93, s13, 0"); a("s_and_b32 s93, s93, 0xffff")
        a("s_mov_b32 s94, 0x100000"); a("s_mov_b32 s95, 0x00020000")
        a("s_lshl_b32 s90, s2, 2"); a(f"s_add_u32 s90, s90, s{sWAVE}"); a("s_lshl_b32 s90, s90, 9"); a("v_mov_b32 v0, 0")
        TRC = lambda: [I("s_waitcnt lgkmcnt(0)"), I(f"v_mov_b32 v{OUTQ}, s86"), I(f"v_mov_b32 v{OUTQ+1}, s88"),
                       I(f"buffer_store_dwordx2 v[{OUTQ}:{OUTQ+1}], v0, s[92:95], s90 offen", "vm"), I("s_add_u32 s90, s90, 8"),
                       I("s_memtime s[86:87]"), I("s_memrealtime s[88:89]")]
    rest = [i for k in range(NPRE()) for i in xl_next(k)] + [wload(n, eb) for n in range(early, 7) for eb in range(4)]
    late = [switch_ops()] + [rest[i * len(rest) // 4:(i + 1) * len(rest) // 4] for i in range(4)]
    unit0_special(a, late)
    a(f"s_mov_b32 s{sP01}, {hx(0.1)}"); a(f"s_mov_b32 s{sP02}, {hx(0.2)}")
    a.L += bar_ops() + [tread(f) for f in range(NTR)]
    a("s_nop 1")
    pro = a.L
    Bf, B1, B2 = TRC() + body(1, True, o), TRC() + body(1, False, o), TRC() + body(2, False, o)
    MID, EP = mid(o), epilogue(o)
    seq = list(pro)
    for tile in range(3):
        for s in range(8):
            seq += Bf if s == 0 else (B2 if 3 <= s <= 6 else B1)
            if s == 3: seq += MID
            if s == 7: seq += EP
    resolve(seq, {"vm": None, "lg": None})
    out = []
    emit(out, pro)
    out += ["L_TILE:", f" s_mov_b32 s{sSIG}, 0", f" s_cmp_eq_u32 s{sNT}, 2", f" s_cselect_b32 s{sPFO}, 0, 0x70000000"]
    emit(out, Bf)
    out += [f" s_mov_b32 s{sSIG}, 1", " s_branch L_B1", ".p2align 6", "L_B2:"]
    emit(out, B2)
    out += [f" s_add_u32 s{sSIG}, s{sSIG}, 1", f" s_cmp_eq_u32 s{sSIG}, 7", " s_cbranch_scc1 L_B1", f" s_cmp_lg_u32 s{sSIG}, 4", " s_cbranch_scc1 L_B2"]
    emit(out, MID)
    out += [" s_branch L_B2", ".p2align 6", "L_B1:"]
    emit(out, B1)
    out += [f" s_add_u32 s{sSIG}, s{sSIG}, 1", f" s_cmp_eq_u32 s{sSIG}, 3", " s_cbranch_scc1 L_B2", f" s_cmp_lg_u32 s{sSIG}, 8", " s_cbranch_scc1 L_B1"]
    emit(out, EP)
    out += [f" s_sub_u32 s{sNT}, s{sNT}, 1", f" s_cmp_lg_u32 s{sNT}, 0", " s_cbranch_scc1 L_TILE", " s_waitcnt vmcnt(0) lgkmcnt(0)"]
    if o.get("trace"): emit(out, TRC() + TRC()[:4] + [I("s_waitcnt vmcnt(0)")])
    out += ["L_END:", " s_endpgm"]
    if o.get("haz"):
        import hazchk
        lin = []; emit(lin, seq[:30000]); print("hazards", hazchk.check(lin), "pool hi", unit_stream(1)[1], unit_stream(2)[1], "NVG", NVG, "ACCV", ACCV)
    return out

def main():
    o = {}
    for s in sys.argv[2:]:
        k, _, v = s.partition("=")
        o[k] = eval(v) if v else 1
    CW.update(o.get("cw", {})); CFG.update(o.get("cfg", {}))
    layout()
    out = [HEADER, "; @launch kernel=wprep_kernel grid=(256,1,1) block=(256,1,1) lds=0",
           f"; @launch kernel={NAME}_kernel grid=(256,1,1) block=(256,1,1) lds={LDS_BYTES}",
           '.amdgcn_target "amdgcn-amd-amdhsa--gfx950"', ".text"]
    out += gen_main(o)
    out += wprep_kernel_text()
    out.append('.section .rodata,"a"')
    out += kd(NAME + "_kernel", 512, 102, 256) + kd("wprep_kernel", 112, 102, 112)
    open(sys.argv[1], "w").write("\n".join(out) + "\n")

if __name__ == "__main__":
    main()
```

```python
import sys, math
sys.path.insert(0, "tools")
import gen3 as G
from gen3 import I, icost, resolve, emit, hx, R, P2, NAME, kd, Pool, CW

HEADER = """; Kernarg layout for this problem (40 bytes, ptrs only, base s[0:1]):
; Launch 2: persistent kernel: input transform (VALU) -> LDS -> MFMA, output transform, tanh*sigmoid."""
WSLICE = 2 * 16 * 16 * 1024
LDS_BYTES = 131072
S_X, S_W, S_O = 16, 20, 24
sWAVE, sET, sNT, sSIG, sUN, sXO = 28, 29, 30, 31, 32, 33
sMASK, sCL, sWI, sWIH, sDX = 34, 35, 36, 37, 38
sK425, sK5, sK525, sK125, sKQ = 39, 40, 41, 42, 43
sT0, sT1, sT2 = 44, 45, 46
sM768, sROW, s256, s2048, sWNEG = 47, 48, 58, 59, 84
sC = 60
sHALF, sP01, sP02, sM4, sP6, sP43 = 72, 74, 76, 78, 80, 82
sPDG, sPPART = 91, 92
sPFO = 85
vPF, vJ = 108, 109
S_WI, S_WO = 64, 68
vWOFF, vXM, vXH, vX2, vXMn, vXHn, vTR, vTW, vOUT, vOUT2 = 1, 2, 3, 4, 5, 6, 7, 8, 9, 10
vLANE = 11
CFG = dict(NOUTQ=4, NPOOL=40, NRAW=10, NT=4)
def layout():
    global OUTQ, POOL, FREE, NFREE, RAWB, NRAW, ACCV, NVG, AW, NTR
    OUTQ = 12; n = OUTQ + 4 * CFG["NOUTQ"]
    POOL = list(range(n, n + CFG["NPOOL"])); n += CFG["NPOOL"]
    FREE = 12; NFREE = n - 12
    RAWB = n; NRAW = CFG["NRAW"]; n += 4 * NRAW
    NVG = (256 - n) // 16; ACCV = 256 - 16 * NVG
    AW = 16 * (16 - NVG); NTR = CFG["NT"]
    assert AW + 128 + 4 * NTR <= 256, (AW, NVG)
    for k in ("sWAVE", "sET", "sT0", "sT1", "sT2", "vLANE", "POOL"): setattr(G, k, globals()[k])
def acc(jq, kk, eb):
    g = jq * 4 + eb
    return ("v", ACCV + g * 16 + kk * 4) if g < NVG else ("a", (g - NVG) * 16 + kk * 4)
def Wr(n, eb): return R("a", AW + ((n % 8) * 4 + eb) * 4)
def Tr(s): return R("a", AW + 128 + s * 4)
def raw(s): return RAWB + 4 * s
def urows(typ): return list(range(1, 19)) if typ == 1 else list(range(20))
NPRE = lambda: min(NRAW, 10)

def xl_own(typ, k, dst=None, tag=None):
    row = urows(typ)[k]; r = raw(k % NRAW) if dst is None else dst
    return I(f"buffer_load_dwordx4 v[{r}:{r+3}], v{vXH if row < 4 else vXM}, s[{S_X}:{S_X+3}], s{sROW+row//2} offen offset:{(row&1)*2048}",
             "vm", ("X", k % NRAW) if tag is None else tag)
def xl_next(k):
    r = raw(k); va = vXH if k < 3 else (vX2 if k == 3 else vXM)
    L = [I(f"buffer_load_dwordx4 v[{r}:{r+3}], v{va}, s[{S_X}:{S_X+3}], s{sXO} offen offset:{(k&1)*2048}", "vm", ("X", k))]
    if k & 1: L.append(I(f"s_add_u32 s{sXO}, s{sXO}, 4096"))
    return L
_l = [0]
def switch_ops():
    _l[0] += 1; L = f"LS{_l[0]}"
    return [I(s) for s in (
        f"s_add_u32 s{sUN}, s{sUN}, 1", f"s_and_b32 s{sT0}, s{sUN}, 3", f"s_cmp_eq_u32 s{sT0}, 0",
        f"s_cselect_b32 s{sDX}, s{sM768}, s{s256}",
        f"v_add_u32 v{vXM}, s{sDX}, v{vXM}", f"v_add_u32 v{vXH}, s{sDX}, v{vXH}",
        f"s_cmp_lg_u32 s{sUN}, 8", f"s_cbranch_scc1 {L}_a",
        f"s_mov_b32 s{sUN}, 0", f"v_mov_b32 v{vXM}, v{vXMn}", f"v_mov_b32 v{vXH}, v{vXHn}", f"{L}_a:",
        f"s_cmp_lt_u32 s{sUN}, 4", f"s_cselect_b32 s{sXO}, s{s2048}, 0",
        f"v_mov_b32 v{vX2}, v{vXM}", f"s_cbranch_scc1 {L}_b", f"v_mov_b32 v{vX2}, v{vXH}", f"{L}_b:")]

def unit_stream(typ):
    S = []; pool = Pool(POOL); nrows = len(urows(typ)); pend = []; hi = [0]
    def op(s, kind=None, tag=None):
        S.append([I(s, kind, tag, needs=pend[:])]); pend.clear()
    def get(n=1):
        r = [pool.get() for _ in range(n)]; hi[0] = max(hi[0], len(POOL) - len(pool.free)); return r
    freed = set(); ld = [NPRE()]
    def lastocc(slot, before):
        c = [r for r in range(before) if r % NRAW == slot]
        return max(c) if c else None
    def consumed(*ks):
        freed.update(ks)
        while True:
            n = ld[0]
            if n < nrows:
                p = lastocc(n % NRAW, n)
                if p is not None and p not in freed: break
                S.append([xl_own(typ, n)])
            else:
                kk = n - nrows
                if kk >= NPRE() or lastocc(kk, nrows) not in freed: break
                if kk == 0: S.append(switch_ops())
                S.append(xl_next(kk))
            ld[0] += 1
    consumed()
    def unp(k, dw):
        d = get(2); s = raw(k % NRAW) + dw
        op(f"v_lshlrev_b32 v{d[0]}, 16, v{s}"); op(f"v_and_b32 v{d[1]}, s{sMASK}, v{s}")
        return d
    def need(*ks): pend.extend(("vm", ("X", k % NRAW)) for k in ks)
    def each(f):
        for h in range(2): op(f(h))
    pendw = []
    def tw(jq, flush=False):
        for kk in range(4):
            q = OUTQ + 4 * (kk % CFG["NOUTQ"])
            pendw.append(f"ds_write_b128 v{vTW}, v[{q}:{q+3}] offset:{(kk*4+jq)*1024}")
        if flush or not CFG.get("spreadw", 1):
            while pendw: S.append([I(pendw.pop(0), "lg", "TW")])
    _op = op; cnt = [0]
    def op(s, kind=None, tag=None):
        if pendw and s.startswith("v_cvt"):
            while pendw: S.append([I(pendw.pop(0), "lg", "TW")])
        _op(s, kind, tag); cnt[0] += 1
        if pendw and cnt[0] % CFG.get("wsp", 7) == 0: S.append([I(pendw.pop(0), "lg", "TW")])
    cv = lambda kk, dw, r: op(f"v_cvt_pk_bf16_f32 v{OUTQ+4*kk+dw}, v{r[0]}, v{r[1]}")
    if typ == 1:
        c1 = [None] * 4; c2 = [None] * 4
        need(0, 1)
        for dw in range(4):
            c1[dw] = unp(0, dw); c2[dw] = unp(1, dw)
        consumed(0, 1)
        for jq in range(4):
            k = 2 + 4 * jq
            need(k, k + 1, k + 2, k + 3)
            for dw in range(4):
                d3, d4, d5, d6 = [unp(k + i, dw) for i in range(4)]
                if dw == 3: consumed(k, k + 1, k + 2, k + 3)
                d1, d2 = c1[dw], c2[dw]
                e1 = get(2); o1 = get(2)
                each(lambda h: f"v_fma_f32 v{e1[h]}, s{sK425}, v{d4[h]}, v{d6[h]}")
                each(lambda h: f"v_fma_f32 v{o1[h]}, s{sK425}, v{d3[h]}, v{d5[h]}")
                each(lambda h: f"v_fma_f32 v{d4[h]}, s{sK5}, v{d4[h]}, v{d6[h]}")
                each(lambda h: f"v_fma_f32 v{d3[h]}, s{sK5}, v{d3[h]}, v{d5[h]}")
                each(lambda h: f"v_add_f32 v{e1[h]}, v{e1[h]}, v{d2[h]}")
                each(lambda h: f"v_add_f32 v{o1[h]}, v{o1[h]}, v{d1[h]}")
                each(lambda h: f"v_fmac_f32 v{d4[h]}, 4.0, v{d2[h]}")
                each(lambda h: f"v_fmac_f32 v{d3[h]}, 4.0, v{d1[h]}")
                each(lambda h: f"v_add_f32 v{d1[h]}, v{e1[h]}, v{o1[h]}")
                each(lambda h: f"v_sub_f32 v{e1[h]}, v{e1[h]}, v{o1[h]}")
                each(lambda h: f"v_fma_f32 v{d2[h]}, 0.5, v{d3[h]}, v{d4[h]}")
                each(lambda h: f"v_fma_f32 v{d4[h]}, -0.5, v{d3[h]}, v{d4[h]}")
                cv(0, dw, d1); cv(1, dw, e1); cv(2, dw, d2); cv(3, dw, d4)
                pool.put(*d1, *d2, *e1, *o1, *d3, *d4)
                c1[dw], c2[dw] = d5, d6
            tw(jq, jq == 3)
        for dw in range(4): pool.put(*c1[dw], *c2[dw])
    else:
        A0 = [None] * 4; A7 = [None] * 4; C2 = [None] * 4; B3 = [None] * 4
        def carries(dw, d4, d5, d6, d7):
            each(lambda h: f"v_fmac_f32 v{d5[h]}, s{sK5}, v{d7[h]}")
            each(lambda h: f"v_fma_f32 v{d4[h]}, -s{sK525}, v{d6[h]}, v{d4[h]}")
            each(lambda h: f"v_fma_f32 v{d7[h]}, s{sKQ}, v{d7[h]}, -v{d5[h]}")
            A0[dw], A7[dw], C2[dw], B3[dw] = d4, d7, d6, d5
        need(0, 1, 2, 3)
        for dw in range(4):
            d = [unp(i, dw) for i in range(4)]
            if dw == 3: consumed(0, 1, 2, 3)
            carries(dw, *d)
        for jq in range(4):
            k = 4 + 4 * jq
            need(k, k + 1, k + 2, k + 3)
            for dw in range(4):
                d4, d5, d6, d7 = [unp(k + i, dw) for i in range(4)]
                if dw == 3: consumed(k, k + 1, k + 2, k + 3)
                a0, a7, c2, b3 = A0[dw], A7[dw], C2[dw], B3[dw]
                each(lambda h: f"v_fma_f32 v{c2[h]}, s{sKQ}, v{c2[h]}, v{d6[h]}")
                each(lambda h: f"v_fma_f32 v{b3[h]}, s{sKQ}, v{b3[h]}, v{d5[h]}")
                each(lambda h: f"v_fmac_f32 v{a0[h]}, s{sK525}, v{d4[h]}")
                each(lambda h: f"v_fma_f32 v{a7[h]}, -s{sK525}, v{d5[h]}, v{a7[h]}")
                each(lambda h: f"v_fmac_f32 v{c2[h]}, s{sK125}, v{d4[h]}")
                each(lambda h: f"v_sub_f32 v{a0[h]}, v{a0[h]}, v{d6[h]}")
                each(lambda h: f"v_add_f32 v{a7[h]}, v{a7[h]}, v{d7[h]}")
                each(lambda h: f"v_fma_f32 v{b3[h]}, 2.0, v{b3[h]}, v{c2[h]}")
                cv(2, dw, a0); cv(3, dw, a7)
                each(lambda h: f"v_fma_f32 v{c2[h]}, 2.0, v{c2[h]}, -v{b3[h]}")
                cv(0, dw, b3); cv(1, dw, c2)
                pool.put(*a0, *a7, *c2, *b3)
                if jq < 3: carries(dw, d4, d5, d6, d7)
                else: pool.put(*d4, *d5, *d6, *d7)
            tw(jq, jq == 3)
    assert len(pool.free) == len(POOL)
    return S, hi[0]

def tread(f):
    f %= 64
    return I(f"ds_read_b128 {Tr(f % NTR)}, v{vTR} offset:{f*1024}", "lg", ("T", f % NTR), cls="T")
def wload(n, eb):
    return I(f"buffer_load_dwordx4 {Wr(n, eb)}, v{vWOFF}, s[{S_W}:{S_W+3}], s{sROW + n % 8} offen offset:{eb*1024}", "vm", ("W", n % 8, eb), cls="W")
def bar_ops():
    return [I("s_barrier", needs=[("lg", "TW")]), I(f"v_xor_b32 v{vTR}, 0x10000, v{vTR}"), I(f"v_xor_b32 v{vTW}, 0x10000, v{vTW}")]

def body(typ, first, o):
    BARM = 256 - 4 * NTR + 3
    fixed = [[] for _ in range(256)]
    fixed[BARM] += bar_ops()
    for f in range(64): fixed[((f - NTR) * 4 + 3) % 256].append(tread(f))
    wp = o.get("wpos", (1, 5, 9, 13))
    for n in range(16):
        for eb in range(4):
            m = (16 * n + 16 + wp[eb]) % 256
            if n % 8 == 0 and eb == 0:
                if n == 8:
                    fixed[m] += [I(f"s_cmp_eq_u32 s{sSIG}, 7"), I(f"s_cselect_b32 s{sWI}, s{sWNEG}, s{sROW+8}"), I(f"s_cselect_b32 s{sWIH}, -1, 0"),
                                 I(f"s_add_u32 s{S_W}, s{S_W}, s{sWI}"), I(f"s_addc_u32 s{S_W+1}, s{S_W+1}, s{sWIH}")]
                else:
                    fixed[m] += [I(f"s_add_u32 s{S_W}, s{S_W}, 32768"), I(f"s_addc_u32 s{S_W+1}, s{S_W+1}, 0")]
            fixed[m].append(wload(n, eb))
    if typ == 2 and o.get("pf", 1):
        fixed[o.get("pfm", 62)] += [I(f"buffer_load_dword v{vJ}, v{vPF}, s[{S_X}:{S_X+3}], s{sPFO} offen", "vm"), I(f"s_add_u32 s{sPFO}, s{sPFO}, 2048")]
    S, _ = unit_stream(typ)
    c = lambda g: sum(icost(i) for i in g if not i.s.endswith(":"))
    load = [c(fixed[m]) for m in range(256)]
    st, en = 0, BARM - 1 - o.get("endm", 2)
    tot = sum(map(c, S)); lo, hi = 0.0, 100.0
    for _ in range(50):
        L = (lo + hi) / 2
        if sum(max(0.0, L - load[m]) for m in range(st, en + 1)) < tot: lo = L
        else: hi = L
    out = []; k = 0; done = 0.0; tgt = 0.0
    XG = o.get("xg", 8); xq = []; lastx = -99
    isx = lambda g: g[0].s.startswith("buffer_load") or g[0].s.startswith(f"s_add_u32 s{sUN}")
    for m in range(256):
        f, eb = m >> 2, m & 3
        cp, kk, jq = f >> 4, (f >> 2) & 3, f & 3
        n = f >> 2
        t, b = acc(jq, kk, eb)
        needs = []
        if eb == 0: needs.append(("lg", ("T", f % NTR)))
        if jq == 0 and eb == 0: needs.append(("vm", ("W", n % 8, 3)))
        out.append(I(f"v_mfma_f32_16x16x32_bf16 {R(t, b)}, {Wr(n, eb)}, {Tr(f % NTR)}, {'0' if first and cp == 0 else R(t, b)}", needs=needs))
        out += fixed[m]
        if xq and ((m % 4 == o.get("xph", 3) and m - lastx >= XG) or m == 255):
            out += xq.pop(0); lastx = m
            if m == 255:
                while xq: out += xq.pop(0)
        if m <= en:
            tgt += max(0.0, hi - load[m])
            while k < len(S) and (done + c(S[k]) / 2 <= tgt or m == en):
                if XG and isx(S[k]): xq.append(S[k])
                else: out += S[k]
                done += c(S[k]); k += 1
    if o.get("drop"):
        for i in out:
            if any(i.s.startswith(d) for d in o["drop"]): i.s = "NOP"
    return out

PKC = lambda r: f"s[{r}:{r+1}]"
def mid(o):
    L = [I("s_nop 7")]; a = lambda s: L.append(I(s))
    def tr(groups):
        W = [(b + x, b + 4 + x, b + 8 + x, b + 12 + x, t + x, t + 4 + x) for b, t in groups for x in (0, 2)]
        for z0, z1, z2, z3, t0, t1 in W: a(f"v_pk_add_f32 {P2(t0)}, {P2(z0)}, {P2(z1)}")
        for z0, z1, z2, z3, t0, t1 in W: a(f"v_pk_add_f32 {P2(t1)}, {P2(z2)}, {P2(z3)}")
        for z0, z1, z2, z3, t0, t1 in W: a(f"v_pk_add_f32 {P2(z0)}, {P2(z0)}, {P2(z1)} neg_lo:[0,1] neg_hi:[0,1]")
        for z0, z1, z2, z3, t0, t1 in W: a(f"v_pk_add_f32 {P2(z1)}, {P2(z2)}, {P2(z3)} neg_lo:[0,1] neg_hi:[0,1]")
        for z0, z1, z2, z3, t0, t1 in W: a(f"v_pk_fma_f32 {P2(z2)}, {P2(t1)}, {PKC(sHALF)}, {P2(t0)} op_sel_hi:[1,0,1]")
        for z0, z1, z2, z3, t0, t1 in W: a(f"v_pk_fma_f32 {P2(z3)}, {P2(z0)}, {PKC(sM4)}, {P2(z1)} op_sel_hi:[1,0,1] neg_lo:[0,0,1] neg_hi:[0,0,1]")
        for z0, z1, z2, z3, t0, t1 in W: a(f"v_pk_fma_f32 {P2(t0)}, {P2(t1)}, {PKC(sP01)}, {P2(t0)} op_sel_hi:[1,0,1]")
        for z0, z1, z2, z3, t0, t1 in W: a(f"v_pk_fma_f32 {P2(t1)}, {P2(z1)}, {PKC(sP02)}, {P2(z0)} op_sel_hi:[1,0,1]")
        for z0, z1, z2, z3, t0, t1 in W: a(f"v_pk_fma_f32 {P2(z0)}, {P2(t1)}, 2.0, {P2(t0)} op_sel_hi:[1,0,1]")
        for z0, z1, z2, z3, t0, t1 in W: a(f"v_pk_fma_f32 {P2(z1)}, {P2(t1)}, -2.0, {P2(t0)} op_sel_hi:[1,0,1]")
    vg = [ACCV + 16 * g for g in range(NVG)]
    for n in range(0, NVG, 3): tr([(b, FREE + 8 * i) for i, b in enumerate(vg[n:n + 3])])
    ag = [16 * g for g in range(16 - NVG)]
    for n in range(0, len(ag), 2):
        grp = ag[n:n + 2]
        for i, b in enumerate(grp):
            for x in range(16): a(f"v_accvgpr_read_b32 v{FREE+24*i+x}, a{b+x}")
        tr([(FREE + 24 * i, FREE + 24 * i + 16) for i in range(len(grp))])
        for i, b in enumerate(grp):
            for x in range(16): a(f"v_accvgpr_write_b32 a{b+x}, v{FREE+24*i+x}")
    a("s_nop 1")
    return L

def epilogue(o):
    L = [I("s_nop 7")]; a = lambda s, kind=None: L.append(I(s, kind))
    for jq in range(4):
        base = []
        for eb in range(4):
            t, b = acc(jq, 0, eb)
            if t == "a":
                nb = acc(jq - 2, 0, eb)[1]
                for x in range(16): a(f"v_accvgpr_read_b32 v{nb+x}, a{b+x}")
                b = nb
            base.append(b)
        W = [(b + x, b + 4 + x, b + 8 + x, b + 12 + x) for b in base for x in (0, 2)]
        for z0, z1, z2, z3 in W: a(f"v_pk_add_f32 {P2(z0)}, {P2(z0)}, {P2(z1)}")
        for z0, z1, z2, z3 in W: a(f"v_pk_fma_f32 {P2(z1)}, {P2(z1)}, -2.0, {P2(z0)} op_sel_hi:[1,0,1]")
        for z0, z1, z2, z3 in W: a(f"v_pk_fma_f32 {P2(z2)}, {P2(z0)}, {PKC(sP6)}, {P2(z2)} op_sel_hi:[1,0,1]")
        for z0, z1, z2, z3 in W: a(f"v_pk_fma_f32 {P2(z3)}, {P2(z1)}, {PKC(sP43)}, {P2(z3)} op_sel_hi:[1,0,1]")
        for oidx, (kk, cs) in enumerate(((2, 0), (1, 1), (0, 2), (3, 0))):
            j = 4 * jq + oidx
            regs = [b + 4 * kk for b in base]
            prs = [(regs[h] + 2 * p, regs[2 + h] + 2 * p) for h in range(2) for p in range(2)]
            c1, c2 = sC + 4 * cs, sC + 4 * cs + 2
            for f, g in prs: a(f"v_pk_mul_f32 {P2(f)}, {P2(f)}, {PKC(c1)} op_sel_hi:[1,0]")
            for f, g in prs: a(f"v_pk_mul_f32 {P2(g)}, {P2(g)}, {PKC(c2)} op_sel_hi:[1,0]")
            for f, g in prs: a(f"v_min_f32 v{f}, s{sCL}, v{f}"); a(f"v_min_f32 v{f+1}, s{sCL}, v{f+1}")
            for f, g in prs: a(f"v_exp_f32 v{g}, v{g}"); a(f"v_exp_f32 v{g+1}, v{g+1}")
            for f, g in prs: a(f"v_exp_f32 v{f}, v{f}"); a(f"v_exp_f32 v{f+1}, v{f+1}")
            for f, g in prs: a(f"v_pk_fma_f32 {P2(f)}, {P2(f)}, {PKC(sHALF)}, {PKC(sHALF)} op_sel_hi:[1,0,0]")
            for f, g in prs: a(f"v_pk_fma_f32 {P2(g)}, {P2(f)}, {P2(g)}, {P2(f)}")
            for f, g in prs: a(f"v_rcp_f32 v{g}, v{g}"); a(f"v_rcp_f32 v{g+1}, v{g+1}")
            a("s_nop 0")
            for f, g in prs: a(f"v_pk_fma_f32 {P2(f)}, {P2(f)}, {P2(g)}, {P2(g)} neg_lo:[0,0,1] neg_hi:[0,0,1]")
            oq = regs[2]
            for n in range(4): a(f"v_cvt_pk_bf16_f32 v{oq+n}, v{regs[0]+n}, v{regs[1]+n}")
            if not o.get("nost"): a(f"buffer_store_dwordx4 v[{oq}:{oq+3}], v{vOUT}, s[{S_O}:{S_O+3}], s{sROW + j//2} offen offset:{(j&1)*2048}{o.get('stflag', ' nt')}", "vm")
    a(f"v_mov_b32 v{vOUT}, v{vOUT2}")
    return L

class Em:
    def __init__(self): self.L = []
    def __call__(self, s, kind=None, tag=None, needs=()): self.L.append(I(s, kind, tag, needs))

def tile_setup_x(a, sTT, vxm, vxh):
    t = POOL
    a(f"s_lshl_b32 s{sT0}, s{sTT}, 8"); a(f"s_and_b32 s{sT1}, s{sWAVE}, 1"); a(f"s_lshl_b32 s{sT2}, s{sT1}, 7"); a(f"s_add_u32 s{sT0}, s{sT0}, s{sT2}")
    a(f"v_lshrrev_b32 v{t[0]}, 3, v{vLANE}"); a(f"v_lshlrev_b32 v{t[1]}, 4, v{t[0]}"); a(f"v_add_u32 v{t[1]}, s{sT0}, v{t[1]}")
    G.rowbytes(a, t[1], t[2], t[3])
    a(f"s_mul_i32 s{sT1}, s{sT1}, 3")
    a(f"v_and_b32 v{t[3]}, 7, v{vLANE}"); a(f"v_xor_b32 v{t[3]}, s{sT1}, v{t[3]}"); a(f"v_lshlrev_b32 v{t[3]}, 4, v{t[3]}")
    a(f"s_lshr_b32 s{sT1}, s{sWAVE}, 1"); a(f"s_lshl_b32 s{sT1}, s{sT1}, 7")
    a(f"v_add3_u32 v{vxm}, v{t[2]}, v{t[3]}, s{sT1}")
    a(f"v_mov_b32 v{vxh}, v{vxm}"); a(f"v_mov_b32 v{t[4]}, 0x70000000")
    for thr in (0, 8000, 16000, 24000):
        a(f"v_cmp_eq_u32 vcc, {thr}, v{t[1]}"); a("s_nop 1"); a(f"v_cndmask_b32 v{vxh}, v{vxh}, v{t[4]}, vcc")

def unit0_special(a, late):
    RB = ACCV
    pool = Pool(list(range(ACCV + 72, 256, 2)) + list(range(POOL[0], POOL[-1], 2)))
    K425, K5 = sP01, sP02
    a(f"s_mov_b32 s{K425}, {hx(-4.25)}"); a(f"s_mov_b32 s{K5}, {hx(-5.0)}")
    def unp(k, nd=()):
        d = [pool.get() for _ in range(4)]
        for x in range(4):
            a(f"v_lshlrev_b32 v{d[x]}, 16, v{RB+4*k+x}", needs=nd if x == 0 else ()); a(f"v_and_b32 v{d[x]+1}, s{sMASK}, v{RB+4*k+x}")
        return d
    pk = lambda f: [a(f(x)) for x in range(4)]
    d1 = unp(0, [("vm", ("X0", 1))]); d2 = unp(1)
    a.L += late[0]
    for jq in range(4):
        k = 2 + 4 * jq
        d3 = unp(k, [("vm", ("X0", k + 1))]); d4 = unp(k + 1); d5 = unp(k + 2, [("vm", ("X0", k + 3))]); d6 = unp(k + 3)
        a.L += late[jq + 1]
        e1 = [pool.get() for _ in range(4)]; o1 = [pool.get() for _ in range(4)]
        pk(lambda x: f"v_pk_fma_f32 {P2(e1[x])}, {P2(d4[x])}, {PKC(K425)}, {P2(d6[x])} op_sel_hi:[1,0,1]")
        pk(lambda x: f"v_pk_fma_f32 {P2(o1[x])}, {P2(d3[x])}, {PKC(K425)}, {P2(d5[x])} op_sel_hi:[1,0,1]")
        pk(lambda x: f"v_pk_fma_f32 {P2(d4[x])}, {P2(d4[x])}, {PKC(K5)}, {P2(d6[x])} op_sel_hi:[1,0,1]")
        pk(lambda x: f"v_pk_fma_f32 {P2(d3[x])}, {P2(d3[x])}, {PKC(K5)}, {P2(d5[x])} op_sel_hi:[1,0,1]")
        pk(lambda x: f"v_pk_add_f32 {P2(e1[x])}, {P2(e1[x])}, {P2(d2[x])}")
        pk(lambda x: f"v_pk_add_f32 {P2(o1[x])}, {P2(o1[x])}, {P2(d1[x])}")
        pk(lambda x: f"v_pk_fma_f32 {P2(d4[x])}, {P2(d2[x])}, 4.0, {P2(d4[x])} op_sel_hi:[1,0,1]")
        pk(lambda x: f"v_pk_fma_f32 {P2(d3[x])}, {P2(d1[x])}, 4.0, {P2(d3[x])} op_sel_hi:[1,0,1]")
        pk(lambda x: f"v_pk_add_f32 {P2(d1[x])}, {P2(e1[x])}, {P2(o1[x])}")
        pk(lambda x: f"v_pk_add_f32 {P2(e1[x])}, {P2(e1[x])}, {P2(o1[x])} neg_lo:[0,1] neg_hi:[0,1]")
        pk(lambda x: f"v_pk_fma_f32 {P2(d2[x])}, {P2(d3[x])}, 0.5, {P2(d4[x])} op_sel_hi:[1,0,1]")
        pk(lambda x: f"v_pk_fma_f32 {P2(d4[x])}, {P2(d3[x])}, -0.5, {P2(d4[x])} op_sel_hi:[1,0,1]")
        for kk, r in enumerate((d1, e1, d2, d4)):
            q = OUTQ + 4 * kk
            pk(lambda x: f"v_cvt_pk_bf16_f32 v{q+x}, v{r[x]}, v{r[x]+1}")
            a(f"ds_write_b128 v{vTW}, v[{q}:{q+3}] offset:{(kk*4+jq)*1024}", "lg", "TW")
        pool.put(*d1, *d2, *e1, *o1, *d3, *d4)
        d1, d2 = d5, d6

def wprep_kernel_text(o={}):
    a = Em(); p = [4, 5, 6, 7]
    a(".globl wprep_kernel"); a(".p2align 8"); a(".type wprep_kernel,@function"); a("wprep_kernel:")
    a("s_cmp_ge_u32 s2, 256"); a("s_cbranch_scc1 WP_END")
    a("s_load_dwordx4 s[4:7], s[0:1], 0"); a("s_load_dwordx2 s[12:13], s[0:1], 32")
    a("v_lshrrev_b32 v1, 6, v0"); a("v_and_b32 v2, 63, v0"); a("s_nop 0"); a(f"v_readfirstlane_b32 s{sPPART}, v1")
    npf = o.get("wpf", 0)
    if npf:
        a("s_and_b32 s80, s2, 7"); a("s_lshr_b32 s81, s2, 3"); a("s_and_b32 s82, s80, 1"); a("s_lshl_b32 s82, s82, 1")
        a("s_and_b32 s84, s81, 1"); a("s_add_u32 s84, s84, s82")
        a("s_lshr_b32 s80, s80, 1"); a("s_lshr_b32 s81, s81, 1"); a("s_mul_i32 s82, s80, 31")
        a("s_cmp_eq_u32 s80, 0"); a("s_cselect_b32 s83, 0, 1"); a("s_add_u32 s82, s82, s83"); a("s_add_u32 s82, s82, s81")
        a("s_lshl_b32 s82, s82, 8"); a("v_add_u32 v108, s82, v0")
        G.rowbytes(a, 108, 109, 110)
        a("s_lshl_b32 s84, s84, 7")
    a(f"s_and_b32 s{sET}, s2, 3"); a(f"s_lshr_b32 s{sPDG}, s2, 2"); a(f"s_mov_b32 s{sMASK}, 0xffff0000")
    a(f"v_lshrrev_b32 v{p[0]}, 1, v2"); a(f"v_lshlrev_b32 v{p[0]}, 2, v{p[0]}"); a(f"v_and_b32 v{p[3]}, 1, v2")
    a(f"v_lshl_add_u32 v{p[0]}, v{p[3]}, 13, v{p[0]}"); a(f"v_add_u32 v{p[1]}, 4096, v{p[0]}")
    a(f"v_lshrrev_b32 v{p[2]}, 5, v2"); a(f"v_lshlrev_b32 v{p[2]}, 19, v{p[2]}"); a(f"v_lshl_add_u32 v{p[2]}, v{p[3]}, 3, v{p[2]}")
    a(f"v_bfe_u32 v{p[3]}, v2, 1, 4"); a(f"v_lshl_add_u32 v{p[2]}, v{p[3]}, 4, v{p[2]}")
    SB = list(range(72, 80))
    a(f"s_lshr_b32 s{sT0}, s{sPPART}, 1"); a(f"s_lshl_b32 s{sT1}, s{sT0}, 10"); a(f"s_lshl_b32 s{sT2}, s{sET}, 8")
    a(f"s_add_u32 s{sT1}, s{sT1}, s{sT2}"); a(f"s_and_b32 s{sT2}, s{sPPART}, 1"); a(f"s_lshl_b32 s{sT2}, s{sT2}, 7")
    a(f"s_add_u32 s{sT1}, s{sT1}, s{sT2}"); a(f"s_lshl_b32 s{sT2}, s{sPDG}, 14"); a(f"s_add_u32 s{SB[0]}, s{sT1}, s{sT2}")
    for i in range(1, 5): a(f"s_add_u32 s{SB[i]}, s{SB[0]}, {i*1048576}")
    a("s_waitcnt lgkmcnt(0)")
    a(f"s_mov_b32 s{S_WI}, s6"); a(f"s_and_b32 s{S_WI+1}, s7, 0xffff"); a(f"s_mov_b32 s{S_WI+2}, 5242880"); a(f"s_mov_b32 s{S_WI+3}, 0x00020000")
    a(f"s_mov_b32 s{S_WO}, s12"); a(f"s_and_b32 s{S_WO+1}, s13, 0xffff"); a(f"s_mov_b32 s{S_WO+2}, {16*WSLICE}"); a(f"s_mov_b32 s{S_WO+3}, 0x00020000")
    WR = 8; TP = 28; RS = 52; OUT = 76
    for m in range(4):
        for i in range(5):
            a(f"buffer_load_dword v{WR+m*5+i}, v{p[m//2]}, s[{S_WI}:{S_WI+3}], s{SB[i]} offen offset:{(m&1)*2048}")
    if npf:
        a(f"s_mov_b32 s{S_X}, s4"); a(f"s_and_b32 s{S_X+1}, s5, 0xffff"); a(f"s_mov_b32 s{S_X+2}, 32768000"); a(f"s_mov_b32 s{S_X+3}, 0x00020000")
        for n in range(npf): a(f"buffer_load_dword v{110+n}, v109, s[{S_X}:{S_X+3}], s84 offen offset:{512*n}")
    a(f"s_lshl_b32 s{sT1}, s{sET}, 1"); a(f"s_and_b32 s{sT0}, s{sPPART}, 1"); a(f"s_add_u32 s{sT1}, s{sT1}, s{sT0}"); a(f"s_lshl_b32 s{sT1}, s{sT1}, 20")
    a(f"s_lshr_b32 s{sT0}, s{sPPART}, 1"); a(f"s_lshl_b32 s{sT0}, s{sT0}, 11"); a(f"s_add_u32 s{sT1}, s{sT1}, s{sT0}")
    a(f"s_lshr_b32 s{sT0}, s{sPDG}, 2"); a(f"s_lshl_b32 s{sT0}, s{sT0}, 14"); a(f"s_add_u32 s{sT1}, s{sT1}, s{sT0}")
    a(f"s_and_b32 s{sT0}, s{sPDG}, 3"); a(f"s_lshl_b32 s{sT0}, s{sT0}, 8"); a(f"s_add_u32 s48, s{sT1}, s{sT0}")
    for k in range(1, 8): a(f"s_add_u32 s{48+k}, s48, {(k//4)*262144 + (k%4)*4096}")
    CS = dict(q=80, s16=82, m6=84, f43=86, f23=88, f15=90, f215=92, x16=94)
    for k, v in dict(q=0.25, s16=1 / 16, m6=-1 / 6, f43=4 / 3, f23=2 / 3, f15=1 / 15, f215=2 / 15, x16=16.0).items(): a(f"s_mov_b32 s{CS[k]}, {hx(v)}")
    a("s_mov_b32 s96, 0x05040100"); a("s_mov_b32 s97, 0x07060302")
    C = lambda k: PKC(CS[k])
    for m in range(4):
        if m % 2 == 0: a(f"s_waitcnt vmcnt({10 - 5*m + npf})")
        g = [TP + 2 * i for i in range(5)]; E1, O1, Eh, Oh, E2, O2 = [TP + 10 + 2 * i for i in range(6)]
        for i in range(5):
            a(f"v_lshlrev_b32 v{g[i]}, 16, v{WR+m*5+i}"); a(f"v_and_b32 v{g[i]+1}, s{sMASK}, v{WR+m*5+i}")
        W = [RS + 12 * (m & 1) + 2 * k for k in range(6)]
        h1 = "op_sel_hi:[1,0,1]"; ng = " neg_lo:[0,0,1] neg_hi:[0,0,1]"
        a(f"v_pk_add_f32 {P2(E1)}, {P2(g[0])}, {P2(g[2])}"); a(f"v_pk_add_f32 {P2(O1)}, {P2(g[1])}, {P2(g[3])}")
        a(f"v_pk_fma_f32 {P2(Eh)}, {P2(g[2])}, {C('q')}, {P2(g[0])} {h1}"); a(f"v_pk_fma_f32 {P2(Oh)}, {P2(g[3])}, {C('q')}, {P2(g[1])} {h1}")
        a(f"v_pk_fma_f32 {P2(E2)}, {P2(g[2])}, 4.0, {P2(g[0])} {h1}"); a(f"v_pk_fma_f32 {P2(O2)}, {P2(g[3])}, 4.0, {P2(g[1])} {h1}")
        a(f"v_pk_add_f32 {P2(E1)}, {P2(E1)}, {P2(g[4])}"); a(f"v_pk_mul_f32 {P2(O1)}, {P2(O1)}, {C('m6')} op_sel_hi:[1,0]")
        a(f"v_pk_fma_f32 {P2(Eh)}, {P2(g[4])}, {C('s16')}, {P2(Eh)} {h1}"); a(f"v_pk_mul_f32 {P2(Oh)}, {P2(Oh)}, {C('f23')} op_sel_hi:[1,0]")
        a(f"v_pk_fma_f32 {P2(E2)}, {P2(g[4])}, {C('x16')}, {P2(E2)} {h1}"); a(f"v_pk_mul_f32 {P2(O2)}, {P2(O2)}, {C('f215')} op_sel_hi:[1,0]")
        for k, (E, O, c) in enumerate(((E1, O1, 'm6'), (Eh, Oh, 'f43'), (E2, O2, 'f15'))):
            a(f"v_pk_fma_f32 {P2(W[2*k])}, {P2(E)}, {C(c)}, {P2(O)} {h1}"); a(f"v_pk_fma_f32 {P2(W[2*k+1])}, {P2(E)}, {C(c)}, {P2(O)} {h1}{ng}")
        if m & 1:
            for col in range(2):
                for k in range(6): a(f"v_cvt_pk_bf16_f32 v{OUT+(k*2+col)*2+m//2}, v{RS+2*k+col}, v{RS+12+2*k+col}")
                for k, i in ((6, 0), (7, 4)): a(f"v_perm_b32 v{OUT+(k*2+col)*2+m//2}, v{WR+m*5+i}, v{WR+(m-1)*5+i}, s{96+col}")
    for k in range(8):
        for col in range(2):
            q = OUT + (k * 2 + col) * 2
            a(f"buffer_store_dwordx2 v[{q}:{q+1}], v{p[2]}, s[{S_WO}:{S_WO+3}], s{48+k} offen offset:{col*1024}")
    a("s_waitcnt vmcnt(0)"); a("WP_END:"); a("s_endpgm")
    out = []; emit(out, a.L); return out

def gen_main(o):
    K = NAME + "_kernel"
    a = Em()
    a(f".globl {K}"); a(".p2align 8"); a(f".type {K},@function"); a(K + ":")
    a("s_cmp_ge_u32 s2, 256"); a("s_cbranch_scc1 L_END")
    a("s_load_dwordx8 s[4:11], s[0:1], 0"); a("s_load_dwordx2 s[12:13], s[0:1], 32")
    if o.get("trace"): a("s_memtime s[86:87]"); a("s_memrealtime s[88:89]")
    a("v_lshrrev_b32 v1, 6, v0"); a(f"v_and_b32 v{vLANE}, 63, v0"); a("s_nop 0"); a(f"v_readfirstlane_b32 s{sWAVE}, v1")
    a("s_and_b32 s80, s2, 7"); a("s_lshr_b32 s81, s2, 3"); a("s_and_b32 s82, s80, 1"); a("s_lshl_b32 s82, s82, 1")
    a(f"s_and_b32 s{sET}, s81, 1"); a(f"s_add_u32 s{sET}, s{sET}, s82")
    a("s_lshr_b32 s80, s80, 1"); a("s_lshr_b32 s81, s81, 1"); a("s_mul_i32 s82, s80, 31")
    a("s_cmp_eq_u32 s80, 0"); a("s_cselect_b32 s83, 0, 1"); a("s_add_u32 s82, s82, s83"); a("s_add_u32 s15, s82, s81")
    a("s_sub_u32 s83, 16, s83"); a("s_cmp_lt_u32 s81, s83")
    a(f"s_cselect_b32 s{sNT}, 2, 1"); a("s_cselect_b32 s81, 16, 0"); a("s_add_u32 s14, s15, s81")
    for k in range(10): a(f"s_mov_b32 s{sROW+k}, {k*4096}")
    a(f"s_mov_b32 s{sM768}, -768"); a(f"s_mov_b32 s{s256}, 256"); a(f"s_mov_b32 s{s2048}, 2048")
    tile_setup_x(a, 15, vXM, vXH)
    a("s_waitcnt lgkmcnt(0)")
    a(f"s_sub_u32 s{S_X}, s4, 8192"); a(f"s_subb_u32 s{S_X+1}, s5, 0"); a(f"s_and_b32 s{S_X+1}, s{S_X+1}, 0xffff")
    a(f"s_mov_b32 s{S_X+2}, {32768000+8192}"); a(f"s_mov_b32 s{S_X+3}, 0x00020000")
    for k in range(18): a.L.append(xl_own(1, k, dst=ACCV + 4 * k, tag=("X0", k)))
    a(f"v_lshlrev_b32 v{vWOFF}, 4, v{vLANE}")
    a(f"s_lshl_b32 s{sT0}, s{sET}, 2"); a(f"s_and_b32 s{sT1}, s{sWAVE}, {o.get('wshare', 3)}"); a(f"s_add_u32 s{sT0}, s{sT0}, s{sT1}"); a(f"s_lshl_b32 s{sT0}, s{sT0}, 19")
    a(f"s_add_u32 s{S_W}, s12, s{sT0}"); a(f"s_addc_u32 s{S_W+1}, s13, 0"); a(f"s_and_b32 s{S_W+1}, s{S_W+1}, 0xffff")
    a(f"s_mov_b32 s{S_W+2}, 32768"); a(f"s_mov_b32 s{S_W+3}, 0x00020000")
    early = o.get("wearly", 2)
    for n in range(early):
        for eb in range(4): a.L.append(wload(n, eb))
    a(f"s_mov_b32 s{S_O}, s8"); a(f"s_and_b32 s{S_O+1}, s9, 0xffff"); a(f"s_mov_b32 s{S_O+2}, 32768000"); a(f"s_mov_b32 s{S_O+3}, 0x00020000")
    l2e = math.log2(math.e)
    for n, sc in enumerate((1, 1 / 3, 2 / 3)):
        a(f"s_mov_b32 s{sC+4*n}, {hx(2*l2e*sc)}"); a(f"s_mov_b32 s{sC+4*n+2}, {hx(-l2e*sc)}")
    for r, v in ((sHALF, 0.5), (sM4, -4.0), (sP6, 1 / 6), (sP43, 4 / 3), (sK425, -4.25), (sK5, -5.0), (sK525, 5.25), (sK125, -1.25), (sKQ, 0.25), (sCL, 40.0)):
        a(f"s_mov_b32 s{r}, {hx(v)}")
    a(f"s_mov_b32 s{sMASK}, 0xffff0000"); a(f"s_mov_b32 s{sWNEG}, {-15*32768}"); a(f"s_mov_b32 s{sUN}, 0")
    tile_setup_x(a, 14, vXMn, vXHn)
    G.tile_setup_o(a, 15, vOUT); G.tile_setup_o(a, 14, vOUT2)
    t = POOL
    a(f"s_lshl_b32 s{sT0}, s14, 8"); a(f"v_and_b32 v{t[0]}, 15, v{vLANE}"); a(f"v_lshlrev_b32 v{t[1]}, 4, v{t[0]}"); a(f"v_add_u32 v{t[1]}, s{sT0}, v{t[1]}")
    G.rowbytes(a, t[1], t[2], t[3])
    a(f"s_lshl_b32 s{sT0}, s{sWAVE}, 13"); a(f"s_lshl_b32 s{sT1}, s{sET}, 8"); a(f"s_add_u32 s{sT0}, s{sT0}, s{sT1}"); a(f"s_add_u32 s{sT0}, s{sT0}, 8192")
    a(f"v_lshrrev_b32 v{t[0]}, 4, v{vLANE}"); a(f"v_lshlrev_b32 v{t[0]}, 7, v{t[0]}"); a(f"v_add3_u32 v{vPF}, v{t[2]}, v{t[0]}, s{sT0}")
    a(f"v_mov_b32 v{t[0]}, 0x70000000"); a(f"v_cmp_gt_u32 vcc, 32, v{vLANE}"); a("s_nop 1"); a(f"v_cndmask_b32 v{vPF}, v{t[0]}, v{vPF}, vcc")
    a(f"s_lshr_b32 s{sT0}, s{sWAVE}, 1"); a(f"s_lshl_b32 s{sT0}, s{sT0}, 15"); a(f"s_and_b32 s{sT1}, s{sWAVE}, 1"); a(f"s_lshl_b32 s{sT1}, s{sT1}, 9")
    a(f"s_add_u32 s{sT0}, s{sT0}, s{sT1}")
    a(f"v_bfe_u32 v{t[0]}, v{vLANE}, 2, 1"); a(f"v_lshlrev_b32 v{t[0]}, 14, v{t[0]}")
    a(f"v_lshrrev_b32 v{t[1]}, 3, v{vLANE}"); a(f"v_lshl_add_u32 v{t[0]}, v{t[1]}, 6, v{t[0]}")
    a(f"v_and_b32 v{t[1]}, 3, v{vLANE}"); a(f"v_lshl_add_u32 v{t[0]}, v{t[1]}, 4, v{t[0]}"); a(f"v_add_u32 v{vTW}, s{sT0}, v{t[0]}")
    a(f"v_and_b32 v{t[0]}, 15, v{vLANE}"); a(f"v_lshrrev_b32 v{t[1]}, 3, v{t[0]}"); a(f"v_mul_u32_u24 v{t[1]}, 3, v{t[1]}")
    a(f"v_lshrrev_b32 v{t[2]}, 4, v{vLANE}"); a(f"v_xor_b32 v{t[1]}, v{t[1]}, v{t[2]}")
    a(f"v_lshlrev_b32 v{t[0]}, 2, v{t[0]}"); a(f"v_add_u32 v{t[0]}, v{t[0]}, v{t[1]}"); a(f"v_lshlrev_b32 v{t[0]}, 4, v{t[0]}")
    a(f"v_xor_b32 v{vTR}, 0x10000, v{t[0]}")
    TRC = lambda: []
    if o.get("trace"):
        a("s_add_u32 s92, s12, 0x1000000"); a("s_addc_u32 s93, s13, 0"); a("s_and_b32 s93, s93, 0xffff")
        a("s_mov_b32 s94, 0x100000"); a("s_mov_b32 s95, 0x00020000")
        a("s_lshl_b32 s90, s2, 2"); a(f"s_add_u32 s90, s90, s{sWAVE}"); a("s_lshl_b32 s90, s90, 9"); a("v_mov_b32 v0, 0")
        TRC = lambda: [I("s_waitcnt lgkmcnt(0)"), I(f"v_mov_b32 v{OUTQ}, s86"), I(f"v_mov_b32 v{OUTQ+1}, s88"),
                       I(f"buffer_store_dwordx2 v[{OUTQ}:{OUTQ+1}], v0, s[92:95], s90 offen", "vm"), I("s_add_u32 s90, s90, 8"),
                       I("s_memtime s[86:87]"), I("s_memrealtime s[88:89]")]
    rest = [i for k in range(NPRE()) for i in xl_next(k)] + [wload(n, eb) for n in range(early, 7) for eb in range(4)]
    late = [switch_ops()] + [rest[i * len(rest) // 4:(i + 1) * len(rest) // 4] for i in range(4)]
    unit0_special(a, late)
    a(f"s_mov_b32 s{sP01}, {hx(0.1)}"); a(f"s_mov_b32 s{sP02}, {hx(0.2)}")
    a.L += bar_ops() + [tread(f) for f in range(NTR)]
    a("s_nop 1")
    pro = a.L
    Bf, B1, B2 = TRC() + body(1, True, o), TRC() + body(1, False, o), TRC() + body(2, False, o)
    MID, EP = mid(o), epilogue(o)
    seq = list(pro)
    for tile in range(3):
        for s in range(8):
            seq += Bf if s == 0 else (B2 if 3 <= s <= 6 else B1)
            if s == 3: seq += MID
            if s == 7: seq += EP
    resolve(seq, {"vm": None, "lg": None})
    out = []
    emit(out, pro)
    out += ["L_TILE:", f" s_mov_b32 s{sSIG}, 0", f" s_cmp_eq_u32 s{sNT}, 2", f" s_cselect_b32 s{sPFO}, 0, 0x70000000"]
    emit(out, Bf)
    out += [f" s_mov_b32 s{sSIG}, 1", " s_branch L_B1", ".p2align 6", "L_B2:"]
    emit(out, B2)
    out += [f" s_add_u32 s{sSIG}, s{sSIG}, 1", f" s_cmp_eq_u32 s{sSIG}, 7", " s_cbranch_scc1 L_B1", f" s_cmp_lg_u32 s{sSIG}, 4", " s_cbranch_scc1 L_B2"]
    emit(out, MID)
    out += [" s_branch L_B2", ".p2align 6", "L_B1:"]
    emit(out, B1)
    out += [f" s_add_u32 s{sSIG}, s{sSIG}, 1", f" s_cmp_eq_u32 s{sSIG}, 3", " s_cbranch_scc1 L_B2", f" s_cmp_lg_u32 s{sSIG}, 8", " s_cbranch_scc1 L_B1"]
    emit(out, EP)
    out += [f" s_sub_u32 s{sNT}, s{sNT}, 1", f" s_cmp_lg_u32 s{sNT}, 0", " s_cbranch_scc1 L_TILE", " s_waitcnt vmcnt(0) lgkmcnt(0)"]
    if o.get("trace"): emit(out, TRC() + TRC()[:4] + [I("s_waitcnt vmcnt(0)")])
    out += ["L_END:", " s_endpgm"]
    if o.get("haz"):
        import hazchk
        lin = []; emit(lin, seq[:30000]); print("hazards", hazchk.check(lin), "pool hi", unit_stream(1)[1], unit_stream(2)[1], "NVG", NVG, "ACCV", ACCV)
    return out

def main():
    o = {}
    for s in sys.argv[2:]:
        k, _, v = s.partition("=")
        o[k] = eval(v) if v else 1
    CW.update(o.get("cw", {})); CFG.update(o.get("cfg", {}))
    layout()
    out = [HEADER, "; @launch kernel=wprep_kernel grid=(256,1,1) block=(256,1,1) lds=0",
           f"; @launch kernel={NAME}_kernel grid=(256,1,1) block=(256,1,1) lds={LDS_BYTES}",
           '.amdgcn_target "amdgcn-amd-amdhsa--gfx950"', ".text"]
    out += gen_main(o)
    out += wprep_kernel_text(o)
    out.append('.section .rodata,"a"')
    out += kd(NAME + "_kernel", 512, 102, 256) + kd("wprep_kernel", 112, 102, 112)
    open(sys.argv[1], "w").write("\n".join(out) + "\n")

if __name__ == "__main__":
    main()
```

```python
import sys, math
sys.path.insert(0, "tools")
import gen3 as G
from gen3 import I, icost, resolve, emit, hx, R, P2, NAME, kd, Pool, CW

HEADER = """; Kernarg layout for this problem (40 bytes, ptrs only, base s[0:1]):
; Launch 2: persistent kernel: input transform (VALU) -> LDS -> MFMA, output transform, tanh*sigmoid."""
WSLICE = 2 * 16 * 16 * 1024
LDS_BYTES = 131072
S_X, S_W, S_O = 16, 20, 24
sWAVE, sET, sNT, sSIG, sUN, sXO = 28, 29, 30, 31, 32, 33
sMASK, sCL, sWI, sWIH, sDX = 34, 35, 36, 37, 38
sK425, sK5, sK525, sK125, sKQ = 39, 40, 41, 42, 43
sT0, sT1, sT2 = 44, 45, 46
sM768, sROW, s256, s2048, sWNEG = 47, 48, 58, 59, 84
sC = 60
sHALF, sP01, sP02, sM4, sP6, sP43 = 72, 74, 76, 78, 80, 82
sPDG, sPPART = 91, 92
sPFO = 85
vPF, vJ = 108, 109
S_WI, S_WO = 64, 68
vWOFF, vXM, vXH, vX2, vXMn, vXHn, vTR, vTW, vOUT, vOUT2 = 1, 2, 3, 4, 5, 6, 7, 8, 9, 10
vLANE = 11
CFG = dict(NOUTQ=4, NPOOL=40, NRAW=10, NT=4)
def layout():
    global OUTQ, POOL, FREE, NFREE, RAWB, NRAW, ACCV, NVG, AW, NTR
    OUTQ = 12; n = OUTQ + 4 * CFG["NOUTQ"]
    POOL = list(range(n, n + CFG["NPOOL"])); n += CFG["NPOOL"]
    FREE = 12; NFREE = n - 12
    RAWB = n; NRAW = CFG["NRAW"]; n += 4 * NRAW
    NVG = (256 - n) // 16; ACCV = 256 - 16 * NVG
    AW = 16 * (16 - NVG); NTR = CFG["NT"]
    assert AW + 128 + 4 * NTR <= 256, (AW, NVG)
    for k in ("sWAVE", "sET", "sT0", "sT1", "sT2", "vLANE", "POOL"): setattr(G, k, globals()[k])
def acc(jq, kk, eb):
    g = jq * 4 + eb
    return ("v", ACCV + g * 16 + kk * 4) if g < NVG else ("a", (g - NVG) * 16 + kk * 4)
def Wr(n, eb): return R("a", AW + ((n % 8) * 4 + eb) * 4)
def Tr(s): return R("a", AW + 128 + s * 4)
def raw(s): return RAWB + 4 * s
def urows(typ): return list(range(1, 19)) if typ == 1 else list(range(20))
NPRE = lambda: min(NRAW, 10)

def xl_own(typ, k, dst=None, tag=None):
    row = urows(typ)[k]; r = raw(k % NRAW) if dst is None else dst
    return I(f"buffer_load_dwordx4 v[{r}:{r+3}], v{vXH if row < 4 else vXM}, s[{S_X}:{S_X+3}], s{sROW+row//2} offen offset:{(row&1)*2048}{CFG.get('xfl', '')}",
             "vm", ("X", k % NRAW) if tag is None else tag)
def xl_next(k):
    r = raw(k); va = vXH if k < 3 else (vX2 if k == 3 else vXM)
    L = [I(f"buffer_load_dwordx4 v[{r}:{r+3}], v{va}, s[{S_X}:{S_X+3}], s{sXO} offen offset:{(k&1)*2048}{CFG.get('xfl', '')}", "vm", ("X", k))]
    if k & 1: L.append(I(f"s_add_u32 s{sXO}, s{sXO}, 4096"))
    return L
_l = [0]
def switch_ops():
    _l[0] += 1; L = f"LS{_l[0]}"
    return [I(s) for s in (
        f"s_add_u32 s{sUN}, s{sUN}, 1", f"s_and_b32 s{sT0}, s{sUN}, 3", f"s_cmp_eq_u32 s{sT0}, 0",
        f"s_cselect_b32 s{sDX}, s{sM768}, s{s256}",
        f"v_add_u32 v{vXM}, s{sDX}, v{vXM}", f"v_add_u32 v{vXH}, s{sDX}, v{vXH}",
        f"s_cmp_lg_u32 s{sUN}, 8", f"s_cbranch_scc1 {L}_a",
        f"s_mov_b32 s{sUN}, 0", f"v_mov_b32 v{vXM}, v{vXMn}", f"v_mov_b32 v{vXH}, v{vXHn}", f"{L}_a:",
        f"s_cmp_lt_u32 s{sUN}, 4", f"s_cselect_b32 s{sXO}, s{s2048}, 0",
        f"v_mov_b32 v{vX2}, v{vXM}", f"s_cbranch_scc1 {L}_b", f"v_mov_b32 v{vX2}, v{vXH}", f"{L}_b:")]

def unit_stream(typ):
    S = []; pool = Pool(POOL); nrows = len(urows(typ)); pend = []; hi = [0]
    def op(s, kind=None, tag=None):
        S.append([I(s, kind, tag, needs=pend[:])]); pend.clear()
    def get(n=1):
        r = [pool.get() for _ in range(n)]; hi[0] = max(hi[0], len(POOL) - len(pool.free)); return r
    freed = set(); ld = [NPRE()]
    def lastocc(slot, before):
        c = [r for r in range(before) if r % NRAW == slot]
        return max(c) if c else None
    def consumed(*ks):
        freed.update(ks)
        while True:
            n = ld[0]
            if n < nrows:
                p = lastocc(n % NRAW, n)
                if p is not None and p not in freed: break
                S.append([xl_own(typ, n)])
            else:
                kk = n - nrows
                if kk >= NPRE() or lastocc(kk, nrows) not in freed: break
                if kk == 0: S.append(switch_ops())
                S.append(xl_next(kk))
            ld[0] += 1
    consumed()
    def unp(k, dw):
        d = get(2); s = raw(k % NRAW) + dw
        op(f"v_lshlrev_b32 v{d[0]}, 16, v{s}"); op(f"v_and_b32 v{d[1]}, s{sMASK}, v{s}")
        return d
    def need(*ks): pend.extend(("vm", ("X", k % NRAW)) for k in ks)
    def each(f):
        for h in range(2): op(f(h))
    pendw = []
    def tw(jq, flush=False):
        for kk in range(4):
            q = OUTQ + 4 * (kk % CFG["NOUTQ"])
            pendw.append(f"ds_write_b128 v{vTW}, v[{q}:{q+3}] offset:{(kk*4+jq)*1024}")
        if flush or not CFG.get("spreadw", 1):
            while pendw: S.append([I(pendw.pop(0), "lg", "TW")])
    _op = op; cnt = [0]
    def op(s, kind=None, tag=None):
        if pendw and s.startswith("v_cvt"):
            while pendw: S.append([I(pendw.pop(0), "lg", "TW")])
        _op(s, kind, tag); cnt[0] += 1
        if pendw and cnt[0] % CFG.get("wsp", 7) == 0: S.append([I(pendw.pop(0), "lg", "TW")])
    cv = lambda kk, dw, r: op(f"v_cvt_pk_bf16_f32 v{OUTQ+4*kk+dw}, v{r[0]}, v{r[1]}")
    if typ == 1:
        c1 = [None] * 4; c2 = [None] * 4
        need(0, 1)
        for dw in range(4):
            c1[dw] = unp(0, dw); c2[dw] = unp(1, dw)
        consumed(0, 1)
        for jq in range(4):
            k = 2 + 4 * jq
            need(k, k + 1, k + 2, k + 3)
            for dw in range(4):
                d3, d4, d5, d6 = [unp(k + i, dw) for i in range(4)]
                if dw == 3: consumed(k, k + 1, k + 2, k + 3)
                d1, d2 = c1[dw], c2[dw]
                e1 = get(2); o1 = get(2)
                each(lambda h: f"v_fma_f32 v{e1[h]}, s{sK425}, v{d4[h]}, v{d6[h]}")
                each(lambda h: f"v_fma_f32 v{o1[h]}, s{sK425}, v{d3[h]}, v{d5[h]}")
                each(lambda h: f"v_fma_f32 v{d4[h]}, s{sK5}, v{d4[h]}, v{d6[h]}")
                each(lambda h: f"v_fma_f32 v{d3[h]}, s{sK5}, v{d3[h]}, v{d5[h]}")
                each(lambda h: f"v_add_f32 v{e1[h]}, v{e1[h]}, v{d2[h]}")
                each(lambda h: f"v_add_f32 v{o1[h]}, v{o1[h]}, v{d1[h]}")
                each(lambda h: f"v_fmac_f32 v{d4[h]}, 4.0, v{d2[h]}")
                each(lambda h: f"v_fmac_f32 v{d3[h]}, 4.0, v{d1[h]}")
                each(lambda h: f"v_add_f32 v{d1[h]}, v{e1[h]}, v{o1[h]}")
                each(lambda h: f"v_sub_f32 v{e1[h]}, v{e1[h]}, v{o1[h]}")
                each(lambda h: f"v_fma_f32 v{d2[h]}, 0.5, v{d3[h]}, v{d4[h]}")
                each(lambda h: f"v_fma_f32 v{d4[h]}, -0.5, v{d3[h]}, v{d4[h]}")
                cv(0, dw, d1); cv(1, dw, e1); cv(2, dw, d2); cv(3, dw, d4)
                pool.put(*d1, *d2, *e1, *o1, *d3, *d4)
                c1[dw], c2[dw] = d5, d6
            tw(jq, jq == 3)
        for dw in range(4): pool.put(*c1[dw], *c2[dw])
    else:
        A0 = [None] * 4; A7 = [None] * 4; C2 = [None] * 4; B3 = [None] * 4
        def carries(dw, d4, d5, d6, d7):
            each(lambda h: f"v_fmac_f32 v{d5[h]}, s{sK5}, v{d7[h]}")
            each(lambda h: f"v_fma_f32 v{d4[h]}, -s{sK525}, v{d6[h]}, v{d4[h]}")
            each(lambda h: f"v_fma_f32 v{d7[h]}, s{sKQ}, v{d7[h]}, -v{d5[h]}")
            A0[dw], A7[dw], C2[dw], B3[dw] = d4, d7, d6, d5
        need(0, 1, 2, 3)
        for dw in range(4):
            d = [unp(i, dw) for i in range(4)]
            if dw == 3: consumed(0, 1, 2, 3)
            carries(dw, *d)
        for jq in range(4):
            k = 4 + 4 * jq
            need(k, k + 1, k + 2, k + 3)
            for dw in range(4):
                d4, d5, d6, d7 = [unp(k + i, dw) for i in range(4)]
                if dw == 3: consumed(k, k + 1, k + 2, k + 3)
                a0, a7, c2, b3 = A0[dw], A7[dw], C2[dw], B3[dw]
                each(lambda h: f"v_fma_f32 v{c2[h]}, s{sKQ}, v{c2[h]}, v{d6[h]}")
                each(lambda h: f"v_fma_f32 v{b3[h]}, s{sKQ}, v{b3[h]}, v{d5[h]}")
                each(lambda h: f"v_fmac_f32 v{a0[h]}, s{sK525}, v{d4[h]}")
                each(lambda h: f"v_fma_f32 v{a7[h]}, -s{sK525}, v{d5[h]}, v{a7[h]}")
                each(lambda h: f"v_fmac_f32 v{c2[h]}, s{sK125}, v{d4[h]}")
                each(lambda h: f"v_sub_f32 v{a0[h]}, v{a0[h]}, v{d6[h]}")
                each(lambda h: f"v_add_f32 v{a7[h]}, v{a7[h]}, v{d7[h]}")
                each(lambda h: f"v_fma_f32 v{b3[h]}, 2.0, v{b3[h]}, v{c2[h]}")
                cv(2, dw, a0); cv(3, dw, a7)
                each(lambda h: f"v_fma_f32 v{c2[h]}, 2.0, v{c2[h]}, -v{b3[h]}")
                cv(0, dw, b3); cv(1, dw, c2)
                pool.put(*a0, *a7, *c2, *b3)
                if jq < 3: carries(dw, d4, d5, d6, d7)
                else: pool.put(*d4, *d5, *d6, *d7)
            tw(jq, jq == 3)
    assert len(pool.free) == len(POOL)
    return S, hi[0]

def tread(f):
    f %= 64
    return I(f"ds_read_b128 {Tr(f % NTR)}, v{vTR} offset:{f*1024}", "lg", ("T", f % NTR), cls="T")
def wload(n, eb):
    return I(f"buffer_load_dwordx4 {Wr(n, eb)}, v{vWOFF}, s[{S_W}:{S_W+3}], s{sROW + n % 8} offen offset:{eb*1024}{CFG.get('wfl', '')}", "vm", ("W", n % 8, eb), cls="W")
def bar_ops():
    return [I("s_barrier", needs=[("lg", "TW")]), I(f"v_xor_b32 v{vTR}, 0x10000, v{vTR}"), I(f"v_xor_b32 v{vTW}, 0x10000, v{vTW}")]

def body(typ, first, o):
    BARM = 256 - 4 * NTR + 3
    fixed = [[] for _ in range(256)]
    fixed[BARM] += bar_ops()
    for f in range(64): fixed[((f - NTR) * 4 + 3) % 256].append(tread(f))
    wp = o.get("wpos", (1, 5, 9, 13))
    for n in range(16):
        for eb in range(4):
            m = (16 * n + 16 + wp[eb]) % 256
            if n % 8 == 0 and eb == 0:
                if n == 8:
                    fixed[m] += [I(f"s_cmp_eq_u32 s{sSIG}, 7"), I(f"s_cselect_b32 s{sWI}, s{sWNEG}, s{sROW+8}"), I(f"s_cselect_b32 s{sWIH}, -1, 0"),
                                 I(f"s_add_u32 s{S_W}, s{S_W}, s{sWI}"), I(f"s_addc_u32 s{S_W+1}, s{S_W+1}, s{sWIH}")]
                else:
                    fixed[m] += [I(f"s_add_u32 s{S_W}, s{S_W}, 32768"), I(f"s_addc_u32 s{S_W+1}, s{S_W+1}, 0")]
            fixed[m].append(wload(n, eb))
    if typ == 2 and o.get("pf", 1):
        fixed[o.get("pfm", 62)] += [I(f"buffer_load_dword v{vJ}, v{vPF}, s[{S_X}:{S_X+3}], s{sPFO} offen{o.get('pffl', '')}", "vm"), I(f"s_add_u32 s{sPFO}, s{sPFO}, 8192")]
    S, _ = unit_stream(typ)
    c = lambda g: sum(icost(i) for i in g if not i.s.endswith(":"))
    load = [c(fixed[m]) for m in range(256)]
    st, en = 0, BARM - 1 - o.get("endm", 2)
    tot = sum(map(c, S)); lo, hi = 0.0, 100.0
    for _ in range(50):
        L = (lo + hi) / 2
        if sum(max(0.0, L - load[m]) for m in range(st, en + 1)) < tot: lo = L
        else: hi = L
    out = []; k = 0; done = 0.0; tgt = 0.0
    XG = o.get("xg", 8); xq = []; lastx = -99
    isx = lambda g: g[0].s.startswith("buffer_load") or g[0].s.startswith(f"s_add_u32 s{sUN}")
    for m in range(256):
        f, eb = m >> 2, m & 3
        cp, kk, jq = f >> 4, (f >> 2) & 3, f & 3
        n = f >> 2
        t, b = acc(jq, kk, eb)
        needs = []
        if eb == 0: needs.append(("lg", ("T", f % NTR)))
        if jq == 0 and eb == 0: needs.append(("vm", ("W", n % 8, 3)))
        out.append(I(f"v_mfma_f32_16x16x32_bf16 {R(t, b)}, {Wr(n, eb)}, {Tr(f % NTR)}, {'0' if first and cp == 0 else R(t, b)}", needs=needs))
        out += fixed[m]
        if xq and ((m % 4 == o.get("xph", 3) and m - lastx >= XG) or m == 255):
            out += xq.pop(0); lastx = m
            if m == 255:
                while xq: out += xq.pop(0)
        if m <= en:
            tgt += max(0.0, hi - load[m])
            while k < len(S) and (done + c(S[k]) / 2 <= tgt or m == en):
                if XG and isx(S[k]): xq.append(S[k])
                else: out += S[k]
                done += c(S[k]); k += 1
    if o.get("drop"):
        for i in out:
            if any(i.s.startswith(d) for d in o["drop"]): i.s = "NOP"
    return out

PKC = lambda r: f"s[{r}:{r+1}]"
def mid(o):
    L = [I("s_nop 7")]; a = lambda s: L.append(I(s))
    def tr(groups):
        W = [(b + x, b + 4 + x, b + 8 + x, b + 12 + x, t + x, t + 4 + x) for b, t in groups for x in (0, 2)]
        for z0, z1, z2, z3, t0, t1 in W: a(f"v_pk_add_f32 {P2(t0)}, {P2(z0)}, {P2(z1)}")
        for z0, z1, z2, z3, t0, t1 in W: a(f"v_pk_add_f32 {P2(t1)}, {P2(z2)}, {P2(z3)}")
        for z0, z1, z2, z3, t0, t1 in W: a(f"v_pk_add_f32 {P2(z0)}, {P2(z0)}, {P2(z1)} neg_lo:[0,1] neg_hi:[0,1]")
        for z0, z1, z2, z3, t0, t1 in W: a(f"v_pk_add_f32 {P2(z1)}, {P2(z2)}, {P2(z3)} neg_lo:[0,1] neg_hi:[0,1]")
        for z0, z1, z2, z3, t0, t1 in W: a(f"v_pk_fma_f32 {P2(z2)}, {P2(t1)}, {PKC(sHALF)}, {P2(t0)} op_sel_hi:[1,0,1]")
        for z0, z1, z2, z3, t0, t1 in W: a(f"v_pk_fma_f32 {P2(z3)}, {P2(z0)}, {PKC(sM4)}, {P2(z1)} op_sel_hi:[1,0,1] neg_lo:[0,0,1] neg_hi:[0,0,1]")
        for z0, z1, z2, z3, t0, t1 in W: a(f"v_pk_fma_f32 {P2(t0)}, {P2(t1)}, {PKC(sP01)}, {P2(t0)} op_sel_hi:[1,0,1]")
        for z0, z1, z2, z3, t0, t1 in W: a(f"v_pk_fma_f32 {P2(t1)}, {P2(z1)}, {PKC(sP02)}, {P2(z0)} op_sel_hi:[1,0,1]")
        for z0, z1, z2, z3, t0, t1 in W: a(f"v_pk_fma_f32 {P2(z0)}, {P2(t1)}, 2.0, {P2(t0)} op_sel_hi:[1,0,1]")
        for z0, z1, z2, z3, t0, t1 in W: a(f"v_pk_fma_f32 {P2(z1)}, {P2(t1)}, -2.0, {P2(t0)} op_sel_hi:[1,0,1]")
    vg = [ACCV + 16 * g for g in range(NVG)]
    for n in range(0, NVG, 3): tr([(b, FREE + 8 * i) for i, b in enumerate(vg[n:n + 3])])
    ag = [16 * g for g in range(16 - NVG)]
    for n in range(0, len(ag), 2):
        grp = ag[n:n + 2]
        for i, b in enumerate(grp):
            for x in range(16): a(f"v_accvgpr_read_b32 v{FREE+24*i+x}, a{b+x}")
        tr([(FREE + 24 * i, FREE + 24 * i + 16) for i in range(len(grp))])
        for i, b in enumerate(grp):
            for x in range(16): a(f"v_accvgpr_write_b32 a{b+x}, v{FREE+24*i+x}")
    a("s_nop 1")
    return L

def epilogue(o):
    L = [I("s_nop 7")]; a = lambda s, kind=None: L.append(I(s, kind))
    for jq in range(4):
        base = []
        for eb in range(4):
            t, b = acc(jq, 0, eb)
            if t == "a":
                nb = acc(jq - 2, 0, eb)[1]
                for x in range(16): a(f"v_accvgpr_read_b32 v{nb+x}, a{b+x}")
                b = nb
            base.append(b)
        W = [(b + x, b + 4 + x, b + 8 + x, b + 12 + x) for b in base for x in (0, 2)]
        for z0, z1, z2, z3 in W: a(f"v_pk_add_f32 {P2(z0)}, {P2(z0)}, {P2(z1)}")
        for z0, z1, z2, z3 in W: a(f"v_pk_fma_f32 {P2(z1)}, {P2(z1)}, -2.0, {P2(z0)} op_sel_hi:[1,0,1]")
        for z0, z1, z2, z3 in W: a(f"v_pk_fma_f32 {P2(z2)}, {P2(z0)}, {PKC(sP6)}, {P2(z2)} op_sel_hi:[1,0,1]")
        for z0, z1, z2, z3 in W: a(f"v_pk_fma_f32 {P2(z3)}, {P2(z1)}, {PKC(sP43)}, {P2(z3)} op_sel_hi:[1,0,1]")
        for oidx, (kk, cs) in enumerate(((2, 0), (1, 1), (0, 2), (3, 0))):
            j = 4 * jq + oidx
            regs = [b + 4 * kk for b in base]
            prs = [(regs[h] + 2 * p, regs[2 + h] + 2 * p) for h in range(2) for p in range(2)]
            c1, c2 = sC + 4 * cs, sC + 4 * cs + 2
            for f, g in prs: a(f"v_pk_mul_f32 {P2(f)}, {P2(f)}, {PKC(c1)} op_sel_hi:[1,0]")
            for f, g in prs: a(f"v_pk_mul_f32 {P2(g)}, {P2(g)}, {PKC(c2)} op_sel_hi:[1,0]")
            for f, g in prs: a(f"v_min_f32 v{f}, s{sCL}, v{f}"); a(f"v_min_f32 v{f+1}, s{sCL}, v{f+1}")
            for f, g in prs: a(f"v_exp_f32 v{g}, v{g}"); a(f"v_exp_f32 v{g+1}, v{g+1}")
            for f, g in prs: a(f"v_exp_f32 v{f}, v{f}"); a(f"v_exp_f32 v{f+1}, v{f+1}")
            for f, g in prs: a(f"v_pk_fma_f32 {P2(f)}, {P2(f)}, {PKC(sHALF)}, {PKC(sHALF)} op_sel_hi:[1,0,0]")
            for f, g in prs: a(f"v_pk_fma_f32 {P2(g)}, {P2(f)}, {P2(g)}, {P2(f)}")
            for f, g in prs: a(f"v_rcp_f32 v{g}, v{g}"); a(f"v_rcp_f32 v{g+1}, v{g+1}")
            a("s_nop 0")
            for f, g in prs: a(f"v_pk_fma_f32 {P2(f)}, {P2(f)}, {P2(g)}, {P2(g)} neg_lo:[0,0,1] neg_hi:[0,0,1]")
            oq = regs[2]
            for n in range(4): a(f"v_cvt_pk_bf16_f32 v{oq+n}, v{regs[0]+n}, v{regs[1]+n}")
            if not o.get("nost"): a(f"buffer_store_dwordx4 v[{oq}:{oq+3}], v{vOUT}, s[{S_O}:{S_O+3}], s{sROW + j//2} offen offset:{(j&1)*2048}{o.get('stflag', ' nt')}", "vm")
    a(f"v_mov_b32 v{vOUT}, v{vOUT2}")
    return L

class Em:
    def __init__(self): self.L = []
    def __call__(self, s, kind=None, tag=None, needs=()): self.L.append(I(s, kind, tag, needs))

def tile_setup_x(a, sTT, vxm, vxh):
    t = POOL
    a(f"s_lshl_b32 s{sT0}, s{sTT}, 8"); a(f"s_and_b32 s{sT1}, s{sWAVE}, 1"); a(f"s_lshl_b32 s{sT2}, s{sT1}, 7"); a(f"s_add_u32 s{sT0}, s{sT0}, s{sT2}")
    a(f"v_lshrrev_b32 v{t[0]}, 3, v{vLANE}"); a(f"v_lshlrev_b32 v{t[1]}, 4, v{t[0]}"); a(f"v_add_u32 v{t[1]}, s{sT0}, v{t[1]}")
    G.rowbytes(a, t[1], t[2], t[3])
    a(f"s_mul_i32 s{sT1}, s{sT1}, 3")
    a(f"v_and_b32 v{t[3]}, 7, v{vLANE}"); a(f"v_xor_b32 v{t[3]}, s{sT1}, v{t[3]}"); a(f"v_lshlrev_b32 v{t[3]}, 4, v{t[3]}")
    a(f"s_lshr_b32 s{sT1}, s{sWAVE}, 1"); a(f"s_lshl_b32 s{sT1}, s{sT1}, 7")
    a(f"v_add3_u32 v{vxm}, v{t[2]}, v{t[3]}, s{sT1}")
    a(f"v_mov_b32 v{vxh}, v{vxm}"); a(f"v_mov_b32 v{t[4]}, 0x70000000")
    for thr in (0, 8000, 16000, 24000):
        a(f"v_cmp_eq_u32 vcc, {thr}, v{t[1]}"); a("s_nop 1"); a(f"v_cndmask_b32 v{vxh}, v{vxh}, v{t[4]}, vcc")

def unit0_special(a, late):
    RB = ACCV
    pool = Pool(list(range(ACCV + 72, 256, 2)) + list(range(POOL[0], POOL[-1], 2)))
    K425, K5 = sP01, sP02
    a(f"s_mov_b32 s{K425}, {hx(-4.25)}"); a(f"s_mov_b32 s{K5}, {hx(-5.0)}")
    def unp(k, nd=()):
        d = [pool.get() for _ in range(4)]
        for x in range(4):
            a(f"v_lshlrev_b32 v{d[x]}, 16, v{RB+4*k+x}", needs=nd if x == 0 else ()); a(f"v_and_b32 v{d[x]+1}, s{sMASK}, v{RB+4*k+x}")
        return d
    pk = lambda f: [a(f(x)) for x in range(4)]
    d1 = unp(0, [("vm", ("X0", 1))]); d2 = unp(1)
    a.L += late[0]
    for jq in range(4):
        k = 2 + 4 * jq
        d3 = unp(k, [("vm", ("X0", k + 1))]); d4 = unp(k + 1); d5 = unp(k + 2, [("vm", ("X0", k + 3))]); d6 = unp(k + 3)
        a.L += late[jq + 1]
        e1 = [pool.get() for _ in range(4)]; o1 = [pool.get() for _ in range(4)]
        pk(lambda x: f"v_pk_fma_f32 {P2(e1[x])}, {P2(d4[x])}, {PKC(K425)}, {P2(d6[x])} op_sel_hi:[1,0,1]")
        pk(lambda x: f"v_pk_fma_f32 {P2(o1[x])}, {P2(d3[x])}, {PKC(K425)}, {P2(d5[x])} op_sel_hi:[1,0,1]")
        pk(lambda x: f"v_pk_fma_f32 {P2(d4[x])}, {P2(d4[x])}, {PKC(K5)}, {P2(d6[x])} op_sel_hi:[1,0,1]")
        pk(lambda x: f"v_pk_fma_f32 {P2(d3[x])}, {P2(d3[x])}, {PKC(K5)}, {P2(d5[x])} op_sel_hi:[1,0,1]")
        pk(lambda x: f"v_pk_add_f32 {P2(e1[x])}, {P2(e1[x])}, {P2(d2[x])}")
        pk(lambda x: f"v_pk_add_f32 {P2(o1[x])}, {P2(o1[x])}, {P2(d1[x])}")
        pk(lambda x: f"v_pk_fma_f32 {P2(d4[x])}, {P2(d2[x])}, 4.0, {P2(d4[x])} op_sel_hi:[1,0,1]")
        pk(lambda x: f"v_pk_fma_f32 {P2(d3[x])}, {P2(d1[x])}, 4.0, {P2(d3[x])} op_sel_hi:[1,0,1]")
        pk(lambda x: f"v_pk_add_f32 {P2(d1[x])}, {P2(e1[x])}, {P2(o1[x])}")
        pk(lambda x: f"v_pk_add_f32 {P2(e1[x])}, {P2(e1[x])}, {P2(o1[x])} neg_lo:[0,1] neg_hi:[0,1]")
        pk(lambda x: f"v_pk_fma_f32 {P2(d2[x])}, {P2(d3[x])}, 0.5, {P2(d4[x])} op_sel_hi:[1,0,1]")
        pk(lambda x: f"v_pk_fma_f32 {P2(d4[x])}, {P2(d3[x])}, -0.5, {P2(d4[x])} op_sel_hi:[1,0,1]")
        for kk, r in enumerate((d1, e1, d2, d4)):
            q = OUTQ + 4 * kk
            pk(lambda x: f"v_cvt_pk_bf16_f32 v{q+x}, v{r[x]}, v{r[x]+1}")
            a(f"ds_write_b128 v{vTW}, v[{q}:{q+3}] offset:{(kk*4+jq)*1024}", "lg", "TW")
        pool.put(*d1, *d2, *e1, *o1, *d3, *d4)
        d1, d2 = d5, d6

def wprep_kernel_text(o={}):
    a = Em(); p = [4, 5, 6, 7]
    a(".globl wprep_kernel"); a(".p2align 8"); a(".type wprep_kernel,@function"); a("wprep_kernel:")
    a("s_cmp_ge_u32 s2, 256"); a("s_cbranch_scc1 WP_END")
    a("s_load_dwordx4 s[4:7], s[0:1], 0"); a("s_load_dwordx2 s[12:13], s[0:1], 32")
    a("v_lshrrev_b32 v1, 6, v0"); a("v_and_b32 v2, 63, v0"); a("s_nop 0"); a(f"v_readfirstlane_b32 s{sPPART}, v1")
    npf = o.get("wpf", 0)
    if npf:
        a("s_and_b32 s80, s2, 7"); a("s_lshr_b32 s81, s2, 3"); a("s_and_b32 s82, s80, 1"); a("s_lshl_b32 s82, s82, 1")
        a("s_and_b32 s84, s81, 1"); a("s_add_u32 s84, s84, s82")
        a("s_lshr_b32 s80, s80, 1"); a("s_lshr_b32 s81, s81, 1"); a("s_mul_i32 s82, s80, 31")
        a("s_and_b32 s83, s84, 1"); a("s_sub_u32 s83, 3, s83"); a("s_cmp_gt_u32 s80, s83"); a("s_cselect_b32 s83, 1, 0")
        a("s_add_u32 s82, s82, s83"); a("s_add_u32 s82, s82, s81")
        a("s_lshl_b32 s82, s82, 8"); a("s_lshl_b32 s84, s84, 6"); a("s_add_u32 s82, s82, s84")
        a("v_lshrrev_b32 v108, 2, v0"); a("v_add_u32 v108, s82, v108")
        G.rowbytes(a, 108, 109, 110)
        a("v_and_b32 v108, 3, v0"); a("v_lshl_add_u32 v109, v108, 7, v109"); a("s_mov_b32 s84, 0")
    a(f"s_and_b32 s{sET}, s2, 3"); a(f"s_lshr_b32 s{sPDG}, s2, 2"); a(f"s_mov_b32 s{sMASK}, 0xffff0000")
    a(f"v_lshrrev_b32 v{p[0]}, 1, v2"); a(f"v_lshlrev_b32 v{p[0]}, 2, v{p[0]}"); a(f"v_and_b32 v{p[3]}, 1, v2")
    a(f"v_lshl_add_u32 v{p[0]}, v{p[3]}, 13, v{p[0]}"); a(f"v_add_u32 v{p[1]}, 4096, v{p[0]}")
    a(f"v_lshrrev_b32 v{p[2]}, 5, v2"); a(f"v_lshlrev_b32 v{p[2]}, 19, v{p[2]}"); a(f"v_lshl_add_u32 v{p[2]}, v{p[3]}, 3, v{p[2]}")
    a(f"v_bfe_u32 v{p[3]}, v2, 1, 4"); a(f"v_lshl_add_u32 v{p[2]}, v{p[3]}, 4, v{p[2]}")
    SB = list(range(72, 80))
    a(f"s_lshr_b32 s{sT0}, s{sPPART}, 1"); a(f"s_lshl_b32 s{sT1}, s{sT0}, 10"); a(f"s_lshl_b32 s{sT2}, s{sET}, 8")
    a(f"s_add_u32 s{sT1}, s{sT1}, s{sT2}"); a(f"s_and_b32 s{sT2}, s{sPPART}, 1"); a(f"s_lshl_b32 s{sT2}, s{sT2}, 7")
    a(f"s_add_u32 s{sT1}, s{sT1}, s{sT2}"); a(f"s_lshl_b32 s{sT2}, s{sPDG}, 14"); a(f"s_add_u32 s{SB[0]}, s{sT1}, s{sT2}")
    for i in range(1, 5): a(f"s_add_u32 s{SB[i]}, s{SB[0]}, {i*1048576}")
    a("s_waitcnt lgkmcnt(0)")
    a(f"s_mov_b32 s{S_WI}, s6"); a(f"s_and_b32 s{S_WI+1}, s7, 0xffff"); a(f"s_mov_b32 s{S_WI+2}, 5242880"); a(f"s_mov_b32 s{S_WI+3}, 0x00020000")
    a(f"s_mov_b32 s{S_WO}, s12"); a(f"s_and_b32 s{S_WO+1}, s13, 0xffff"); a(f"s_mov_b32 s{S_WO+2}, {16*WSLICE}"); a(f"s_mov_b32 s{S_WO+3}, 0x00020000")
    WR = 8; TP = 28; RS = 52; OUT = 76
    for m in range(4):
        for i in range(5):
            a(f"buffer_load_dword v{WR+m*5+i}, v{p[m//2]}, s[{S_WI}:{S_WI+3}], s{SB[i]} offen offset:{(m&1)*2048}")
    if npf:
        a(f"s_mov_b32 s{S_X}, s4"); a(f"s_and_b32 s{S_X+1}, s5, 0xffff"); a(f"s_mov_b32 s{S_X+2}, 32768000"); a(f"s_mov_b32 s{S_X+3}, 0x00020000")
        for n in range(npf): a(f"buffer_load_dword v{110+n}, v109, s[{S_X}:{S_X+3}], s84 offen offset:{512*n}")
    a(f"s_lshl_b32 s{sT1}, s{sET}, 1"); a(f"s_and_b32 s{sT0}, s{sPPART}, 1"); a(f"s_add_u32 s{sT1}, s{sT1}, s{sT0}"); a(f"s_lshl_b32 s{sT1}, s{sT1}, 20")
    a(f"s_lshr_b32 s{sT0}, s{sPPART}, 1"); a(f"s_lshl_b32 s{sT0}, s{sT0}, 11"); a(f"s_add_u32 s{sT1}, s{sT1}, s{sT0}")
    a(f"s_lshr_b32 s{sT0}, s{sPDG}, 2"); a(f"s_lshl_b32 s{sT0}, s{sT0}, 14"); a(f"s_add_u32 s{sT1}, s{sT1}, s{sT0}")
    a(f"s_and_b32 s{sT0}, s{sPDG}, 3"); a(f"s_lshl_b32 s{sT0}, s{sT0}, 8"); a(f"s_add_u32 s48, s{sT1}, s{sT0}")
    for k in range(1, 8): a(f"s_add_u32 s{48+k}, s48, {(k//4)*262144 + (k%4)*4096}")
    CS = dict(q=80, s16=82, m6=84, f43=86, f23=88, f15=90, f215=92, x16=94)
    for k, v in dict(q=0.25, s16=1 / 16, m6=-1 / 6, f43=4 / 3, f23=2 / 3, f15=1 / 15, f215=2 / 15, x16=16.0).items(): a(f"s_mov_b32 s{CS[k]}, {hx(v)}")
    a("s_mov_b32 s96, 0x05040100"); a("s_mov_b32 s97, 0x07060302")
    C = lambda k: PKC(CS[k])
    for m in range(4):
        if m % 2 == 0: a(f"s_waitcnt vmcnt({10 - 5*m + npf})")
        g = [TP + 2 * i for i in range(5)]; E1, O1, Eh, Oh, E2, O2 = [TP + 10 + 2 * i for i in range(6)]
        for i in range(5):
            a(f"v_lshlrev_b32 v{g[i]}, 16, v{WR+m*5+i}"); a(f"v_and_b32 v{g[i]+1}, s{sMASK}, v{WR+m*5+i}")
        W = [RS + 12 * (m & 1) + 2 * k for k in range(6)]
        h1 = "op_sel_hi:[1,0,1]"; ng = " neg_lo:[0,0,1] neg_hi:[0,0,1]"
        a(f"v_pk_add_f32 {P2(E1)}, {P2(g[0])}, {P2(g[2])}"); a(f"v_pk_add_f32 {P2(O1)}, {P2(g[1])}, {P2(g[3])}")
        a(f"v_pk_fma_f32 {P2(Eh)}, {P2(g[2])}, {C('q')}, {P2(g[0])} {h1}"); a(f"v_pk_fma_f32 {P2(Oh)}, {P2(g[3])}, {C('q')}, {P2(g[1])} {h1}")
        a(f"v_pk_fma_f32 {P2(E2)}, {P2(g[2])}, 4.0, {P2(g[0])} {h1}"); a(f"v_pk_fma_f32 {P2(O2)}, {P2(g[3])}, 4.0, {P2(g[1])} {h1}")
        a(f"v_pk_add_f32 {P2(E1)}, {P2(E1)}, {P2(g[4])}"); a(f"v_pk_mul_f32 {P2(O1)}, {P2(O1)}, {C('m6')} op_sel_hi:[1,0]")
        a(f"v_pk_fma_f32 {P2(Eh)}, {P2(g[4])}, {C('s16')}, {P2(Eh)} {h1}"); a(f"v_pk_mul_f32 {P2(Oh)}, {P2(Oh)}, {C('f23')} op_sel_hi:[1,0]")
        a(f"v_pk_fma_f32 {P2(E2)}, {P2(g[4])}, {C('x16')}, {P2(E2)} {h1}"); a(f"v_pk_mul_f32 {P2(O2)}, {P2(O2)}, {C('f215')} op_sel_hi:[1,0]")
        for k, (E, O, c) in enumerate(((E1, O1, 'm6'), (Eh, Oh, 'f43'), (E2, O2, 'f15'))):
            a(f"v_pk_fma_f32 {P2(W[2*k])}, {P2(E)}, {C(c)}, {P2(O)} {h1}"); a(f"v_pk_fma_f32 {P2(W[2*k+1])}, {P2(E)}, {C(c)}, {P2(O)} {h1}{ng}")
        if m & 1:
            for col in range(2):
                for k in range(6): a(f"v_cvt_pk_bf16_f32 v{OUT+(k*2+col)*2+m//2}, v{RS+2*k+col}, v{RS+12+2*k+col}")
                for k, i in ((6, 0), (7, 4)): a(f"v_perm_b32 v{OUT+(k*2+col)*2+m//2}, v{WR+m*5+i}, v{WR+(m-1)*5+i}, s{96+col}")
    for k in range(8):
        for col in range(2):
            q = OUT + (k * 2 + col) * 2
            a(f"buffer_store_dwordx2 v[{q}:{q+1}], v{p[2]}, s[{S_WO}:{S_WO+3}], s{48+k} offen offset:{col*1024}")
    a("s_waitcnt vmcnt(0)"); a("WP_END:"); a("s_endpgm")
    out = []; emit(out, a.L); return out

def gen_main(o):
    K = NAME + "_kernel"
    a = Em()
    a(f".globl {K}"); a(".p2align 8"); a(f".type {K},@function"); a(K + ":")
    a("s_cmp_ge_u32 s2, 256"); a("s_cbranch_scc1 L_END")
    a("s_load_dwordx8 s[4:11], s[0:1], 0"); a("s_load_dwordx2 s[12:13], s[0:1], 32")
    if o.get("trace"): a("s_memtime s[86:87]"); a("s_memrealtime s[88:89]")
    a("v_lshrrev_b32 v1, 6, v0"); a(f"v_and_b32 v{vLANE}, 63, v0"); a("s_nop 0"); a(f"v_readfirstlane_b32 s{sWAVE}, v1")
    a("s_and_b32 s80, s2, 7"); a("s_lshr_b32 s81, s2, 3"); a("s_and_b32 s82, s80, 1"); a("s_lshl_b32 s82, s82, 1")
    a(f"s_and_b32 s{sET}, s81, 1"); a(f"s_add_u32 s{sET}, s{sET}, s82")
    a("s_lshr_b32 s80, s80, 1"); a("s_lshr_b32 s81, s81, 1"); a("s_mul_i32 s82, s80, 31")
    a(f"s_and_b32 s83, s{sET}, 1"); a("s_sub_u32 s83, 3, s83")
    a("s_cmp_gt_u32 s80, s83"); a("s_cselect_b32 s14, 1, 0"); a("s_add_u32 s82, s82, s14"); a("s_add_u32 s15, s82, s81")
    a("s_cmp_eq_u32 s80, s83"); a("s_cselect_b32 s83, 16, 15"); a("s_cmp_lt_u32 s81, s83")
    a(f"s_cselect_b32 s{sNT}, 2, 1"); a("s_cselect_b32 s81, 16, 0"); a("s_add_u32 s14, s15, s81")
    for k in range(10): a(f"s_mov_b32 s{sROW+k}, {k*4096}")
    a(f"s_mov_b32 s{sM768}, -768"); a(f"s_mov_b32 s{s256}, 256"); a(f"s_mov_b32 s{s2048}, 2048")
    tile_setup_x(a, 15, vXM, vXH)
    a("s_waitcnt lgkmcnt(0)")
    a(f"s_sub_u32 s{S_X}, s4, 8192"); a(f"s_subb_u32 s{S_X+1}, s5, 0"); a(f"s_and_b32 s{S_X+1}, s{S_X+1}, 0xffff")
    a(f"s_mov_b32 s{S_X+2}, {32768000+8192}"); a(f"s_mov_b32 s{S_X+3}, 0x00020000")
    for k in range(18): a.L.append(xl_own(1, k, dst=ACCV + 4 * k, tag=("X0", k)))
    a(f"v_lshlrev_b32 v{vWOFF}, 4, v{vLANE}")
    a(f"s_lshl_b32 s{sT0}, s{sET}, 2"); a(f"s_and_b32 s{sT1}, s{sWAVE}, {o.get('wshare', 3)}"); a(f"s_add_u32 s{sT0}, s{sT0}, s{sT1}"); a(f"s_lshl_b32 s{sT0}, s{sT0}, 19")
    a(f"s_add_u32 s{S_W}, s12, s{sT0}"); a(f"s_addc_u32 s{S_W+1}, s13, 0"); a(f"s_and_b32 s{S_W+1}, s{S_W+1}, 0xffff")
    a(f"s_mov_b32 s{S_W+2}, 32768"); a(f"s_mov_b32 s{S_W+3}, 0x00020000")
    early = o.get("wearly", 2)
    for n in range(early):
        for eb in range(4): a.L.append(wload(n, eb))
    a(f"s_mov_b32 s{S_O}, s8"); a(f"s_and_b32 s{S_O+1}, s9, 0xffff"); a(f"s_mov_b32 s{S_O+2}, 32768000"); a(f"s_mov_b32 s{S_O+3}, 0x00020000")
    l2e = math.log2(math.e)
    for n, sc in enumerate((1, 1 / 3, 2 / 3)):
        a(f"s_mov_b32 s{sC+4*n}, {hx(2*l2e*sc)}"); a(f"s_mov_b32 s{sC+4*n+2}, {hx(-l2e*sc)}")
    for r, v in ((sHALF, 0.5), (sM4, -4.0), (sP6, 1 / 6), (sP43, 4 / 3), (sK425, -4.25), (sK5, -5.0), (sK525, 5.25), (sK125, -1.25), (sKQ, 0.25), (sCL, 40.0)):
        a(f"s_mov_b32 s{r}, {hx(v)}")
    a(f"s_mov_b32 s{sMASK}, 0xffff0000"); a(f"s_mov_b32 s{sWNEG}, {-15*32768}"); a(f"s_mov_b32 s{sUN}, 0")
    tile_setup_x(a, 14, vXMn, vXHn)
    G.tile_setup_o(a, 15, vOUT); G.tile_setup_o(a, 14, vOUT2)
    t = POOL
    a(f"s_lshl_b32 s{sT0}, s14, 8"); a(f"s_lshl_b32 s{sT1}, s{sET}, 6"); a(f"s_add_u32 s{sT0}, s{sT0}, s{sT1}")
    a(f"s_lshl_b32 s{sT1}, s{sWAVE}, 4"); a(f"s_add_u32 s{sT0}, s{sT0}, s{sT1}")
    a(f"v_lshrrev_b32 v{t[1]}, 3, v{vLANE}"); a(f"v_add_u32 v{t[1]}, s{sT0}, v{t[1]}")
    G.rowbytes(a, t[1], t[2], t[3])
    a(f"v_and_b32 v{t[0]}, 7, v{vLANE}"); a(f"v_lshlrev_b32 v{t[0]}, 7, v{t[0]}"); a(f"v_add3_u32 v{vPF}, v{t[2]}, v{t[0]}, s{sROW+2}")
    a(f"v_mov_b32 v{t[0]}, 0x70000000"); a(f"v_cmp_gt_u32 vcc, 32, v{vLANE}"); a("s_nop 1"); a(f"v_cndmask_b32 v{vPF}, v{t[0]}, v{vPF}, vcc")
    a(f"s_lshr_b32 s{sT0}, s{sWAVE}, 1"); a(f"s_lshl_b32 s{sT0}, s{sT0}, 15"); a(f"s_and_b32 s{sT1}, s{sWAVE}, 1"); a(f"s_lshl_b32 s{sT1}, s{sT1}, 9")
    a(f"s_add_u32 s{sT0}, s{sT0}, s{sT1}")
    a(f"v_bfe_u32 v{t[0]}, v{vLANE}, 2, 1"); a(f"v_lshlrev_b32 v{t[0]}, 14, v{t[0]}")
    a(f"v_lshrrev_b32 v{t[1]}, 3, v{vLANE}"); a(f"v_lshl_add_u32 v{t[0]}, v{t[1]}, 6, v{t[0]}")
    a(f"v_and_b32 v{t[1]}, 3, v{vLANE}"); a(f"v_lshl_add_u32 v{t[0]}, v{t[1]}, 4, v{t[0]}"); a(f"v_add_u32 v{vTW}, s{sT0}, v{t[0]}")
    a(f"v_and_b32 v{t[0]}, 15, v{vLANE}"); a(f"v_lshrrev_b32 v{t[1]}, 3, v{t[0]}"); a(f"v_mul_u32_u24 v{t[1]}, 3, v{t[1]}")
    a(f"v_lshrrev_b32 v{t[2]}, 4, v{vLANE}"); a(f"v_xor_b32 v{t[1]}, v{t[1]}, v{t[2]}")
    a(f"v_lshlrev_b32 v{t[0]}, 2, v{t[0]}"); a(f"v_add_u32 v{t[0]}, v{t[0]}, v{t[1]}"); a(f"v_lshlrev_b32 v{t[0]}, 4, v{t[0]}")
    a(f"v_xor_b32 v{vTR}, 0x10000, v{t[0]}")
    TRC = lambda: []
    if o.get("trace"):
        a("s_add_u32 s92, s12, 0x1000000"); a("s_addc_u32 s93, s13, 0"); a("s_and_b32 s93, s93, 0xffff")
        a("s_mov_b32 s94, 0x100000"); a("s_mov_b32 s95, 0x00020000")
        a("s_lshl_b32 s90, s2, 2"); a(f"s_add_u32 s90, s90, s{sWAVE}"); a("s_lshl_b32 s90, s90, 9"); a("v_mov_b32 v0, 0")
        TRC = lambda: [I("s_waitcnt lgkmcnt(0)"), I(f"v_mov_b32 v{OUTQ}, s86"), I(f"v_mov_b32 v{OUTQ+1}, s88"),
                       I(f"buffer_store_dwordx2 v[{OUTQ}:{OUTQ+1}], v0, s[92:95], s90 offen", "vm"), I("s_add_u32 s90, s90, 8"),
                       I("s_memtime s[86:87]"), I("s_memrealtime s[88:89]")]
    rest = [i for k in range(NPRE()) for i in xl_next(k)] + [wload(n, eb) for n in range(early, 7) for eb in range(4)]
    late = [switch_ops()] + [rest[i * len(rest) // 4:(i + 1) * len(rest) // 4] for i in range(4)]
    unit0_special(a, late)
    a(f"s_mov_b32 s{sP01}, {hx(0.1)}"); a(f"s_mov_b32 s{sP02}, {hx(0.2)}")
    a.L += bar_ops() + [tread(f) for f in range(NTR)]
    a("s_nop 1")
    pro = a.L
    Bf, B1, B2 = TRC() + body(1, True, o), TRC() + body(1, False, o), TRC() + body(2, False, o)
    MID, EP = mid(o), epilogue(o)
    seq = list(pro)
    for tile in range(3):
        for s in range(8):
            seq += Bf if s == 0 else (B2 if 3 <= s <= 6 else B1)
            if s == 3: seq += MID
            if s == 7: seq += EP
    resolve(seq, {"vm": None, "lg": None})
    out = []
    emit(out, pro)
    out += ["L_TILE:", f" s_mov_b32 s{sSIG}, 0", f" s_cmp_eq_u32 s{sNT}, 2", f" s_cselect_b32 s{sPFO}, 0, 0x70000000"]
    emit(out, Bf)
    out += [f" s_mov_b32 s{sSIG}, 1", " s_branch L_B1", ".p2align 6", "L_B2:"]
    emit(out, B2)
    out += [f" s_add_u32 s{sSIG}, s{sSIG}, 1", f" s_cmp_eq_u32 s{sSIG}, 7", " s_cbranch_scc1 L_B1", f" s_cmp_lg_u32 s{sSIG}, 4", " s_cbranch_scc1 L_B2"]
    emit(out, MID)
    out += [" s_branch L_B2", ".p2align 6", "L_B1:"]
    emit(out, B1)
    out += [f" s_add_u32 s{sSIG}, s{sSIG}, 1", f" s_cmp_eq_u32 s{sSIG}, 3", " s_cbranch_scc1 L_B2", f" s_cmp_lg_u32 s{sSIG}, 8", " s_cbranch_scc1 L_B1"]
    emit(out, EP)
    out += [f" s_sub_u32 s{sNT}, s{sNT}, 1", f" s_cmp_lg_u32 s{sNT}, 0", " s_cbranch_scc1 L_TILE", " s_waitcnt vmcnt(0) lgkmcnt(0)"]
    if o.get("trace"): emit(out, TRC() + TRC()[:4] + [I("s_waitcnt vmcnt(0)")])
    out += ["L_END:", " s_endpgm"]
    if o.get("haz"):
        import hazchk
        lin = []; emit(lin, seq[:30000]); print("hazards", hazchk.check(lin), "pool hi", unit_stream(1)[1], unit_stream(2)[1], "NVG", NVG, "ACCV", ACCV)
    return out

def main():
    o = {}
    for s in sys.argv[2:]:
        k, _, v = s.partition("=")
        o[k] = eval(v) if v else 1
    CW.update(o.get("cw", {})); CFG.update(o.get("cfg", {}))
    layout()
    out = [HEADER, *["; @launch kernel=wprep_kernel grid=(256,1,1) block=(256,1,1) lds=0"] * o.get("nprep", 1),
           f"; @launch kernel={NAME}_kernel grid=(256,1,1) block=(256,1,1) lds={LDS_BYTES}",
           '.amdgcn_target "amdgcn-amd-amdhsa--gfx950"', ".text"]
    out += gen_main(o)
    out += wprep_kernel_text(o)
    out.append('.section .rodata,"a"')
    out += kd(NAME + "_kernel", 512, 102, 256) + kd("wprep_kernel", 112, 102, 112)
    open(sys.argv[1], "w").write("\n".join(out) + "\n")

if __name__ == "__main__":
    main()
```

```python
import sys, math
sys.path.insert(0, "tools")
import gen3 as G
from gen3 import I, icost, resolve, emit, hx, R, P2, NAME, kd, Pool, CW

HEADER = """; Kernarg layout for this problem (40 bytes, ptrs only, base s[0:1]):
; Launch 2: persistent kernel: input transform (VALU) -> LDS -> MFMA, output transform, tanh*sigmoid."""
WSLICE = 2 * 16 * 16 * 1024
LDS_BYTES = 131072
S_X, S_W, S_O = 16, 20, 24
sWAVE, sET, sNT, sSIG, sUN, sXO = 28, 29, 30, 31, 32, 33
sMASK, sCL, sWI, sWIH, sDX = 34, 35, 36, 37, 38
sK425, sK5, sK525, sK125, sKQ = 39, 40, 41, 42, 43
sT0, sT1, sT2 = 44, 45, 46
sM768, sROW, s256, s2048, sWNEG = 47, 48, 58, 59, 84
sC = 60
sHALF, sP01, sP02, sM4, sP6, sP43 = 72, 74, 76, 78, 80, 82
sPDG, sPPART = 91, 92
sPFO = 85
vPF, vJ = 108, 109
S_WI, S_WO = 64, 68
vWOFF, vXM, vXH, vX2, vXMn, vXHn, vTR, vTW, vOUT, vOUT2 = 1, 2, 3, 4, 5, 6, 7, 8, 9, 10
vLANE = 11
CFG = dict(NOUTQ=4, NPOOL=40, NRAW=10, NT=4)
def layout():
    global OUTQ, POOL, FREE, NFREE, RAWB, NRAW, ACCV, NVG, AW, NTR
    OUTQ = 12; n = OUTQ + 4 * CFG["NOUTQ"]
    POOL = list(range(n, n + CFG["NPOOL"])); n += CFG["NPOOL"]
    FREE = 12; NFREE = n - 12
    RAWB = n; NRAW = CFG["NRAW"]; n += 4 * NRAW
    NVG = (256 - n) // 16; ACCV = 256 - 16 * NVG
    AW = 16 * (16 - NVG); NTR = CFG["NT"]
    assert AW + 128 + 4 * NTR <= 256, (AW, NVG)
    for k in ("sWAVE", "sET", "sT0", "sT1", "sT2", "vLANE", "POOL"): setattr(G, k, globals()[k])
def acc(jq, kk, eb):
    g = jq * 4 + eb
    return ("v", ACCV + g * 16 + kk * 4) if g < NVG else ("a", (g - NVG) * 16 + kk * 4)
def Wr(n, eb): return R("a", AW + ((n % 8) * 4 + eb) * 4)
def Tr(s): return R("a", AW + 128 + s * 4)
def raw(s): return RAWB + 4 * s
def urows(typ): return list(range(1, 19)) if typ == 1 else list(range(20))
NPRE = lambda: min(NRAW, 10)

def xl_own(typ, k, dst=None, tag=None):
    row = urows(typ)[k]; r = raw(k % NRAW) if dst is None else dst
    return I(f"buffer_load_dwordx4 v[{r}:{r+3}], v{vXH if row < 4 else vXM}, s[{S_X}:{S_X+3}], s{sROW+row//2} offen offset:{(row&1)*2048}{CFG.get('xfl', '')}",
             "vm", ("X", k % NRAW) if tag is None else tag)
def xl_next(k):
    r = raw(k); va = vXH if k < 3 else (vX2 if k == 3 else vXM)
    L = [I(f"buffer_load_dwordx4 v[{r}:{r+3}], v{va}, s[{S_X}:{S_X+3}], s{sXO} offen offset:{(k&1)*2048}{CFG.get('xfl', '')}", "vm", ("X", k))]
    if k & 1: L.append(I(f"s_add_u32 s{sXO}, s{sXO}, 4096"))
    return L
_l = [0]
def switch_ops():
    _l[0] += 1; L = f"LS{_l[0]}"
    return [I(s) for s in (
        f"s_add_u32 s{sUN}, s{sUN}, 1", f"s_and_b32 s{sT0}, s{sUN}, 3", f"s_cmp_eq_u32 s{sT0}, 0",
        f"s_cselect_b32 s{sDX}, s{sM768}, s{s256}",
        f"v_add_u32 v{vXM}, s{sDX}, v{vXM}", f"v_add_u32 v{vXH}, s{sDX}, v{vXH}",
        f"s_cmp_lg_u32 s{sUN}, 8", f"s_cbranch_scc1 {L}_a",
        f"s_mov_b32 s{sUN}, 0", f"v_mov_b32 v{vXM}, v{vXMn}", f"v_mov_b32 v{vXH}, v{vXHn}", f"{L}_a:",
        f"s_cmp_lt_u32 s{sUN}, 4", f"s_cselect_b32 s{sXO}, s{s2048}, 0",
        f"v_mov_b32 v{vX2}, v{vXM}", f"s_cbranch_scc1 {L}_b", f"v_mov_b32 v{vX2}, v{vXH}", f"{L}_b:")]

def unit_stream(typ):
    S = []; pool = Pool(POOL); nrows = len(urows(typ)); pend = []; hi = [0]
    def op(s, kind=None, tag=None):
        S.append([I(s, kind, tag, needs=pend[:])]); pend.clear()
    def get(n=1):
        r = [pool.get() for _ in range(n)]; hi[0] = max(hi[0], len(POOL) - len(pool.free)); return r
    freed = set(); ld = [NPRE()]
    def lastocc(slot, before):
        c = [r for r in range(before) if r % NRAW == slot]
        return max(c) if c else None
    def consumed(*ks):
        freed.update(ks)
        while True:
            n = ld[0]
            if n < nrows:
                p = lastocc(n % NRAW, n)
                if p is not None and p not in freed: break
                S.append([xl_own(typ, n)])
            else:
                kk = n - nrows
                if kk >= NPRE() or lastocc(kk, nrows) not in freed: break
                if kk == 0: S.append(switch_ops())
                S.append(xl_next(kk))
            ld[0] += 1
    consumed()
    def unp(k, dw):
        d = get(2); s = raw(k % NRAW) + dw
        op(f"v_lshlrev_b32 v{d[0]}, 16, v{s}"); op(f"v_and_b32 v{d[1]}, s{sMASK}, v{s}")
        return d
    def need(*ks): pend.extend(("vm", ("X", k % NRAW)) for k in ks)
    def each(f):
        for h in range(2): op(f(h))
    pendw = []
    def tw(jq, flush=False):
        for kk in range(4):
            q = OUTQ + 4 * (kk % CFG["NOUTQ"])
            pendw.append(f"ds_write_b128 v{vTW}, v[{q}:{q+3}] offset:{(kk*4+jq)*1024}")
        if flush or not CFG.get("spreadw", 1):
            while pendw: S.append([I(pendw.pop(0), "lg", "TW")])
    _op = op; cnt = [0]
    def op(s, kind=None, tag=None):
        if pendw and s.startswith("v_cvt"):
            while pendw: S.append([I(pendw.pop(0), "lg", "TW")])
        _op(s, kind, tag); cnt[0] += 1
        if pendw and cnt[0] % CFG.get("wsp", 7) == 0: S.append([I(pendw.pop(0), "lg", "TW")])
    cv = lambda kk, dw, r: op(f"v_cvt_pk_bf16_f32 v{OUTQ+4*kk+dw}, v{r[0]}, v{r[1]}")
    if typ == 1:
        c1 = [None] * 4; c2 = [None] * 4
        need(0, 1)
        for dw in range(4):
            c1[dw] = unp(0, dw); c2[dw] = unp(1, dw)
        consumed(0, 1)
        for jq in range(4):
            k = 2 + 4 * jq
            need(k, k + 1, k + 2, k + 3)
            for dw in range(4):
                d3, d4, d5, d6 = [unp(k + i, dw) for i in range(4)]
                if dw == 3: consumed(k, k + 1, k + 2, k + 3)
                d1, d2 = c1[dw], c2[dw]
                e1 = get(2); o1 = get(2)
                each(lambda h: f"v_fma_f32 v{e1[h]}, s{sK425}, v{d4[h]}, v{d6[h]}")
                each(lambda h: f"v_fma_f32 v{o1[h]}, s{sK425}, v{d3[h]}, v{d5[h]}")
                each(lambda h: f"v_fma_f32 v{d4[h]}, s{sK5}, v{d4[h]}, v{d6[h]}")
                each(lambda h: f"v_fma_f32 v{d3[h]}, s{sK5}, v{d3[h]}, v{d5[h]}")
                each(lambda h: f"v_add_f32 v{e1[h]}, v{e1[h]}, v{d2[h]}")
                each(lambda h: f"v_add_f32 v{o1[h]}, v{o1[h]}, v{d1[h]}")
                each(lambda h: f"v_fmac_f32 v{d4[h]}, 4.0, v{d2[h]}")
                each(lambda h: f"v_fmac_f32 v{d3[h]}, 4.0, v{d1[h]}")
                each(lambda h: f"v_add_f32 v{d1[h]}, v{e1[h]}, v{o1[h]}")
                each(lambda h: f"v_sub_f32 v{e1[h]}, v{e1[h]}, v{o1[h]}")
                each(lambda h: f"v_fma_f32 v{d2[h]}, 0.5, v{d3[h]}, v{d4[h]}")
                each(lambda h: f"v_fma_f32 v{d4[h]}, -0.5, v{d3[h]}, v{d4[h]}")
                cv(0, dw, d1); cv(1, dw, e1); cv(2, dw, d2); cv(3, dw, d4)
                pool.put(*d1, *d2, *e1, *o1, *d3, *d4)
                c1[dw], c2[dw] = d5, d6
            tw(jq, jq == 3)
        for dw in range(4): pool.put(*c1[dw], *c2[dw])
    else:
        A0 = [None] * 4; A7 = [None] * 4; C2 = [None] * 4; B3 = [None] * 4
        def carries(dw, d4, d5, d6, d7):
            each(lambda h: f"v_fmac_f32 v{d5[h]}, s{sK5}, v{d7[h]}")
            each(lambda h: f"v_fma_f32 v{d4[h]}, -s{sK525}, v{d6[h]}, v{d4[h]}")
            each(lambda h: f"v_fma_f32 v{d7[h]}, s{sKQ}, v{d7[h]}, -v{d5[h]}")
            A0[dw], A7[dw], C2[dw], B3[dw] = d4, d7, d6, d5
        need(0, 1, 2, 3)
        for dw in range(4):
            d = [unp(i, dw) for i in range(4)]
            if dw == 3: consumed(0, 1, 2, 3)
            carries(dw, *d)
        for jq in range(4):
            k = 4 + 4 * jq
            need(k, k + 1, k + 2, k + 3)
            for dw in range(4):
                d4, d5, d6, d7 = [unp(k + i, dw) for i in range(4)]
                if dw == 3: consumed(k, k + 1, k + 2, k + 3)
                a0, a7, c2, b3 = A0[dw], A7[dw], C2[dw], B3[dw]
                each(lambda h: f"v_fma_f32 v{c2[h]}, s{sKQ}, v{c2[h]}, v{d6[h]}")
                each(lambda h: f"v_fma_f32 v{b3[h]}, s{sKQ}, v{b3[h]}, v{d5[h]}")
                each(lambda h: f"v_fmac_f32 v{a0[h]}, s{sK525}, v{d4[h]}")
                each(lambda h: f"v_fma_f32 v{a7[h]}, -s{sK525}, v{d5[h]}, v{a7[h]}")
                each(lambda h: f"v_fmac_f32 v{c2[h]}, s{sK125}, v{d4[h]}")
                each(lambda h: f"v_sub_f32 v{a0[h]}, v{a0[h]}, v{d6[h]}")
                each(lambda h: f"v_add_f32 v{a7[h]}, v{a7[h]}, v{d7[h]}")
                each(lambda h: f"v_fma_f32 v{b3[h]}, 2.0, v{b3[h]}, v{c2[h]}")
                cv(2, dw, a0); cv(3, dw, a7)
                each(lambda h: f"v_fma_f32 v{c2[h]}, 2.0, v{c2[h]}, -v{b3[h]}")
                cv(0, dw, b3); cv(1, dw, c2)
                pool.put(*a0, *a7, *c2, *b3)
                if jq < 3: carries(dw, d4, d5, d6, d7)
                else: pool.put(*d4, *d5, *d6, *d7)
            tw(jq, jq == 3)
    assert len(pool.free) == len(POOL)
    return S, hi[0]

def tread(f):
    f %= 64
    return I(f"ds_read_b128 {Tr(f % NTR)}, v{vTR} offset:{f*1024}", "lg", ("T", f % NTR), cls="T")
def wload(n, eb):
    if CFG.get("wdma"):
        return I(f"buffer_load_dwordx4 v{vWOFF}, s[{S_W}:{S_W+3}], s{sROW + n % 8} offen offset:{eb*1024} lds", "vm", ("W", n % 8, eb), cls="W")
    if CFG.get("wdw"):
        return I(f"buffer_load_dword a{AW + ((n % 8) * 4 + eb) * 4}, v{vWOFF}, s[{S_W}:{S_W+3}], s{sROW + n % 8} offen offset:{eb*1024}", "vm", ("W", n % 8, eb), cls="W")
    if CFG.get("wd2"):
        return I(f"buffer_load_dwordx2 {R('a', AW + ((n % 8) * 4 + eb) * 4, 2)}, v{vWOFF}, s[{S_W}:{S_W+3}], s{sROW + n % 8} offen offset:{eb*1024}", "vm", ("W", n % 8, eb), cls="W")
    return I(f"buffer_load_dwordx4 {Wr(n, eb)}, v{vWOFF}, s[{S_W}:{S_W+3}], s{sROW + n % 8} offen offset:{eb*1024}{CFG.get('wfl', '')}", "vm", ("W", n % 8, eb), cls="W")
def bar_ops():
    return [I("s_barrier", needs=[("lg", "TW")]), I(f"v_xor_b32 v{vTR}, 0x10000, v{vTR}"), I(f"v_xor_b32 v{vTW}, 0x10000, v{vTW}")]

def body(typ, first, o):
    BARM = 256 - 4 * NTR + 3
    fixed = [[] for _ in range(256)]
    fixed[BARM] += bar_ops()
    for f in range(64): fixed[((f - NTR) * 4 + 3) % 256].append(tread(f))
    wp = o.get("wpos", (1, 5, 9, 13))
    for n in range(16):
        for eb in range(4):
            m = (16 * n + 16 + wp[eb]) % 256
            if n % 8 == 0 and eb == 0:
                if n == 8:
                    fixed[m] += [I(f"s_cmp_eq_u32 s{sSIG}, 7"), I(f"s_cselect_b32 s{sWI}, s{sWNEG}, s{sROW+8}"), I(f"s_cselect_b32 s{sWIH}, -1, 0"),
                                 I(f"s_add_u32 s{S_W}, s{S_W}, s{sWI}"), I(f"s_addc_u32 s{S_W+1}, s{S_W+1}, s{sWIH}")]
                else:
                    fixed[m] += [I(f"s_add_u32 s{S_W}, s{S_W}, 32768"), I(f"s_addc_u32 s{S_W+1}, s{S_W+1}, 0")]
            fixed[m].append(wload(n, eb))
    if typ == 2 and o.get("pf", 1):
        fixed[o.get("pfm", 62)] += [I(f"buffer_load_dword v{vJ}, v{vPF}, s[{S_X}:{S_X+3}], s{sPFO} offen{o.get('pffl', '')}", "vm"), I(f"s_add_u32 s{sPFO}, s{sPFO}, 8192")]
    S, _ = unit_stream(typ)
    c = lambda g: sum(icost(i) for i in g if not i.s.endswith(":"))
    load = [c(fixed[m]) for m in range(256)]
    st, en = 0, BARM - 1 - o.get("endm", 2)
    tot = sum(map(c, S)); lo, hi = 0.0, 100.0
    for _ in range(50):
        L = (lo + hi) / 2
        if sum(max(0.0, L - load[m]) for m in range(st, en + 1)) < tot: lo = L
        else: hi = L
    out = []; k = 0; done = 0.0; tgt = 0.0
    XG = o.get("xg", 8); xq = []; lastx = -99
    isx = lambda g: g[0].s.startswith("buffer_load") or g[0].s.startswith(f"s_add_u32 s{sUN}")
    for m in range(256):
        f, eb = m >> 2, m & 3
        cp, kk, jq = f >> 4, (f >> 2) & 3, f & 3
        n = f >> 2
        t, b = acc(jq, kk, eb)
        needs = []
        if eb == 0: needs.append(("lg", ("T", f % NTR)))
        if jq == 0 and eb == 0: needs.append(("vm", ("W", n % 8, 3)))
        out.append(I(f"v_mfma_f32_16x16x32_bf16 {R(t, b)}, {Wr(n, eb)}, {Tr(f % NTR)}, {'0' if first and cp == 0 else R(t, b)}", needs=needs))
        out += fixed[m]
        if xq and ((m % 4 == o.get("xph", 3) and m - lastx >= XG) or m == 255):
            out += xq.pop(0); lastx = m
            if m == 255:
                while xq: out += xq.pop(0)
        if m <= en:
            tgt += max(0.0, hi - load[m])
            while k < len(S) and (done + c(S[k]) / 2 <= tgt or m == en):
                if XG and isx(S[k]): xq.append(S[k])
                else: out += S[k]
                done += c(S[k]); k += 1
    if o.get("drop"):
        for i in out:
            if any(i.s.startswith(d) for d in o["drop"]): i.s = "NOP"
    return out

PKC = lambda r: f"s[{r}:{r+1}]"
def mid(o):
    L = [I("s_nop 7")]; a = lambda s: L.append(I(s))
    def tr(groups):
        W = [(b + x, b + 4 + x, b + 8 + x, b + 12 + x, t + x, t + 4 + x) for b, t in groups for x in (0, 2)]
        for z0, z1, z2, z3, t0, t1 in W: a(f"v_pk_add_f32 {P2(t0)}, {P2(z0)}, {P2(z1)}")
        for z0, z1, z2, z3, t0, t1 in W: a(f"v_pk_add_f32 {P2(t1)}, {P2(z2)}, {P2(z3)}")
        for z0, z1, z2, z3, t0, t1 in W: a(f"v_pk_add_f32 {P2(z0)}, {P2(z0)}, {P2(z1)} neg_lo:[0,1] neg_hi:[0,1]")
        for z0, z1, z2, z3, t0, t1 in W: a(f"v_pk_add_f32 {P2(z1)}, {P2(z2)}, {P2(z3)} neg_lo:[0,1] neg_hi:[0,1]")
        for z0, z1, z2, z3, t0, t1 in W: a(f"v_pk_fma_f32 {P2(z2)}, {P2(t1)}, {PKC(sHALF)}, {P2(t0)} op_sel_hi:[1,0,1]")
        for z0, z1, z2, z3, t0, t1 in W: a(f"v_pk_fma_f32 {P2(z3)}, {P2(z0)}, {PKC(sM4)}, {P2(z1)} op_sel_hi:[1,0,1] neg_lo:[0,0,1] neg_hi:[0,0,1]")
        for z0, z1, z2, z3, t0, t1 in W: a(f"v_pk_fma_f32 {P2(t0)}, {P2(t1)}, {PKC(sP01)}, {P2(t0)} op_sel_hi:[1,0,1]")
        for z0, z1, z2, z3, t0, t1 in W: a(f"v_pk_fma_f32 {P2(t1)}, {P2(z1)}, {PKC(sP02)}, {P2(z0)} op_sel_hi:[1,0,1]")
        for z0, z1, z2, z3, t0, t1 in W: a(f"v_pk_fma_f32 {P2(z0)}, {P2(t1)}, 2.0, {P2(t0)} op_sel_hi:[1,0,1]")
        for z0, z1, z2, z3, t0, t1 in W: a(f"v_pk_fma_f32 {P2(z1)}, {P2(t1)}, -2.0, {P2(t0)} op_sel_hi:[1,0,1]")
    vg = [ACCV + 16 * g for g in range(NVG)]
    for n in range(0, NVG, 3): tr([(b, FREE + 8 * i) for i, b in enumerate(vg[n:n + 3])])
    ag = [16 * g for g in range(16 - NVG)]
    for n in range(0, len(ag), 2):
        grp = ag[n:n + 2]
        for i, b in enumerate(grp):
            for x in range(16): a(f"v_accvgpr_read_b32 v{FREE+24*i+x}, a{b+x}")
        tr([(FREE + 24 * i, FREE + 24 * i + 16) for i in range(len(grp))])
        for i, b in enumerate(grp):
            for x in range(16): a(f"v_accvgpr_write_b32 a{b+x}, v{FREE+24*i+x}")
    a("s_nop 1")
    return L

def epilogue(o):
    L = [I("s_nop 7")]; a = lambda s, kind=None: L.append(I(s, kind))
    for jq in range(4):
        base = []
        for eb in range(4):
            t, b = acc(jq, 0, eb)
            if t == "a":
                nb = acc(jq - 2, 0, eb)[1]
                for x in range(16): a(f"v_accvgpr_read_b32 v{nb+x}, a{b+x}")
                b = nb
            base.append(b)
        W = [(b + x, b + 4 + x, b + 8 + x, b + 12 + x) for b in base for x in (0, 2)]
        for z0, z1, z2, z3 in W: a(f"v_pk_add_f32 {P2(z0)}, {P2(z0)}, {P2(z1)}")
        for z0, z1, z2, z3 in W: a(f"v_pk_fma_f32 {P2(z1)}, {P2(z1)}, -2.0, {P2(z0)} op_sel_hi:[1,0,1]")
        for z0, z1, z2, z3 in W: a(f"v_pk_fma_f32 {P2(z2)}, {P2(z0)}, {PKC(sP6)}, {P2(z2)} op_sel_hi:[1,0,1]")
        for z0, z1, z2, z3 in W: a(f"v_pk_fma_f32 {P2(z3)}, {P2(z1)}, {PKC(sP43)}, {P2(z3)} op_sel_hi:[1,0,1]")
        for oidx, (kk, cs) in enumerate(((2, 0), (1, 1), (0, 2), (3, 0))):
            j = 4 * jq + oidx
            regs = [b + 4 * kk for b in base]
            prs = [(regs[h] + 2 * p, regs[2 + h] + 2 * p) for h in range(2) for p in range(2)]
            c1, c2 = sC + 4 * cs, sC + 4 * cs + 2
            for f, g in prs: a(f"v_pk_mul_f32 {P2(f)}, {P2(f)}, {PKC(c1)} op_sel_hi:[1,0]")
            for f, g in prs: a(f"v_pk_mul_f32 {P2(g)}, {P2(g)}, {PKC(c2)} op_sel_hi:[1,0]")
            for f, g in prs: a(f"v_min_f32 v{f}, s{sCL}, v{f}"); a(f"v_min_f32 v{f+1}, s{sCL}, v{f+1}")
            for f, g in prs: a(f"v_exp_f32 v{g}, v{g}"); a(f"v_exp_f32 v{g+1}, v{g+1}")
            for f, g in prs: a(f"v_exp_f32 v{f}, v{f}"); a(f"v_exp_f32 v{f+1}, v{f+1}")
            for f, g in prs: a(f"v_pk_fma_f32 {P2(f)}, {P2(f)}, {PKC(sHALF)}, {PKC(sHALF)} op_sel_hi:[1,0,0]")
            for f, g in prs: a(f"v_pk_fma_f32 {P2(g)}, {P2(f)}, {P2(g)}, {P2(f)}")
            for f, g in prs: a(f"v_rcp_f32 v{g}, v{g}"); a(f"v_rcp_f32 v{g+1}, v{g+1}")
            a("s_nop 0")
            for f, g in prs: a(f"v_pk_fma_f32 {P2(f)}, {P2(f)}, {P2(g)}, {P2(g)} neg_lo:[0,0,1] neg_hi:[0,0,1]")
            oq = regs[2]
            for n in range(4): a(f"v_cvt_pk_bf16_f32 v{oq+n}, v{regs[0]+n}, v{regs[1]+n}")
            if not o.get("nost"): a(f"buffer_store_dwordx4 v[{oq}:{oq+3}], v{vOUT}, s[{S_O}:{S_O+3}], s{sROW + j//2} offen offset:{(j&1)*2048}{o.get('stflag', ' nt')}", "vm")
    a(f"v_mov_b32 v{vOUT}, v{vOUT2}")
    return L

class Em:
    def __init__(self): self.L = []
    def __call__(self, s, kind=None, tag=None, needs=()): self.L.append(I(s, kind, tag, needs))

def tile_setup_x(a, sTT, vxm, vxh):
    t = POOL
    a(f"s_lshl_b32 s{sT0}, s{sTT}, 8"); a(f"s_and_b32 s{sT1}, s{sWAVE}, 1"); a(f"s_lshl_b32 s{sT2}, s{sT1}, 7"); a(f"s_add_u32 s{sT0}, s{sT0}, s{sT2}")
    a(f"v_lshrrev_b32 v{t[0]}, 3, v{vLANE}"); a(f"v_lshlrev_b32 v{t[1]}, 4, v{t[0]}"); a(f"v_add_u32 v{t[1]}, s{sT0}, v{t[1]}")
    G.rowbytes(a, t[1], t[2], t[3])
    a(f"s_mul_i32 s{sT1}, s{sT1}, 3")
    a(f"v_and_b32 v{t[3]}, 7, v{vLANE}"); a(f"v_xor_b32 v{t[3]}, s{sT1}, v{t[3]}"); a(f"v_lshlrev_b32 v{t[3]}, 4, v{t[3]}")
    a(f"s_lshr_b32 s{sT1}, s{sWAVE}, 1"); a(f"s_lshl_b32 s{sT1}, s{sT1}, 7")
    a(f"v_add3_u32 v{vxm}, v{t[2]}, v{t[3]}, s{sT1}")
    a(f"v_mov_b32 v{vxh}, v{vxm}"); a(f"v_mov_b32 v{t[4]}, 0x70000000")
    for thr in (0, 8000, 16000, 24000):
        a(f"v_cmp_eq_u32 vcc, {thr}, v{t[1]}"); a("s_nop 1"); a(f"v_cndmask_b32 v{vxh}, v{vxh}, v{t[4]}, vcc")

def unit0_special(a, late):
    RB = ACCV
    pool = Pool(list(range(ACCV + 72, 256, 2)) + list(range(POOL[0], POOL[-1], 2)))
    K425, K5 = sP01, sP02
    a(f"s_mov_b32 s{K425}, {hx(-4.25)}"); a(f"s_mov_b32 s{K5}, {hx(-5.0)}")
    def unp(k, nd=()):
        d = [pool.get() for _ in range(4)]
        for x in range(4):
            a(f"v_lshlrev_b32 v{d[x]}, 16, v{RB+4*k+x}", needs=nd if x == 0 else ()); a(f"v_and_b32 v{d[x]+1}, s{sMASK}, v{RB+4*k+x}")
        return d
    pk = lambda f: [a(f(x)) for x in range(4)]
    d1 = unp(0, [("vm", ("X0", 1))]); d2 = unp(1)
    a.L += late[0]
    for jq in range(4):
        k = 2 + 4 * jq
        d3 = unp(k, [("vm", ("X0", k + 1))]); d4 = unp(k + 1); d5 = unp(k + 2, [("vm", ("X0", k + 3))]); d6 = unp(k + 3)
        a.L += late[jq + 1]
        e1 = [pool.get() for _ in range(4)]; o1 = [pool.get() for _ in range(4)]
        pk(lambda x: f"v_pk_fma_f32 {P2(e1[x])}, {P2(d4[x])}, {PKC(K425)}, {P2(d6[x])} op_sel_hi:[1,0,1]")
        pk(lambda x: f"v_pk_fma_f32 {P2(o1[x])}, {P2(d3[x])}, {PKC(K425)}, {P2(d5[x])} op_sel_hi:[1,0,1]")
        pk(lambda x: f"v_pk_fma_f32 {P2(d4[x])}, {P2(d4[x])}, {PKC(K5)}, {P2(d6[x])} op_sel_hi:[1,0,1]")
        pk(lambda x: f"v_pk_fma_f32 {P2(d3[x])}, {P2(d3[x])}, {PKC(K5)}, {P2(d5[x])} op_sel_hi:[1,0,1]")
        pk(lambda x: f"v_pk_add_f32 {P2(e1[x])}, {P2(e1[x])}, {P2(d2[x])}")
        pk(lambda x: f"v_pk_add_f32 {P2(o1[x])}, {P2(o1[x])}, {P2(d1[x])}")
        pk(lambda x: f"v_pk_fma_f32 {P2(d4[x])}, {P2(d2[x])}, 4.0, {P2(d4[x])} op_sel_hi:[1,0,1]")
        pk(lambda x: f"v_pk_fma_f32 {P2(d3[x])}, {P2(d1[x])}, 4.0, {P2(d3[x])} op_sel_hi:[1,0,1]")
        pk(lambda x: f"v_pk_add_f32 {P2(d1[x])}, {P2(e1[x])}, {P2(o1[x])}")
        pk(lambda x: f"v_pk_add_f32 {P2(e1[x])}, {P2(e1[x])}, {P2(o1[x])} neg_lo:[0,1] neg_hi:[0,1]")
        pk(lambda x: f"v_pk_fma_f32 {P2(d2[x])}, {P2(d3[x])}, 0.5, {P2(d4[x])} op_sel_hi:[1,0,1]")
        pk(lambda x: f"v_pk_fma_f32 {P2(d4[x])}, {P2(d3[x])}, -0.5, {P2(d4[x])} op_sel_hi:[1,0,1]")
        for kk, r in enumerate((d1, e1, d2, d4)):
            q = OUTQ + 4 * kk
            pk(lambda x: f"v_cvt_pk_bf16_f32 v{q+x}, v{r[x]}, v{r[x]+1}")
            a(f"ds_write_b128 v{vTW}, v[{q}:{q+3}] offset:{(kk*4+jq)*1024}", "lg", "TW")
        pool.put(*d1, *d2, *e1, *o1, *d3, *d4)
        d1, d2 = d5, d6

def wprep_kernel_text(o={}):
    a = Em(); p = [4, 5, 6, 7]
    a(".globl wprep_kernel"); a(".p2align 8"); a(".type wprep_kernel,@function"); a("wprep_kernel:")
    a("s_cmp_ge_u32 s2, 256"); a("s_cbranch_scc1 WP_END")
    a("s_load_dwordx4 s[4:7], s[0:1], 0"); a("s_load_dwordx2 s[12:13], s[0:1], 32")
    a("v_lshrrev_b32 v1, 6, v0"); a("v_and_b32 v2, 63, v0"); a("s_nop 0"); a(f"v_readfirstlane_b32 s{sPPART}, v1")
    npf = o.get("wpf", 0)
    if npf:
        a("s_and_b32 s80, s2, 7"); a("s_lshr_b32 s81, s2, 3"); a("s_and_b32 s82, s80, 1"); a("s_lshl_b32 s82, s82, 1")
        a("s_and_b32 s84, s81, 1"); a("s_add_u32 s84, s84, s82")
        a("s_lshr_b32 s80, s80, 1"); a("s_lshr_b32 s81, s81, 1"); a("s_mul_i32 s82, s80, 31")
        a("s_and_b32 s83, s84, 1"); a("s_sub_u32 s83, 3, s83"); a("s_cmp_gt_u32 s80, s83"); a("s_cselect_b32 s83, 1, 0")
        a("s_add_u32 s82, s82, s83"); a("s_add_u32 s82, s82, s81")
        a("s_lshl_b32 s82, s82, 8"); a("s_lshl_b32 s84, s84, 6"); a("s_add_u32 s82, s82, s84")
        a("v_lshrrev_b32 v108, 2, v0"); a("v_add_u32 v108, s82, v108")
        G.rowbytes(a, 108, 109, 110)
        a("v_and_b32 v108, 3, v0"); a("v_lshl_add_u32 v109, v108, 7, v109"); a("s_mov_b32 s84, 0")
    a(f"s_and_b32 s{sET}, s2, 3"); a(f"s_lshr_b32 s{sPDG}, s2, 2"); a(f"s_mov_b32 s{sMASK}, 0xffff0000")
    a(f"v_lshrrev_b32 v{p[0]}, 1, v2"); a(f"v_lshlrev_b32 v{p[0]}, 2, v{p[0]}"); a(f"v_and_b32 v{p[3]}, 1, v2")
    a(f"v_lshl_add_u32 v{p[0]}, v{p[3]}, 13, v{p[0]}"); a(f"v_add_u32 v{p[1]}, 4096, v{p[0]}")
    a(f"v_lshrrev_b32 v{p[2]}, 5, v2"); a(f"v_lshlrev_b32 v{p[2]}, 19, v{p[2]}"); a(f"v_lshl_add_u32 v{p[2]}, v{p[3]}, 3, v{p[2]}")
    a(f"v_bfe_u32 v{p[3]}, v2, 1, 4"); a(f"v_lshl_add_u32 v{p[2]}, v{p[3]}, 4, v{p[2]}")
    SB = list(range(72, 80))
    a(f"s_lshr_b32 s{sT0}, s{sPPART}, 1"); a(f"s_lshl_b32 s{sT1}, s{sT0}, 10"); a(f"s_lshl_b32 s{sT2}, s{sET}, 8")
    a(f"s_add_u32 s{sT1}, s{sT1}, s{sT2}"); a(f"s_and_b32 s{sT2}, s{sPPART}, 1"); a(f"s_lshl_b32 s{sT2}, s{sT2}, 7")
    a(f"s_add_u32 s{sT1}, s{sT1}, s{sT2}"); a(f"s_lshl_b32 s{sT2}, s{sPDG}, 14"); a(f"s_add_u32 s{SB[0]}, s{sT1}, s{sT2}")
    for i in range(1, 5): a(f"s_add_u32 s{SB[i]}, s{SB[0]}, {i*1048576}")
    a("s_waitcnt lgkmcnt(0)")
    a(f"s_mov_b32 s{S_WI}, s6"); a(f"s_and_b32 s{S_WI+1}, s7, 0xffff"); a(f"s_mov_b32 s{S_WI+2}, 5242880"); a(f"s_mov_b32 s{S_WI+3}, 0x00020000")
    a(f"s_mov_b32 s{S_WO}, s12"); a(f"s_and_b32 s{S_WO+1}, s13, 0xffff"); a(f"s_mov_b32 s{S_WO+2}, {16*WSLICE}"); a(f"s_mov_b32 s{S_WO+3}, 0x00020000")
    WR = 8; TP = 28; RS = 52; OUT = 76
    for m in range(4):
        for i in range(5):
            a(f"buffer_load_dword v{WR+m*5+i}, v{p[m//2]}, s[{S_WI}:{S_WI+3}], s{SB[i]} offen offset:{(m&1)*2048}")
    if npf:
        a(f"s_mov_b32 s{S_X}, s4"); a(f"s_and_b32 s{S_X+1}, s5, 0xffff"); a(f"s_mov_b32 s{S_X+2}, 32768000"); a(f"s_mov_b32 s{S_X+3}, 0x00020000")
        for n in range(npf): a(f"buffer_load_dword v{110+n}, v109, s[{S_X}:{S_X+3}], s84 offen offset:{512*n}")
    a(f"s_lshl_b32 s{sT1}, s{sET}, 1"); a(f"s_and_b32 s{sT0}, s{sPPART}, 1"); a(f"s_add_u32 s{sT1}, s{sT1}, s{sT0}"); a(f"s_lshl_b32 s{sT1}, s{sT1}, 20")
    a(f"s_lshr_b32 s{sT0}, s{sPPART}, 1"); a(f"s_lshl_b32 s{sT0}, s{sT0}, 11"); a(f"s_add_u32 s{sT1}, s{sT1}, s{sT0}")
    a(f"s_lshr_b32 s{sT0}, s{sPDG}, 2"); a(f"s_lshl_b32 s{sT0}, s{sT0}, 14"); a(f"s_add_u32 s{sT1}, s{sT1}, s{sT0}")
    a(f"s_and_b32 s{sT0}, s{sPDG}, 3"); a(f"s_lshl_b32 s{sT0}, s{sT0}, 8"); a(f"s_add_u32 s48, s{sT1}, s{sT0}")
    for k in range(1, 8): a(f"s_add_u32 s{48+k}, s48, {(k//4)*262144 + (k%4)*4096}")
    CS = dict(q=80, s16=82, m6=84, f43=86, f23=88, f15=90, f215=92, x16=94)
    for k, v in dict(q=0.25, s16=1 / 16, m6=-1 / 6, f43=4 / 3, f23=2 / 3, f15=1 / 15, f215=2 / 15, x16=16.0).items(): a(f"s_mov_b32 s{CS[k]}, {hx(v)}")
    a("s_mov_b32 s96, 0x05040100"); a("s_mov_b32 s97, 0x07060302")
    C = lambda k: PKC(CS[k])
    for m in range(4):
        if m % 2 == 0: a(f"s_waitcnt vmcnt({10 - 5*m + npf})")
        g = [TP + 2 * i for i in range(5)]; E1, O1, Eh, Oh, E2, O2 = [TP + 10 + 2 * i for i in range(6)]
        for i in range(5):
            a(f"v_lshlrev_b32 v{g[i]}, 16, v{WR+m*5+i}"); a(f"v_and_b32 v{g[i]+1}, s{sMASK}, v{WR+m*5+i}")
        W = [RS + 12 * (m & 1) + 2 * k for k in range(6)]
        h1 = "op_sel_hi:[1,0,1]"; ng = " neg_lo:[0,0,1] neg_hi:[0,0,1]"
        a(f"v_pk_add_f32 {P2(E1)}, {P2(g[0])}, {P2(g[2])}"); a(f"v_pk_add_f32 {P2(O1)}, {P2(g[1])}, {P2(g[3])}")
        a(f"v_pk_fma_f32 {P2(Eh)}, {P2(g[2])}, {C('q')}, {P2(g[0])} {h1}"); a(f"v_pk_fma_f32 {P2(Oh)}, {P2(g[3])}, {C('q')}, {P2(g[1])} {h1}")
        a(f"v_pk_fma_f32 {P2(E2)}, {P2(g[2])}, 4.0, {P2(g[0])} {h1}"); a(f"v_pk_fma_f32 {P2(O2)}, {P2(g[3])}, 4.0, {P2(g[1])} {h1}")
        a(f"v_pk_add_f32 {P2(E1)}, {P2(E1)}, {P2(g[4])}"); a(f"v_pk_mul_f32 {P2(O1)}, {P2(O1)}, {C('m6')} op_sel_hi:[1,0]")
        a(f"v_pk_fma_f32 {P2(Eh)}, {P2(g[4])}, {C('s16')}, {P2(Eh)} {h1}"); a(f"v_pk_mul_f32 {P2(Oh)}, {P2(Oh)}, {C('f23')} op_sel_hi:[1,0]")
        a(f"v_pk_fma_f32 {P2(E2)}, {P2(g[4])}, {C('x16')}, {P2(E2)} {h1}"); a(f"v_pk_mul_f32 {P2(O2)}, {P2(O2)}, {C('f215')} op_sel_hi:[1,0]")
        for k, (E, O, c) in enumerate(((E1, O1, 'm6'), (Eh, Oh, 'f43'), (E2, O2, 'f15'))):
            a(f"v_pk_fma_f32 {P2(W[2*k])}, {P2(E)}, {C(c)}, {P2(O)} {h1}"); a(f"v_pk_fma_f32 {P2(W[2*k+1])}, {P2(E)}, {C(c)}, {P2(O)} {h1}{ng}")
        if m & 1:
            for col in range(2):
                for k in range(6): a(f"v_cvt_pk_bf16_f32 v{OUT+(k*2+col)*2+m//2}, v{RS+2*k+col}, v{RS+12+2*k+col}")
                for k, i in ((6, 0), (7, 4)): a(f"v_perm_b32 v{OUT+(k*2+col)*2+m//2}, v{WR+m*5+i}, v{WR+(m-1)*5+i}, s{96+col}")
    for k in range(8):
        for col in range(2):
            q = OUT + (k * 2 + col) * 2
            a(f"buffer_store_dwordx2 v[{q}:{q+1}], v{p[2]}, s[{S_WO}:{S_WO+3}], s{48+k} offen offset:{col*1024}{o.get('wst', '')}")
    a("s_waitcnt vmcnt(0)"); a("WP_END:"); a("s_endpgm")
    out = []; emit(out, a.L); return out

def gen_main(o):
    K = NAME + "_kernel"
    a = Em()
    a(f".globl {K}"); a(".p2align 8"); a(f".type {K},@function"); a(K + ":")
    a("s_cmp_ge_u32 s2, 256"); a("s_cbranch_scc1 L_END")
    a("s_load_dwordx8 s[4:11], s[0:1], 0"); a("s_load_dwordx2 s[12:13], s[0:1], 32")
    if o.get("trace"): a("s_memtime s[86:87]"); a("s_memrealtime s[88:89]")
    a("v_lshrrev_b32 v1, 6, v0"); a(f"v_and_b32 v{vLANE}, 63, v0"); a("s_nop 0"); a(f"v_readfirstlane_b32 s{sWAVE}, v1")
    a("s_and_b32 s80, s2, 7"); a("s_lshr_b32 s81, s2, 3"); a("s_and_b32 s82, s80, 1"); a("s_lshl_b32 s82, s82, 1")
    a(f"s_and_b32 s{sET}, s81, 1"); a(f"s_add_u32 s{sET}, s{sET}, s82")
    a("s_lshr_b32 s80, s80, 1"); a("s_lshr_b32 s81, s81, 1"); a("s_mul_i32 s82, s80, 31")
    a(f"s_and_b32 s83, s{sET}, 1"); a("s_sub_u32 s83, 3, s83")
    a("s_cmp_gt_u32 s80, s83"); a("s_cselect_b32 s14, 1, 0"); a("s_add_u32 s82, s82, s14"); a("s_add_u32 s15, s82, s81")
    a("s_cmp_eq_u32 s80, s83"); a("s_cselect_b32 s83, 16, 15"); a("s_cmp_lt_u32 s81, s83")
    a(f"s_cselect_b32 s{sNT}, 2, 1"); a("s_cselect_b32 s81, 16, 0"); a("s_add_u32 s14, s15, s81")
    for k in range(10): a(f"s_mov_b32 s{sROW+k}, {k*4096}")
    a(f"s_mov_b32 s{sM768}, -768"); a(f"s_mov_b32 s{s256}, 256"); a(f"s_mov_b32 s{s2048}, 2048")
    tile_setup_x(a, 15, vXM, vXH)
    a("s_waitcnt lgkmcnt(0)")
    a(f"s_sub_u32 s{S_X}, s4, 8192"); a(f"s_subb_u32 s{S_X+1}, s5, 0"); a(f"s_and_b32 s{S_X+1}, s{S_X+1}, 0xffff")
    a(f"s_mov_b32 s{S_X+2}, {32768000+8192}"); a(f"s_mov_b32 s{S_X+3}, 0x00020000")
    for k in range(18): a.L.append(xl_own(1, k, dst=ACCV + 4 * k, tag=("X0", k)))
    a(f"v_lshlrev_b32 v{vWOFF}, 4, v{vLANE}")
    a(f"s_lshl_b32 s{sT0}, s{sET}, 2"); a(f"s_and_b32 s{sT1}, s{sWAVE}, {o.get('wshare', 3)}"); a(f"s_add_u32 s{sT0}, s{sT0}, s{sT1}"); a(f"s_lshl_b32 s{sT0}, s{sT0}, 19")
    a(f"s_add_u32 s{S_W}, s12, s{sT0}"); a(f"s_addc_u32 s{S_W+1}, s13, 0"); a(f"s_and_b32 s{S_W+1}, s{S_W+1}, 0xffff")
    a(f"s_mov_b32 s{S_W+2}, 32768"); a(f"s_mov_b32 s{S_W+3}, 0x00020000")
    if CFG.get("wdma"): a("s_mov_b32 m0, 0"); a("s_nop 0")
    early = o.get("wearly", 2)
    for n in range(early):
        for eb in range(4): a.L.append(wload(n, eb))
    a(f"s_mov_b32 s{S_O}, s8"); a(f"s_and_b32 s{S_O+1}, s9, 0xffff"); a(f"s_mov_b32 s{S_O+2}, 32768000"); a(f"s_mov_b32 s{S_O+3}, 0x00020000")
    l2e = math.log2(math.e)
    for n, sc in enumerate((1, 1 / 3, 2 / 3)):
        a(f"s_mov_b32 s{sC+4*n}, {hx(2*l2e*sc)}"); a(f"s_mov_b32 s{sC+4*n+2}, {hx(-l2e*sc)}")
    for r, v in ((sHALF, 0.5), (sM4, -4.0), (sP6, 1 / 6), (sP43, 4 / 3), (sK425, -4.25), (sK5, -5.0), (sK525, 5.25), (sK125, -1.25), (sKQ, 0.25), (sCL, 40.0)):
        a(f"s_mov_b32 s{r}, {hx(v)}")
    a(f"s_mov_b32 s{sMASK}, 0xffff0000"); a(f"s_mov_b32 s{sWNEG}, {-15*32768}"); a(f"s_mov_b32 s{sUN}, 0")
    tile_setup_x(a, 14, vXMn, vXHn)
    G.tile_setup_o(a, 15, vOUT); G.tile_setup_o(a, 14, vOUT2)
    t = POOL
    a(f"s_lshl_b32 s{sT0}, s14, 8"); a(f"s_lshl_b32 s{sT1}, s{sET}, 6"); a(f"s_add_u32 s{sT0}, s{sT0}, s{sT1}")
    a(f"s_lshl_b32 s{sT1}, s{sWAVE}, 4"); a(f"s_add_u32 s{sT0}, s{sT0}, s{sT1}")
    a(f"v_lshrrev_b32 v{t[1]}, 3, v{vLANE}"); a(f"v_add_u32 v{t[1]}, s{sT0}, v{t[1]}")
    G.rowbytes(a, t[1], t[2], t[3])
    a(f"v_and_b32 v{t[0]}, 7, v{vLANE}"); a(f"v_lshlrev_b32 v{t[0]}, 7, v{t[0]}"); a(f"v_add3_u32 v{vPF}, v{t[2]}, v{t[0]}, s{sROW+2}")
    a(f"v_mov_b32 v{t[0]}, 0x70000000"); a(f"v_cmp_gt_u32 vcc, 32, v{vLANE}"); a("s_nop 1"); a(f"v_cndmask_b32 v{vPF}, v{t[0]}, v{vPF}, vcc")
    a(f"s_lshr_b32 s{sT0}, s{sWAVE}, 1"); a(f"s_lshl_b32 s{sT0}, s{sT0}, 15"); a(f"s_and_b32 s{sT1}, s{sWAVE}, 1"); a(f"s_lshl_b32 s{sT1}, s{sT1}, 9")
    a(f"s_add_u32 s{sT0}, s{sT0}, s{sT1}")
    a(f"v_bfe_u32 v{t[0]}, v{vLANE}, 2, 1"); a(f"v_lshlrev_b32 v{t[0]}, 14, v{t[0]}")
    a(f"v_lshrrev_b32 v{t[1]}, 3, v{vLANE}"); a(f"v_lshl_add_u32 v{t[0]}, v{t[1]}, 6, v{t[0]}")
    a(f"v_and_b32 v{t[1]}, 3, v{vLANE}"); a(f"v_lshl_add_u32 v{t[0]}, v{t[1]}, 4, v{t[0]}"); a(f"v_add_u32 v{vTW}, s{sT0}, v{t[0]}")
    a(f"v_and_b32 v{t[0]}, 15, v{vLANE}"); a(f"v_lshrrev_b32 v{t[1]}, 3, v{t[0]}"); a(f"v_mul_u32_u24 v{t[1]}, 3, v{t[1]}")
    a(f"v_lshrrev_b32 v{t[2]}, 4, v{vLANE}"); a(f"v_xor_b32 v{t[1]}, v{t[1]}, v{t[2]}")
    a(f"v_lshlrev_b32 v{t[0]}, 2, v{t[0]}"); a(f"v_add_u32 v{t[0]}, v{t[0]}, v{t[1]}"); a(f"v_lshlrev_b32 v{t[0]}, 4, v{t[0]}")
    a(f"v_xor_b32 v{vTR}, 0x10000, v{t[0]}")
    TRC = lambda: []
    if o.get("trace"):
        a("s_add_u32 s92, s12, 0x1000000"); a("s_addc_u32 s93, s13, 0"); a("s_and_b32 s93, s93, 0xffff")
        a("s_mov_b32 s94, 0x100000"); a("s_mov_b32 s95, 0x00020000")
        a("s_lshl_b32 s90, s2, 2"); a(f"s_add_u32 s90, s90, s{sWAVE}"); a("s_lshl_b32 s90, s90, 9"); a("v_mov_b32 v0, 0")
        TRC = lambda: [I("s_waitcnt lgkmcnt(0)"), I(f"v_mov_b32 v{OUTQ}, s86"), I(f"v_mov_b32 v{OUTQ+1}, s88"),
                       I(f"buffer_store_dwordx2 v[{OUTQ}:{OUTQ+1}], v0, s[92:95], s90 offen", "vm"), I("s_add_u32 s90, s90, 8"),
                       I("s_memtime s[86:87]"), I("s_memrealtime s[88:89]")]
    rest = [i for k in range(NPRE()) for i in xl_next(k)] + [wload(n, eb) for n in range(early, 7) for eb in range(4)]
    late = [switch_ops()] + [rest[i * len(rest) // 4:(i + 1) * len(rest) // 4] for i in range(4)]
    unit0_special(a, late)
    a(f"s_mov_b32 s{sP01}, {hx(0.1)}"); a(f"s_mov_b32 s{sP02}, {hx(0.2)}")
    a.L += bar_ops() + [tread(f) for f in range(NTR)]
    a("s_nop 1")
    pro = a.L
    Bf, B1, B2 = TRC() + body(1, True, o), TRC() + body(1, False, o), TRC() + body(2, False, o)
    MID, EP = mid(o), epilogue(o)
    seq = list(pro)
    for tile in range(3):
        for s in range(8):
            seq += Bf if s == 0 else (B2 if 3 <= s <= 6 else B1)
            if s == 3: seq += MID
            if s == 7: seq += EP
    resolve(seq, {"vm": None, "lg": None})
    out = []
    emit(out, pro)
    out += ["L_TILE:", f" s_mov_b32 s{sSIG}, 0", f" s_cmp_eq_u32 s{sNT}, 2", f" s_cselect_b32 s{sPFO}, 0, 0x70000000"]
    emit(out, Bf)
    out += [f" s_mov_b32 s{sSIG}, 1", " s_branch L_B1", ".p2align 6", "L_B2:"]
    emit(out, B2)
    out += [f" s_add_u32 s{sSIG}, s{sSIG}, 1", f" s_cmp_eq_u32 s{sSIG}, 7", " s_cbranch_scc1 L_B1", f" s_cmp_lg_u32 s{sSIG}, 4", " s_cbranch_scc1 L_B2"]
    emit(out, MID)
    out += [" s_branch L_B2", ".p2align 6", "L_B1:"]
    emit(out, B1)
    out += [f" s_add_u32 s{sSIG}, s{sSIG}, 1", f" s_cmp_eq_u32 s{sSIG}, 3", " s_cbranch_scc1 L_B2", f" s_cmp_lg_u32 s{sSIG}, 8", " s_cbranch_scc1 L_B1"]
    emit(out, EP)
    out += [f" s_sub_u32 s{sNT}, s{sNT}, 1", f" s_cmp_lg_u32 s{sNT}, 0", " s_cbranch_scc1 L_TILE", " s_waitcnt vmcnt(0) lgkmcnt(0)"]
    if o.get("trace"): emit(out, TRC() + TRC()[:4] + [I("s_waitcnt vmcnt(0)")])
    out += ["L_END:", " s_endpgm"]
    if o.get("haz"):
        import hazchk
        lin = []; emit(lin, seq[:30000]); print("hazards", hazchk.check(lin), "pool hi", unit_stream(1)[1], unit_stream(2)[1], "NVG", NVG, "ACCV", ACCV)
    return out

def main():
    o = {}
    for s in sys.argv[2:]:
        k, _, v = s.partition("=")
        o[k] = eval(v) if v else 1
    CW.update(o.get("cw", {})); CFG.update(o.get("cfg", {}))
    layout()
    out = [HEADER, *["; @launch kernel=wprep_kernel grid=(256,1,1) block=(256,1,1) lds=0"] * o.get("nprep", 1),
           f"; @launch kernel={NAME}_kernel grid=(256,1,1) block=(256,1,1) lds={LDS_BYTES}",
           '.amdgcn_target "amdgcn-amd-amdhsa--gfx950"', ".text"]
    out += gen_main(o)
    out += wprep_kernel_text(o)
    out.append('.section .rodata,"a"')
    out += kd(NAME + "_kernel", 512, 102, 256) + kd("wprep_kernel", 112, 102, 112)
    open(sys.argv[1], "w").write("\n".join(out) + "\n")

if __name__ == "__main__":
    main()
```
